```python
import torch

def _softmax(x, axis=-1):
    return torch.softmax(x, dim=axis)
def _gelu(x):
    return torch.nn.functional.gelu(x, approximate="tanh")
def _silu(x):
    return torch.nn.functional.silu(x)
def _sigmoid(x):
    return torch.sigmoid(x)
def _layernorm(x, axis=-1, eps=1e-5):
    m = x.mean(dim=axis, keepdim=True)
    v = x.var(dim=axis, keepdim=True, unbiased=False)
    return (x - m) / torch.sqrt(v + eps)
def _scatter_add(tgt, idx, src, axis=0):
    return tgt.clone().index_add_(axis, idx, src)
def _segment_sum(src, seg, n):
    out = torch.zeros((n,) + src.shape[1:], dtype=src.dtype)
    return out.index_add_(0, seg, src)
def _pad(x, pw):
    flat = tuple(v for pair in reversed(pw) for v in pair)
    return torch.nn.functional.pad(x, flat)

kernel_name = 'sequential_preLN__grouped_kv_mqa__dense_activation_squared_relu__prompt'

def setup_inputs():

    _w = (lambda a: (lambda t: t.to(torch.bfloat16) if t.is_floating_point() else t)(torch.as_tensor(a)))
    def _A_setup():
        B, S, D, H = 1, 2048, 640, 32
        Dh = D // H
        return {
            "x": _w((lambda *s: torch.randn(*s, dtype=torch.bfloat16) * 0.05)(B, S, D)),
            "wq": _w((lambda *s: torch.randn(*s, dtype=torch.bfloat16) * 0.05)(D, H * Dh)),
            "wk": _w((lambda *s: torch.randn(*s, dtype=torch.bfloat16) * 0.05)(D, Dh)),
            "wv": _w((lambda *s: torch.randn(*s, dtype=torch.bfloat16) * 0.05)(D, Dh)),
            "wo": _w((lambda *s: torch.randn(*s, dtype=torch.bfloat16) * 0.05)(H * Dh, D)),
        }
    _A_in = _A_setup()

    def _B_setup():
        B, S, D, F = 1, 2048, 640, 1536
        return {
            "x": _w((lambda *s: torch.randn(*s, dtype=torch.bfloat16) * 0.05)(B, S, D)),
            "w1": _w((lambda *s: torch.randn(*s, dtype=torch.bfloat16) * 0.05)(D, F)),
            "b1": _w((lambda *s: torch.randn(*s, dtype=torch.bfloat16) * 0.8)(F)),
            "w2": _w((lambda *s: torch.randn(*s, dtype=torch.bfloat16) * 0.05)(F, D)),
            "b2": _w((lambda *s: torch.randn(*s, dtype=torch.bfloat16) * 3.2)(D)),
        }
    _B_in = _B_setup()

    return {
        "A_x": _A_in["x"],
        "A_wq": _A_in["wq"],
        "A_wk": _A_in["wk"],
        "A_wv": _A_in["wv"],
        "A_wo": _A_in["wo"],
        "B_x": _B_in["x"],
        "B_w1": _B_in["w1"],
        "B_b1": _B_in["b1"],
        "B_w2": _B_in["w2"],
        "B_b2": _B_in["b2"],
    }

def reference(A_x, A_wq, A_wk, A_wv, A_wo, B_x, B_w1, B_b1, B_w2, B_b2):
    def _A_ref(x, wq, wk, wv, wo):
        B, S, D = x.shape
        H = 32
        Dh = D // H
        q = (lambda x, *d: x.permute(*d))((x @ wq).reshape(B, S, H, Dh), 0, 2, 1, 3)
        k = x @ wk
        v = x @ wv
        scores = torch.einsum("bhqd,bkd->bhqk", q, k) * (Dh ** -0.5)
        p = _softmax(scores, axis=-1)
        o = torch.einsum("bhqk,bkd->bhqd", p, v)
        return (lambda x, *d: x.permute(*d))(o, 0, 2, 1, 3).reshape(B, S, H * Dh) @ wo

    def _B_ref(x, w1, b1, w2, b2):
        h = torch.einsum("bsd,df->bsf", x, w1) + b1
        zero = torch.zeros_like(h)
        r = torch.where(h > zero, h, zero)
        h = r * r
        out = torch.einsum("bsf,fd->bsd", h, w2) + b2
        return out

    x = A_x
    h = x + _A_ref(_layernorm(x, axis=-1), A_wq, A_wk, A_wv, A_wo)
    h2 = h + _B_ref(_layernorm(h, axis=-1), B_w1, B_b1, B_w2, B_b2)
    return h2
```

```python
import sys, struct

NAME = "sequential_preLN__grouped_kv_mqa__dense_activation_squared_relu__prompt"

KA = dict(x=0, wq=8, wk=16, wv=24, wo=32, bx=40, w1=48, b1=56, w2=64, b2=72, out=80, dbg=88, ws=96)
WS_Q = 0x000000
WS_KV = 0x300000
WS_KMAX = 0x340000
WS_O = 0x400000
WS_H = 0x700000
WS_H1 = 0xA00000
WS_SIZE = 0x1200000

def f2u(f):
    return struct.unpack("<I", struct.pack("<f", f))[0]

QSCALE = (20 ** -0.5) * 1.4426950408889634


class Kern:
    def __init__(self, name):
        self.name = name
        self.L = []
        self.vm = []
        self.uid = 0

    def __call__(self, s):
        for line in s.strip().split("\n"):
            self.L.append("    " + line.strip())

    def label(self, l):
        self.L.append(f"{l}:")

    def newlabel(self, base="L"):
        self.uid += 1
        return f"{self.name}_{base}{self.uid}"

    def vmissue(self, s, tag):
        self(s)
        self.vm.append(tag)

    def vmwait(self, tags, extra=""):
        if not isinstance(tags, (list, tuple, set)):
            tags = [tags]
        last = -1
        for i, t in enumerate(self.vm):
            if t in tags:
                last = i
        n = len(self.vm) - 1 - last
        assert n <= 63, n
        self(f"s_waitcnt vmcnt({n}) {extra}".strip())
        self.vm = self.vm[last + 1:]

    def nop(self, n):
        while n > 0:
            k = min(n, 16)
            self(f"s_nop {k-1}")
            n -= k

    def srd(self, d, base, nbytes, off=0):
        if off:
            self(f"s_add_u32 s{d}, s{base}, {hex(off)}")
            self(f"s_addc_u32 s{d+1}, s{base+1}, 0")
        else:
            self(f"s_mov_b32 s{d}, s{base}")
            self(f"s_mov_b32 s{d+1}, s{base+1}")
        self(f"s_mov_b32 s{d+2}, {hex(nbytes)}")
        self(f"s_mov_b32 s{d+3}, 0x00020000")

    def text(self, nv, na=0, ns=102):
        acc = (nv + 3) // 4 * 4
        tot = acc + na if na else nv
        s = f".globl {self.name}\n.p2align 8\n.type {self.name},@function\n{self.name}:\n"
        s += "\n".join(self.L) + "\n"
        kd = f""".p2align 6
.amdhsa_kernel {self.name}
  .amdhsa_next_free_vgpr {tot}
  .amdhsa_next_free_sgpr {ns}
  .amdhsa_accum_offset {acc}
  .amdhsa_group_segment_fixed_size 0
  .amdhsa_kernarg_size 104
  .amdhsa_user_sgpr_count 2
  .amdhsa_user_sgpr_kernarg_segment_ptr 1
  .amdhsa_system_sgpr_workgroup_id_x 1
.end_amdhsa_kernel
"""
        return s, kd


def vr(a, n):
    return f"v[{a}:{a+n-1}]" if n > 1 else f"v{a}"


def ar(a, n):
    return f"a[{a}:{a+n-1}]" if n > 1 else f"a{a}"


def bf16r(k, dst, src):
    k(f"v_cvt_pk_bf16_f32 v{dst}, v{src}, v{src}")
    k(f"v_lshlrev_b32 v{dst}, 16, v{dst}")


def xsum_rows(k, v, t):
    k(f"v_mov_b32 v{t}, v{v}")
    k.nop(2)
    k(f"v_permlane16_swap_b32 v{v}, v{t}")
    k.nop(2)
    k(f"v_add_f32 v{v}, v{v}, v{t}")
    xsum_halves(k, v, t)


def xsum_halves(k, v, t):
    k(f"v_mov_b32 v{t}, v{v}")
    k.nop(2)
    k(f"v_permlane32_swap_b32 v{v}, v{t}")
    k.nop(2)
    k(f"v_add_f32 v{v}, v{v}, v{t}")


def ln_stats(k, vsum, vsq, vmean, vrstd, t0, t1):
    inv = hex(f2u(1.0 / 640))
    k(f"v_mul_f32 v{t0}, {inv}, v{vsum}")
    k(f"v_mul_f32 v{t1}, {inv}, v{vsq}")
    k(f"v_fma_f32 v{t1}, -v{t0}, v{t0}, v{t1}")
    k(f"v_max_f32 v{t1}, 0, v{t1}")
    bf16r(k, vmean, t0)
    bf16r(k, t1, t1)
    k(f"v_add_f32 v{t1}, {hex(f2u(1e-5))}, v{t1}")
    bf16r(k, t1, t1)
    k(f"v_sqrt_f32 v{t1}, v{t1}")
    k.nop(1)
    bf16r(k, t1, t1)
    k(f"v_rcp_f32 v{vrstd}, v{t1}")
    k.nop(1)


def wave_lane_setup(k, s_w, v_l):
    k(f"v_lshrrev_b32 v{v_l}, 6, v0")
    k.nop(1)
    k(f"v_readfirstlane_b32 s{s_w}, v{v_l}")
    k(f"v_and_b32 v{v_l}, 63, v0")


def dma_offsets_160(k, vout, v_l, ld, t0, t1, t2):
    for i in range(5):
        k(f"v_add_u32 v{t0}, {i*64}, v{v_l}")
        k(f"v_mul_u32_u24 v{t1}, 6554, v{t0}")
        k(f"v_lshrrev_b32 v{t1}, 16, v{t1}")
        k(f"v_mul_u32_u24 v{t2}, 10, v{t1}")
        k(f"v_sub_u32 v{t0}, v{t0}, v{t2}")
        k(f"v_lshlrev_b32 v{t0}, 4, v{t0}")
        k(f"v_bfe_u32 v{t2}, v{t1}, 2, 2")
        k(f"v_lshlrev_b32 v{t2}, 3, v{t2}")
        k(f"v_and_b32 v{vout+i}, 3, v{t1}")
        k(f"v_add_u32 v{t2}, v{t2}, v{vout+i}")
        k(f"v_lshrrev_b32 v{t1}, 4, v{t1}")
        k(f"v_lshl_add_u32 v{t2}, v{t1}, 2, v{t2}")
        k(f"v_mul_u32_u24 v{t2}, {ld}, v{t2}")
        k(f"v_add_u32 v{vout+i}, v{t2}, v{t0}")


def gen_k1():
    k = Kern("k1_kernel")
    LDS_KV = 102400
    LDS_SCR = 128000
    sX, sW, sKV, sWS = 16, 20, 24, 28
    s_tb, s_cb, s_w, s_t, s_t2, s_off = 32, 33, 34, 35, 36, 37
    s_ones = 38
    v_l, v_idx, v_g = 1, 2, 3
    v_x = 4
    v_w = 5
    v_a = 10
    v_akv = 11
    t0, t1, t2, t3 = 12, 13, 14, 15
    v_sum, v_sq = 16, 18
    v_ones = 20
    XB = 24
    AF = 104
    ACC = 160
    CS = 188
    E = 216

    k("s_cmp_ge_u32 s2, 256")
    k("s_cbranch_scc1 k1_end")
    k(f"s_load_dwordx4 s[4:7], s[0:1], {KA['x']}")
    k(f"s_load_dwordx4 s[8:11], s[0:1], {KA['wk']}")
    k(f"s_load_dwordx2 s[12:13], s[0:1], {KA['ws']}")
    wave_lane_setup(k, s_w, v_l)
    k(f"v_and_b32 v{v_idx}, 15, v{v_l}")
    k(f"v_lshrrev_b32 v{v_g}, 4, v{v_l}")
    k(f"s_and_b32 s{s_t}, s2, 7")
    k(f"s_lshr_b32 s{s_t2}, s2, 3")
    k(f"s_lshl_b32 s{s_tb}, s{s_t}, 2")
    k(f"s_and_b32 s{s_t}, s{s_t2}, 3")
    k(f"s_add_u32 s{s_tb}, s{s_tb}, s{s_t}")
    k(f"s_lshr_b32 s{s_cb}, s{s_t2}, 2")
    k(f"s_lshl_b32 s{s_t}, s{s_tb}, 6")
    k(f"s_lshl_b32 s{s_t2}, s{s_w}, 4")
    k(f"s_add_u32 s{s_t}, s{s_t}, s{s_t2}")
    k(f"v_add_u32 v{t0}, s{s_t}, v{v_idx}")
    k(f"v_mul_u32_u24 v{v_x}, 1280, v{t0}")
    k(f"v_lshl_add_u32 v{v_x}, v{v_g}, 4, v{v_x}")
    dma_offsets_160(k, v_w, v_l, 1280, t0, t1, t2)
    k(f"v_lshrrev_b32 v{t0}, 2, v{v_idx}")
    k(f"v_lshl_add_u32 v{t1}, v{v_g}, 2, v{t0}")
    k(f"v_mul_u32_u24 v{v_a}, 160, v{t1}")
    k(f"v_and_b32 v{t2}, 3, v{v_idx}")
    k(f"v_lshl_add_u32 v{v_a}, v{t2}, 3, v{v_a}")
    k(f"v_lshl_add_u32 v{t1}, v{v_g}, 3, v{t0}")
    k(f"v_mul_u32_u24 v{v_akv}, 40, v{t1}")
    k(f"v_lshl_add_u32 v{v_akv}, v{t2}, 3, v{v_akv}")
    k(f"v_add_u32 v{v_akv}, {LDS_KV}, v{v_akv}")
    k(f"s_mov_b32 s{s_ones}, 0x3f803f80")
    for i in range(4):
        k(f"v_mov_b32 v{v_ones+i}, s{s_ones}")
    for i in range(4):
        k(f"v_mov_b32 v{v_sum+i}, 0")
    for i in range(56):
        k(f"v_mov_b32 v{ACC+i}, 0")
    k("s_waitcnt lgkmcnt(0)")
    k.srd(sX, 4, 2048 * 1280)
    k.srd(sW, 6, 640 * 1280)
    k.srd(sWS, 12, WS_SIZE)
    k(f"s_cmp_eq_u32 s{s_cb}, 0")
    k(f"s_cselect_b32 s{sKV}, s8, s10")
    k(f"s_cselect_b32 s{sKV+1}, s9, s11")
    k(f"s_mov_b32 s{sKV+2}, 25600")
    k(f"s_mov_b32 s{sKV+3}, 0x00020000")
    k(f"s_cmp_ge_u32 s{s_cb}, 2")
    k(f"s_cbranch_scc1 k1_nokvload")
    k(f"v_lshlrev_b32 v{t0}, 4, v{v_l}")
    for i in range(7):
        k(f"s_add_u32 s{s_t}, s{s_w}, {4*i}")
        k(f"s_min_u32 s{s_t}, s{s_t}, 24")
        k(f"s_lshl_b32 s{s_t}, s{s_t}, 10")
        k(f"s_add_u32 m0, s{s_t}, {LDS_KV}")
        k.nop(1)
        k(f"buffer_load_dwordx4 v{t0}, s[{sKV}:{sKV+3}], s{s_t} offen lds")
    k.label("k1_nokvload")
    k(f"s_mul_i32 s{s_off}, s{s_cb}, 160")
    k(f"s_mul_i32 s{s_t}, s{s_w}, {32*1280}")
    k(f"s_add_u32 s{s_off}, s{s_off}, s{s_t}")
    k(f"s_mul_i32 s{s_t2}, s{s_w}, 5120")
    for c in range(5):
        for i in range(5):
            k(f"s_add_u32 m0, s{s_t2}, {c*20480 + i*1024}")
            k.nop(1)
            k.vmissue(f"buffer_load_dwordx4 v{v_w+i}, s[{sW}:{sW+3}], s{s_off} offen lds", f"c{c}")
        for i in range(4):
            s = 4 * c + i
            k.vmissue(f"buffer_load_dwordx4 {vr(XB+4*s,4)}, v{v_x}, s[{sX}:{sX+3}], 0 offen offset:{s*64}", f"c{c}")
        if c < 4:
            k(f"s_add_u32 s{s_off}, s{s_off}, {128*1280}")
    vm_snapshot = list(k.vm)

    def mainloop(mode):
        k.vm = list(vm_snapshot)
        nt = 5 if mode == 'q' else 7

        def reads(s, buf):
            for t in range(5):
                for j in range(2):
                    off = (s % 12) * 5120 + j * 2560 + t * 32
                    base = v_a if s < 12 else t3
                    k(f"ds_read_b64_tr_b16 {vr(AF+buf*28+4*t+2*j,2)}, v{base} offset:{off}")
            if mode != 'q':
                for t in range(2):
                    for j in range(2):
                        off = s * 1280 + j * 160 + t * 32
                        k(f"ds_read_b64_tr_b16 {vr(AF+buf*28+20+4*t+2*j,2)}, v{v_akv} offset:{off}")
        k(f"v_add_u32 v{t3}, {12*5120}, v{v_a}")
        for c in range(5):
            k.vmwait(f"c{c}")
            k("s_barrier")
            reads(4 * c, 0)
            for i in range(4):
                s = 4 * c + i
                buf = i & 1
                k("s_waitcnt lgkmcnt(0)")
                if i < 3:
                    reads(s + 1, buf ^ 1)
                X = XB + 4 * s
                for t in range(nt):
                    A = AF + buf * 28 + 4 * t
                    if mode == 'v' and t >= 5:
                        k(f"v_mfma_f32_16x16x32_bf16 {vr(ACC+4*t,4)}, {vr(X,4)}, {vr(A,4)}, {vr(ACC+4*t,4)}")
                    else:
                        k(f"v_mfma_f32_16x16x32_bf16 {vr(ACC+4*t,4)}, {vr(A,4)}, {vr(X,4)}, {vr(ACC+4*t,4)}")
                    if t < 4:
                        k(f"v_dot2_f32_bf16 v{v_sum+(t&1)}, v{X+t}, v{v_ones}, v{v_sum+(t&1)}")
                        k(f"v_dot2_f32_bf16 v{v_sq+(t&1)}, v{X+t}, v{X+t}, v{v_sq+(t&1)}")
                lab = k.newlabel("cs")
                k(f"s_cmp_eq_u32 s{s_w}, {i}")
                k(f"s_cbranch_scc0 {lab}")
                for t in range(nt):
                    A = AF + buf * 28 + 4 * t
                    if mode == 'v' and t >= 5:
                        k(f"v_mfma_f32_16x16x32_bf16 {vr(CS+4*t,4)}, {vr(v_ones,4)}, {vr(A,4)}, {vr(CS+4*t,4)}")
                    else:
                        k(f"v_mfma_f32_16x16x32_bf16 {vr(CS+4*t,4)}, {vr(A,4)}, {vr(v_ones,4)}, {vr(CS+4*t,4)}")
                k.label(lab)

    k(f"s_cmp_eq_u32 s{s_cb}, 0")
    k("s_cbranch_scc1 k1_loop_k")
    k(f"s_cmp_eq_u32 s{s_cb}, 1")
    k("s_cbranch_scc1 k1_loop_v")
    mainloop('q')
    k("s_branch k1_epi")
    k.label("k1_loop_k")
    mainloop('k')
    k("s_branch k1_epi")
    k.label("k1_loop_v")
    mainloop('v')
    k.label("k1_epi")
    k.vm = []
    k.nop(8)
    v_mean, v_rstd = E, E + 1
    k(f"v_add_f32 v{v_sum}, v{v_sum}, v{v_sum+1}")
    k(f"v_add_f32 v{v_sq}, v{v_sq}, v{v_sq+1}")
    xsum_rows(k, v_sum, t0)
    xsum_rows(k, v_sq, t0)
    ln_stats(k, v_sum, v_sq, v_mean, v_rstd, t0, t1)
    k(f"s_mul_i32 s{s_t}, s{s_w}, {7*64}")
    k(f"s_add_u32 s{s_t}, s{s_t}, {LDS_SCR}")
    k(f"v_lshlrev_b32 v{t0}, 4, v{v_g}")
    k(f"v_add_u32 v{t0}, s{s_t}, v{t0}")
    for t in range(5):
        k(f"ds_write_b128 v{t0}, {vr(CS+4*t,4)} offset:{t*64}")
    k(f"s_cmp_eq_u32 s{s_cb}, 1")
    k("s_cbranch_scc1 k1_csw_v")
    for t in range(5, 7):
        k(f"ds_write_b128 v{t0}, {vr(CS+4*t,4)} offset:{t*64}")
    k("s_branch k1_csw_done")
    k.label("k1_csw_v")
    k(f"v_lshlrev_b32 v{t1}, 2, v{v_idx}")
    k(f"v_add_u32 v{t1}, s{s_t}, v{t1}")
    for t in range(5, 7):
        k(f"ds_write_b32 v{t1}, v{CS+4*t} offset:{t*64}")
    k.label("k1_csw_done")
    k("s_waitcnt lgkmcnt(0)")
    k("s_barrier")
    k(f"v_lshlrev_b32 v{t0}, 4, v{v_g}")
    k(f"v_add_u32 v{t0}, {LDS_SCR}, v{t0}")
    R = AF
    for t in range(5):
        for w in range(4):
            k(f"ds_read_b128 {vr(XB+(t*4+w)*4,4)}, v{t0} offset:{(w*7+t)*64}")
        if t == 2:
            k("s_waitcnt lgkmcnt(0)")
    k("s_waitcnt lgkmcnt(0)")
    for t in range(5):
        for r in range(4):
            b = XB + t * 16 + r
            k(f"v_add_f32 v{b}, v{b}, v{b+4}")
            k(f"v_add_f32 v{b+8}, v{b+8}, v{b+12}")
            k(f"v_add_f32 v{CS+4*t+r}, v{b}, v{b+8}")
    v_rs = E + 2
    k(f"v_mul_f32 v{v_rs}, {hex(f2u(QSCALE))}, v{v_rstd}")
    k(f"v_lshlrev_b32 v{t1}, 3, v{v_g}")
    k(f"v_sub_u32 v{t1}, v{v_x}, v{t1}")
    k(f"s_mul_i32 s{s_t}, s{s_cb}, 160")
    for t in range(5):
        for r in range(4):
            a = ACC + 4 * t + r
            k(f"v_fma_f32 v{a}, -v{v_mean}, v{CS+4*t+r}, v{a}")
            k(f"v_mul_f32 v{a}, v{a}, v{v_rs}")
        k(f"v_cvt_pk_bf16_f32 v{E+4+2*t}, v{ACC+4*t}, v{ACC+4*t+1}")
        k(f"v_cvt_pk_bf16_f32 v{E+5+2*t}, v{ACC+4*t+2}, v{ACC+4*t+3}")
        k(f"buffer_store_dwordx2 {vr(E+4+2*t,2)}, v{t1}, s[{sWS}:{sWS+3}], s{s_t} offen offset:{t*32}")
    k(f"s_cmp_ge_u32 s{s_cb}, 2")
    k("s_cbranch_scc1 k1_end")
    s_base, s_u = 39, 40
    k(f"s_lshl_b32 s{s_t}, s{s_tb}, 1")
    k(f"s_lshr_b32 s{s_t2}, s{s_w}, 1")
    k(f"s_add_u32 s{s_t}, s{s_t}, s{s_t2}")
    k(f"s_mul_i32 s{s_base}, s{s_t}, 2560")
    k(f"s_add_u32 s{s_base}, s{s_base}, {WS_KV}")
    k(f"s_and_b32 s{s_u}, s{s_w}, 1")
    k(f"s_cmp_eq_u32 s{s_cb}, 1")
    k("s_cbranch_scc1 k1_epi_v")
    for t in range(5, 7):
        for w in range(4):
            k(f"ds_read_b128 {vr(XB+((t-5)*4+w)*4,4)}, v{t0} offset:{(w*7+t)*64}")
    k("s_waitcnt lgkmcnt(0)")
    for t in range(5, 7):
        for r in range(4):
            b = XB + (t - 5) * 16 + r
            a = ACC + 4 * t + r
            k(f"v_add_f32 v{b}, v{b}, v{b+4}")
            k(f"v_add_f32 v{b+8}, v{b+8}, v{b+12}")
            k(f"v_add_f32 v{b}, v{b}, v{b+8}")
            k(f"v_fma_f32 v{a}, -v{v_mean}, v{b}, v{a}")
            k(f"v_mul_f32 v{a}, v{a}, v{v_rstd}")
    P = E + 16
    k(f"v_cvt_pk_bf16_f32 v{P}, v{ACC+20}, v{ACC+21}")
    k(f"v_cvt_pk_bf16_f32 v{P+1}, v{ACC+22}, v{ACC+23}")
    k(f"v_cvt_pk_bf16_f32 v{P+2}, v{ACC+24}, v{ACC+25}")
    k(f"v_cvt_pk_bf16_f32 v{P+3}, v{ACC+26}, v{ACC+27}")
    k(f"v_cmp_eq_u32 vcc, 0, v{v_g}")
    k.nop(2)
    k(f"v_cndmask_b32 v{P+2}, 0, v{P+2}, vcc")
    k(f"v_cndmask_b32 v{P+3}, 0, v{P+3}, vcc")
    k(f"s_lshl_b32 s{s_t}, s{s_u}, 4")
    k(f"v_add_u32 v{t1}, s{s_t}, v{v_idx}")
    k(f"v_lshrrev_b32 v{t2}, 1, v{v_g}")
    k(f"v_lshl_add_u32 v{t2}, v{t2}, 5, v{t1}")
    k(f"v_lshlrev_b32 v{t2}, 4, v{t2}")
    k(f"v_and_b32 v{t3}, 1, v{v_g}")
    k(f"v_lshl_add_u32 v{t2}, v{t3}, 3, v{t2}")
    k(f"buffer_store_dwordx2 {vr(P,2)}, v{t2}, s[{sWS}:{sWS+3}], s{s_base} offen")
    k(f"v_lshlrev_b32 v{t2}, 3, v{t1}")
    k(f"v_add_u32 v{t2}, 2304, v{t2}")
    k(f"v_cndmask_b32 v{t2}, -1, v{t2}, vcc")
    k(f"v_lshrrev_b32 v{t2}, 1, v{t2}")
    k(f"v_lshlrev_b32 v{t2}, 1, v{t2}")
    k(f"v_and_b32 v{t2}, 0x7ffffff8, v{t2}")
    k(f"buffer_store_dwordx2 {vr(P+2,2)}, v{t2}, s[{sWS}:{sWS+3}], s{s_base} offen")
    k(f"v_mov_b32 v{t3}, 0")
    for i in range(4):
        k(f"v_dot2_f32_bf16 v{t3}, v{P+i}, v{P+i}, v{t3}")
    k.nop(3)
    xsum_rows(k, t3, t0)
    for sh in (8, 4, 2, 1):
        k.nop(2)
        k(f"v_max_f32_dpp v{t3}, v{t3}, v{t3} row_ror:{sh} row_mask:0xf bank_mask:0xf")
    k(f"s_lshl_b32 s{s_t}, s{s_tb}, 2")
    k(f"s_add_u32 s{s_t}, s{s_t}, s{s_w}")
    k(f"s_lshl_b32 s{s_t}, s{s_t}, 2")
    k(f"s_add_u32 s{s_t}, s{s_t}, {WS_KMAX}")
    k(f"v_mov_b32 v{t2}, 0")
    k(f"buffer_store_dword v{t3}, v{t2}, s[{sWS}:{sWS+3}], s{s_t} offen")
    k("s_branch k1_end")
    k.label("k1_epi_v")
    k(f"v_lshlrev_b32 v{t1}, 2, v{v_idx}")
    k(f"v_add_u32 v{t1}, {LDS_SCR}, v{t1}")
    for t in range(5, 7):
        for w in range(4):
            k(f"ds_read_b32 v{XB+(t-5)*4+w}, v{t1} offset:{(w*7+t)*64}")
    k(f"s_lshl_b32 s{s_t}, s{s_w}, 7")
    k(f"s_add_u32 s{s_t}, s{s_t}, {LDS_SCR+1792}")
    k(f"v_lshlrev_b32 v{t2}, 2, v{v_idx}")
    k(f"v_add_u32 v{t2}, s{s_t}, v{t2}")
    k(f"ds_write_b32 v{t2}, v{v_mean}")
    k(f"ds_write_b32 v{t2}, v{v_rstd} offset:64")
    k(f"v_lshlrev_b32 v{t2}, 4, v{v_g}")
    k(f"v_add_u32 v{t2}, s{s_t}, v{t2}")
    k("s_waitcnt lgkmcnt(0)")
    M4, R4 = XB + 16, XB + 20
    k(f"ds_read_b128 {vr(M4,4)}, v{t2}")
    k(f"ds_read_b128 {vr(R4,4)}, v{t2} offset:64")
    k("s_waitcnt lgkmcnt(0)")
    P = E + 16
    for t in range(5, 7):
        b = XB + (t - 5) * 4
        k(f"v_add_f32 v{b}, v{b}, v{b+1}")
        k(f"v_add_f32 v{b+2}, v{b+2}, v{b+3}")
        k(f"v_add_f32 v{b}, v{b}, v{b+2}")
        for r in range(4):
            a = ACC + 4 * t + r
            k(f"v_fma_f32 v{a}, -v{M4+r}, v{b}, v{a}")
            k(f"v_mul_f32 v{a}, v{a}, v{R4+r}")
        k(f"v_cvt_pk_bf16_f32 v{P+2*(t-5)}, v{ACC+4*t}, v{ACC+4*t+1}")
        k(f"v_cvt_pk_bf16_f32 v{P+2*(t-5)+1}, v{ACC+4*t+2}, v{ACC+4*t+3}")
    k(f"v_and_b32 v{t1}, 1, v{v_g}")
    k(f"s_lshl_b32 s{s_t}, s{s_u}, 1")
    k(f"v_add_u32 v{t1}, s{s_t}, v{t1}")
    k(f"v_mul_u32_u24 v{t1}, 20, v{t1}")
    k(f"v_add_u32 v{t1}, v{t1}, v{v_idx}")
    k(f"v_lshlrev_b32 v{t1}, 4, v{t1}")
    k(f"v_lshrrev_b32 v{t2}, 1, v{v_g}")
    k(f"v_lshl_add_u32 v{t1}, v{t2}, 3, v{t1}")
    k(f"buffer_store_dwordx2 {vr(P,2)}, v{t1}, s[{sWS}:{sWS+3}], s{s_base} offen offset:1024")
    k(f"v_cmp_gt_u32 vcc, 4, v{v_idx}")
    k.nop(2)
    k(f"v_mov_b32 v{t2}, 0x7ffffff8")
    k(f"v_cndmask_b32 v{t1}, v{t2}, v{t1}, vcc")
    k(f"buffer_store_dwordx2 {vr(P+2,2)}, v{t1}, s[{sWS}:{sWS+3}], s{s_base} offen offset:{1024+256}")
    k.label("k1_end")
    k("s_endpgm")
    return k.text(248), "k1_kernel", (256, 256, LDS_SCR + 1792 + 512)


def gen_k2():
    k = Kern("k2_kernel")
    sWS, sKVs = 16, 20
    s_tb, s_hg, s_w, s_t, s_t2, s_mode, s_kh, s_cnt, s_h = 32, 33, 34, 35, 36, 37, 38, 39, 40
    s_vm = 42
    s_flag = 44
    v_l, v_q, v_half = 1, 2, 3
    t0, t1, t2, t3 = 4, 5, 6, 7
    v_k1, v_k2, v_v = 8, 9, 10
    v_dma = 11
    v_km = 12
    v_oa = 13
    QA1, QA2, QB1, QB2 = 16, 20, 24, 28
    SA, SB = 32, 48
    PA, PB = 64, 72
    OA, OB = 80, 96
    KF = 112
    VF = 128
    MX = 144
    NV = 160

    k("s_cmp_ge_u32 s2, 256")
    k("s_cbranch_scc1 k2_end")
    k(f"s_load_dwordx2 s[12:13], s[0:1], {KA['ws']}")
    wave_lane_setup(k, s_w, v_l)
    k(f"v_and_b32 v{v_q}, 31, v{v_l}")
    k(f"v_lshrrev_b32 v{v_half}, 5, v{v_l}")
    k(f"s_lshr_b32 s{s_tb}, s2, 3")
    k(f"s_and_b32 s{s_hg}, s2, 7")
    k(f"s_lshr_b32 s{s_kh}, s{s_w}, 2")
    k(f"s_and_b32 s{s_t}, s{s_w}, 3")
    k(f"s_lshl_b32 s{s_h}, s{s_hg}, 2")
    k(f"s_add_u32 s{s_h}, s{s_h}, s{s_t}")
    k(f"s_mov_b32 s{s_mode}, 0")
    k(f"s_mov_b32 s{s_vm}, 0x000fffff")
    k(f"s_mov_b32 s{s_vm+1}, 0x000fffff")
    k(f"v_lshlrev_b32 v{v_dma}, 4, v{v_l}")
    k(f"s_mul_i32 s{s_t}, s{s_kh}, 81920")
    k(f"v_add_u32 v{v_k1}, s{s_t}, v{v_dma}")
    k(f"v_lshlrev_b32 v{v_k2}, 3, v{v_q}")
    k(f"v_add_u32 v{v_k2}, s{s_t}, v{v_k2}")
    k(f"v_mul_u32_u24 v{v_v}, 20, v{v_half}")
    k(f"v_add_u32 v{v_v}, v{v_v}, v{v_q}")
    k(f"v_lshlrev_b32 v{v_v}, 4, v{v_v}")
    k(f"v_add_u32 v{v_v}, s{s_t}, v{v_v}")
    k("s_waitcnt lgkmcnt(0)")
    k.srd(sWS, 12, WS_SIZE)
    k.srd(sKVs, 12, 163840, WS_KV)
    k.label("k2_start")
    k.vm = []
    k(f"s_lshl_b32 s{s_t}, s{s_tb}, 6")
    k(f"v_add_u32 v{t0}, s{s_t}, v{v_q}")
    k(f"v_mul_u32_u24 v{t0}, 1280, v{t0}")
    k(f"v_lshl_add_u32 v{t1}, v{v_half}, 4, v{t0}")
    k(f"s_mul_i32 s{s_t}, s{s_h}, 40")
    k(f"s_add_u32 s{s_t2}, s{s_t}, {32*1280}")
    k.vmissue(f"buffer_load_dwordx2 {vr(QA1,2)}, v{t1}, s[{sWS}:{sWS+3}], s{s_t} offen", "q")
    k.vmissue(f"buffer_load_dwordx2 {vr(QA1+2,2)}, v{t1}, s[{sWS}:{sWS+3}], s{s_t} offen offset:8", "q")
    k.vmissue(f"buffer_load_dwordx2 {vr(QA2,2)}, v{t0}, s[{sWS}:{sWS+3}], s{s_t} offen offset:32", "q")
    k.vmissue(f"buffer_load_dwordx2 {vr(QB1,2)}, v{t1}, s[{sWS}:{sWS+3}], s{s_t2} offen", "q")
    k.vmissue(f"buffer_load_dwordx2 {vr(QB1+2,2)}, v{t1}, s[{sWS}:{sWS+3}], s{s_t2} offen offset:8", "q")
    k.vmissue(f"buffer_load_dwordx2 {vr(QB2,2)}, v{t0}, s[{sWS}:{sWS+3}], s{s_t2} offen offset:32", "q")
    k(f"v_lshlrev_b32 v{t2}, 3, v{v_l}")
    k(f"s_mov_b32 s{s_t}, {WS_KMAX}")
    k.vmissue(f"buffer_load_dwordx2 {vr(MX,2)}, v{t2}, s[{sWS}:{sWS+3}], s{s_t} offen", "q")
    k(f"s_mul_i32 s{s_t}, s{s_kh}, 81920")
    k(f"s_and_b32 s{s_t2}, s{s_w}, 3")
    k(f"s_mul_i32 s{s_t2}, s{s_t2}, 5120")
    k(f"s_add_u32 s{s_t}, s{s_t}, s{s_t2}")
    for j in range(4):
        for i in range(5):
            k(f"s_add_u32 m0, s{s_t}, {j*20480+i*1024}")
            k(f"s_add_u32 s{s_t2}, s{s_t}, {j*20480+i*1024}")
            k.vmissue(f"buffer_load_dwordx4 v{v_dma}, s[{sKVs}:{sKVs+3}], s{s_t2} offen lds", f"st{j}")
    for b in range(2):
        k(f"v_mov_b32 v{KF+8*b+6}, 0x3f803f80")
        k(f"v_mov_b32 v{KF+8*b+7}, 0x00003f80")
    k(f"v_and_b32 v{t2}, 27, v{v_q}")
    k(f"v_cmp_eq_u32 vcc, 24, v{t2}")
    k(f"v_mov_b32 v{t3}, 0x3f803f80")
    k.nop(1)
    k(f"v_cndmask_b32 v{t3}, 0, v{t3}, vcc")
    for i in range(16):
        k(f"v_mov_b32 v{VF+i}, v{t3}")
    for i in range(32):
        k(f"v_mov_b32 v{OA+i}, 0")
    k.vmwait("q")
    k(f"v_cmp_eq_u32 vcc, 0, v{v_half}")
    k.nop(2)
    for Q2 in (QA2, QB2):
        k(f"v_cndmask_b32 v{Q2}, 0, v{Q2}, vcc")
        k(f"v_cndmask_b32 v{Q2+1}, 0, v{Q2+1}, vcc")
        k(f"v_mov_b32 v{Q2+2}, 0")
        k(f"v_mov_b32 v{Q2+3}, 0")
    mA, mB = MX + 4, MX + 5
    k(f"s_cmp_lg_u32 s{s_mode}, 0")
    k("s_cbranch_scc1 k2_truemax")
    k(f"v_max_f32 v{v_km}, v{MX}, v{MX+1}")
    for sh in (8, 4, 2, 1):
        k.nop(2)
        k(f"v_max_f32_dpp v{v_km}, v{v_km}, v{v_km} row_ror:{sh} row_mask:0xf bank_mask:0xf")
    k(f"v_mov_b32 v{t0}, v{v_km}")
    k.nop(2)
    k(f"v_permlane16_swap_b32 v{v_km}, v{t0}")
    k.nop(2)
    k(f"v_max_f32 v{v_km}, v{v_km}, v{t0}")
    k(f"v_mov_b32 v{t0}, v{v_km}")
    k.nop(2)
    k(f"v_permlane32_swap_b32 v{v_km}, v{t0}")
    k.nop(2)
    k(f"v_max_f32 v{v_km}, v{v_km}, v{t0}")
    for (Q1, Q2, m) in ((QA1, QA2, mA), (QB1, QB2, mB)):
        k(f"v_mov_b32 v{m}, 0")
        for r in (Q1, Q1 + 1, Q1 + 2, Q1 + 3, Q2, Q2 + 1):
            k(f"v_dot2_f32_bf16 v{m}, v{r}, v{r}, v{m}")
        k.nop(3)
        xsum_halves(k, m, t0)
        k(f"v_mul_f32 v{m}, v{m}, v{v_km}")
        k(f"v_sqrt_f32 v{m}, v{m}")
        k.nop(1)
        k(f"v_mul_f32 v{m}, {hex(f2u(1.0 + 2**-6))}, v{m}")
    k("s_branch k2_havem")
    k.label("k2_truemax")
    k("s_waitcnt vmcnt(0)")
    k("s_barrier")
    k(f"v_mov_b32 v{mA}, 0xff800000")
    k(f"v_mov_b32 v{mB}, 0xff800000")
    k(f"v_mov_b32 v{t0}, v{v_dma}")
    k(f"v_lshlrev_b32 v{t1}, 3, v{v_q}")
    k(f"s_mov_b32 s{s_cnt}, 64")
    k.label("k2_maxloop")
    k(f"ds_read_b128 {vr(KF,4)}, v{t0}")
    k(f"ds_read_b64 {vr(KF+4,2)}, v{t1} offset:2304")
    k("s_waitcnt lgkmcnt(0)")
    k(f"v_mfma_f32_32x32x16_bf16 {vr(SA,16)}, {vr(KF,4)}, {vr(QA1,4)}, 0")
    k(f"v_mfma_f32_32x32x16_bf16 {vr(SA,16)}, {vr(KF+4,4)}, {vr(QA2,4)}, {vr(SA,16)}")
    k(f"v_mfma_f32_32x32x16_bf16 {vr(SB,16)}, {vr(KF,4)}, {vr(QB1,4)}, 0")
    k(f"v_mfma_f32_32x32x16_bf16 {vr(SB,16)}, {vr(KF+4,4)}, {vr(QB2,4)}, {vr(SB,16)}")
    k.nop(16)
    for i in range(8):
        k(f"v_max3_f32 v{mA}, v{SA+2*i}, v{SA+2*i+1}, v{mA}")
    for i in range(8):
        k(f"v_max3_f32 v{mB}, v{SB+2*i}, v{SB+2*i+1}, v{mB}")
    k(f"v_add_u32 v{t0}, 2560, v{t0}")
    k(f"v_add_u32 v{t1}, 2560, v{t1}")
    k(f"s_sub_u32 s{s_cnt}, s{s_cnt}, 1")
    k(f"s_cmp_lg_u32 s{s_cnt}, 0")
    k("s_cbranch_scc1 k2_maxloop")
    for m in (mA, mB):
        k(f"v_mov_b32 v{t0}, v{m}")
        k.nop(2)
        k(f"v_permlane32_swap_b32 v{m}, v{t0}")
        k.nop(2)
        k(f"v_max_f32 v{m}, v{m}, v{t0}")
    k.label("k2_havem")
    k(f"v_cmp_eq_u32 vcc, 0, v{v_half}")
    for (Q2, m) in ((QA2, mA), (QB2, mB)):
        k(f"v_sub_f32 v{t0}, 0, v{m}")
        k(f"v_and_b32 v{t1}, 0xffff0000, v{t0}")
        k(f"v_sub_f32 v{t0}, v{t0}, v{t1}")
        k(f"v_and_b32 v{t2}, 0xffff0000, v{t0}")
        k(f"v_sub_f32 v{t0}, v{t0}, v{t2}")
        k(f"v_lshrrev_b32 v{t1}, 16, v{t1}")
        k(f"v_or_b32 v{t1}, v{t1}, v{t2}")
        k(f"v_lshrrev_b32 v{t0}, 16, v{t0}")
        k(f"v_cndmask_b32 v{Q2+2}, 0, v{t1}, vcc")
        k(f"v_cndmask_b32 v{Q2+3}, 0, v{t0}, vcc")

    def rdK(buf, toff):
        k(f"ds_read_b128 {vr(KF+8*buf,4)}, v{v_k1} offset:{toff}")
        k(f"ds_read_b64 {vr(KF+8*buf+4,2)}, v{v_k2} offset:{toff+2304}")

    def rdV(buf, toff):
        k(f"s_mov_b64 exec, s[{s_vm}:{s_vm+1}]")
        k(f"ds_read_b128 {vr(VF+8*buf,4)}, v{v_v} offset:{toff+1024}")
        k(f"ds_read_b128 {vr(VF+8*buf+4,4)}, v{v_v} offset:{toff+1024+640}")
        k("s_mov_b64 exec, -1")

    def qk(S, Q1, Q2, buf):
        return [f"v_mfma_f32_32x32x16_bf16 {vr(S,16)}, {vr(KF+8*buf,4)}, {vr(Q1,4)}, 0",
                f"v_mfma_f32_32x32x16_bf16 {vr(S,16)}, {vr(KF+8*buf+4,4)}, {vr(Q2,4)}, {vr(S,16)}"]

    def pv(O, P, buf):
        return [f"v_mfma_f32_32x32x16_bf16 {vr(O,16)}, {vr(VF+8*buf,4)}, {vr(P,4)}, {vr(O,16)}",
                f"v_mfma_f32_32x32x16_bf16 {vr(O,16)}, {vr(VF+8*buf+4,4)}, {vr(P+4,4)}, {vr(O,16)}"]

    def phase(S, P, mf, pre=None):
        for gidx in range(4):
            if pre and gidx in pre:
                for f in pre[gidx]:
                    f()
            if mf[gidx]:
                k(mf[gidx])
            for i in range(4):
                r = S + 4 * gidx + i
                k(f"v_exp_f32 v{r}, v{r}")
            if gidx > 0:
                g0 = gidx - 1
                k(f"v_cvt_pk_bf16_f32 v{P+2*g0}, v{S+4*g0}, v{S+4*g0+1}")
                k(f"v_cvt_pk_bf16_f32 v{P+2*g0+1}, v{S+4*g0+2}, v{S+4*g0+3}")
        k(f"v_cvt_pk_bf16_f32 v{P+6}, v{S+12}, v{S+13}")
        k(f"v_cvt_pk_bf16_f32 v{P+7}, v{S+14}, v{S+15}")

    k.vmwait("st0")
    k("s_barrier")
    rdK(0, 0)
    rdV(0, 0)
    rdK(1, 2560)
    for i in range(8):
        k(f"v_mov_b32 v{PB+i}, 0")
    k("s_waitcnt lgkmcnt(0)")
    for m in qk(SA, QA1, QA2, 0):
        k(m)
    k.nop(16)
    k(f"s_mov_b32 s{s_cnt}, 0")
    k.label("k2_loop")
    lab = k.newlabel("nobar")
    k(f"s_and_b32 s{s_t}, s{s_cnt}, 3")
    k(f"s_cmp_eq_u32 s{s_t}, 3")
    k(f"s_cbranch_scc0 {lab}")
    k("s_waitcnt vmcnt(0)")
    k("s_barrier")
    k.label(lab)
    mf = qk(SB, QB1, QB2, 0) + pv(OB, PB, 1)
    phase(SA, PA, mf)
    mf = qk(SA, QA1, QA2, 1) + pv(OA, PA, 0)
    phase(SB, PB, mf, pre={0: [lambda: k("s_waitcnt lgkmcnt(0)"), lambda: rdK(0, 2 * 2560), lambda: rdV(1, 2560)]})
    mf = qk(SB, QB1, QB2, 1) + pv(OB, PB, 0)
    phase(SA, PA, mf)
    mf = qk(SA, QA1, QA2, 0) + pv(OA, PA, 1)
    phase(SB, PB, mf, pre={0: [lambda: k("s_waitcnt lgkmcnt(0)"), lambda: rdK(1, 3 * 2560), lambda: rdV(0, 2 * 2560)]})
    k(f"v_add_u32 v{v_k1}, 5120, v{v_k1}")
    k(f"v_add_u32 v{v_k2}, 5120, v{v_k2}")
    k(f"v_add_u32 v{v_v}, 5120, v{v_v}")
    k(f"s_add_u32 s{s_cnt}, s{s_cnt}, 1")
    k(f"s_cmp_lt_u32 s{s_cnt}, 16")
    k("s_cbranch_scc1 k2_loop")
    k.nop(2)
    for m in pv(OB, PB, 1):
        k(m)
    k("s_waitcnt lgkmcnt(0)")
    k(f"v_subrev_u32 v{v_k1}, 81920, v{v_k1}")
    k(f"v_subrev_u32 v{v_k2}, 81920, v{v_k2}")
    k(f"v_subrev_u32 v{v_v}, 81920, v{v_v}")
    k("s_barrier")
    k.nop(16)
    k(f"s_lshl_b32 s{s_t}, s{s_w}, 12")
    k(f"v_add_u32 v{t0}, s{s_t}, v{v_dma}")
    k(f"s_xor_b32 s{s_t}, s{s_t}, 0x4000")
    k(f"v_add_u32 v{t1}, s{s_t}, v{v_dma}")
    k(f"s_cmp_eq_u32 s{s_kh}, 0")
    k("s_cbranch_scc1 k2_send0")
    for i in range(4):
        k(f"ds_write_b128 v{t0}, {vr(OA+4*i,4)} offset:{i*1024}")
    k("s_waitcnt lgkmcnt(0)")
    for i in range(16):
        k(f"v_mov_b32 v{OA+i}, v{OB+i}")
    k("s_branch k2_sent")
    k.label("k2_send0")
    for i in range(4):
        k(f"ds_write_b128 v{t0}, {vr(OB+4*i,4)} offset:{i*1024}")
    k.label("k2_sent")
    k(f"v_mov_b32 v{t2}, 32768")
    k(f"v_mov_b32 v{t3}, 0")
    k(f"ds_write_b32 v{t2}, v{t3}")
    k("s_waitcnt lgkmcnt(0)")
    k("s_barrier")
    for i in range(4):
        k(f"ds_read_b128 {vr(OB+4*i,4)}, v{t1} offset:{i*1024}")
    k("s_waitcnt lgkmcnt(0)")
    for i in range(13):
        k(f"v_add_f32 v{OA+i}, v{OA+i}, v{OB+i}")
    k(f"s_cmp_lg_u32 s{s_mode}, 0")
    k("s_cbranch_scc1 k2_final")
    k(f"v_cmp_nle_f32 vcc, {hex(f2u(2.0**-64))}, v{OA+12}")
    k(f"s_mov_b64 s[{s_flag}:{s_flag+1}], vcc")
    k(f"v_cmp_nge_f32 vcc, {hex(f2u(2.0**64))}, v{OA+12}")
    k.nop(2)
    k(f"s_or_b64 vcc, vcc, s[{s_flag}:{s_flag+1}]")
    lab = k.newlabel("ok")
    k(f"s_cbranch_vccz {lab}")
    k(f"v_mov_b32 v{t3}, 1")
    k(f"ds_write_b32 v{t2}, v{t3}")
    k.label(lab)
    k("s_waitcnt lgkmcnt(0)")
    k("s_barrier")
    k(f"ds_read_b32 v{t3}, v{t2}")
    k("s_waitcnt lgkmcnt(0)")
    k(f"v_readfirstlane_b32 s{s_t}, v{t3}")
    k.nop(2)
    k(f"s_cmp_eq_u32 s{s_t}, 0")
    k("s_cbranch_scc1 k2_final")
    k(f"s_mov_b32 s{s_mode}, 1")
    k("s_barrier")
    k("s_branch k2_start")
    k.label("k2_final")
    k(f"v_rcp_f32 v{t3}, v{OA+12}")
    k.nop(1)
    for i in range(12):
        k(f"v_mul_f32 v{OA+i}, v{OA+i}, v{t3}")
    for i in range(6):
        k(f"v_cvt_pk_bf16_f32 v{PA+i}, v{OA+2*i}, v{OA+2*i+1}")
    k(f"s_lshl_b32 s{s_t}, s{s_tb}, 6")
    k(f"s_lshl_b32 s{s_t2}, s{s_kh}, 5")
    k(f"s_add_u32 s{s_t}, s{s_t}, s{s_t2}")
    k(f"v_add_u32 v{t0}, s{s_t}, v{v_q}")
    k(f"v_lshrrev_b32 v{t1}, 4, v{t0}")
    k(f"v_mul_u32_u24 v{t1}, {80*256}, v{t1}")
    k(f"v_and_b32 v{t0}, 15, v{t0}")
    k(f"v_lshl_add_u32 v{t1}, v{t0}, 4, v{t1}")
    k(f"s_mul_i32 s{s_t}, s{s_h}, 5")
    for i, dg in enumerate((0, 2, 4)):
        k(f"v_add_u32 v{t0}, s{s_t}, v{v_half}")
        k(f"v_add_u32 v{t0}, {dg}, v{t0}")
        k(f"v_lshrrev_b32 v{t2}, 1, v{t0}")
        k(f"v_lshl_add_u32 v{t2}, v{t2}, 8, v{t1}")
        k(f"v_and_b32 v{t0}, 1, v{t0}")
        k(f"v_lshl_add_u32 v{v_oa+i}, v{t0}, 3, v{t2}")
    k(f"v_cmp_eq_u32 vcc, 0, v{v_half}")
    k(f"v_mov_b32 v{t0}, 0x7ffffff8")
    k.nop(1)
    k(f"v_cndmask_b32 v{v_oa+2}, v{t0}, v{v_oa+2}, vcc")
    k(f"s_mov_b32 s{s_t}, {WS_O}")
    for i in range(3):
        k(f"buffer_store_dwordx2 {vr(PA+2*i,2)}, v{v_oa+i}, s[{sWS}:{sWS+3}], s{s_t} offen")
    k.label("k2_end")
    k("s_endpgm")
    return k.text(NV), "k2_kernel", (256, 512, 163840)


def gen_g16(name, Kdim, R):
    k = Kern(name + "_kernel")
    NCH = Kdim // 128
    sW, sWS, sX2, sB, sO = 16, 20, 24, 28, 44
    s_tb, s_cb, s_w, s_t, s_t2, s_off, s_xoff, s_l = 32, 33, 34, 35, 36, 37, 38, 39
    v_l, v_idx, v_g = 1, 2, 3
    v_x = 4
    v_w = 5
    v_a = 10
    t0, t1, t2, t3 = 12, 13, 14, 15
    v_ab = 16
    RES = 20
    BIA = 30
    AF = 40
    ACC = 80
    XB = 100
    NV = XB + R * 16
    k("s_cmp_ge_u32 s2, 256")
    k(f"s_cbranch_scc1 {name}_end")
    if name == "k3":
        k(f"s_load_dwordx2 s[4:5], s[0:1], {KA['wo']}")
        k(f"s_load_dwordx2 s[6:7], s[0:1], {KA['x']}")
    else:
        k(f"s_load_dwordx2 s[4:5], s[0:1], {KA['w2']}")
        k(f"s_load_dwordx4 s[8:11], s[0:1], {KA['b2']}")
    k(f"s_load_dwordx2 s[12:13], s[0:1], {KA['ws']}")
    wave_lane_setup(k, s_w, v_l)
    k(f"v_and_b32 v{v_idx}, 15, v{v_l}")
    k(f"v_lshrrev_b32 v{v_g}, 4, v{v_l}")
    k(f"s_and_b32 s{s_t}, s2, 7")
    k(f"s_lshr_b32 s{s_t2}, s2, 3")
    k(f"s_lshl_b32 s{s_tb}, s{s_t}, 2")
    k(f"s_and_b32 s{s_t}, s{s_t2}, 3")
    k(f"s_add_u32 s{s_tb}, s{s_tb}, s{s_t}")
    k(f"s_lshr_b32 s{s_cb}, s{s_t2}, 2")
    k(f"v_lshlrev_b32 v{v_x}, 4, v{v_l}")
    dma_offsets_160(k, v_w, v_l, 1280, t0, t1, t2)
    k(f"v_lshrrev_b32 v{t0}, 2, v{v_idx}")
    k(f"v_lshl_add_u32 v{t1}, v{v_g}, 2, v{t0}")
    k(f"v_mul_u32_u24 v{v_a}, 160, v{t1}")
    k(f"v_and_b32 v{t2}, 3, v{v_idx}")
    k(f"v_lshl_add_u32 v{v_a}, v{t2}, 3, v{v_a}")
    for i in range((R + 2) // 3):
        k(f"v_add_u32 v{v_ab+i}, {i*3*20480}, v{v_a}")
    for i in range(20):
        k(f"v_mov_b32 v{ACC+i}, 0")
    k(f"s_lshl_b32 s{s_t}, s{s_tb}, 2")
    k(f"s_add_u32 s{s_t}, s{s_t}, s{s_w}")
    k(f"s_mul_i32 s{s_xoff}, s{s_t}, {Kdim*32}")
    k(f"s_add_u32 s{s_xoff}, s{s_xoff}, {WS_O if name == 'k3' else WS_H1}")
    k(f"s_mul_i32 s{s_off}, s{s_cb}, 160")
    k(f"s_mul_i32 s{s_t}, s{s_w}, {32*1280}")
    k(f"s_add_u32 s{s_off}, s{s_off}, s{s_t}")
    k(f"s_mul_i32 s{s_l}, s{s_w}, 5120")
    k(f"s_lshl_b32 s{s_t}, s{s_tb}, 6")
    k(f"s_lshl_b32 s{s_t2}, s{s_w}, 4")
    k(f"s_add_u32 s{s_t}, s{s_t}, s{s_t2}")
    k(f"v_add_u32 v{t0}, s{s_t}, v{v_idx}")
    v_rm = 11
    k(f"v_mul_u32_u24 v{v_rm}, 1280, v{t0}")
    k(f"v_lshl_add_u32 v{v_rm}, v{v_g}, 3, v{v_rm}")
    v_h = t3
    k(f"v_lshrrev_b32 v{t1}, 5, v{t0}")
    k(f"v_mul_u32_u24 v{v_h}, {640*64}, v{t1}")
    k(f"v_and_b32 v{t1}, 31, v{t0}")
    k(f"v_lshl_add_u32 v{v_h}, v{t1}, 4, v{v_h}")
    k(f"v_lshrrev_b32 v{t1}, 1, v{v_g}")
    k(f"v_lshl_add_u32 v{v_h}, v{t1}, 9, v{v_h}")
    k(f"v_and_b32 v{t1}, 1, v{v_g}")
    k(f"v_lshl_add_u32 v{v_h}, v{t1}, 3, v{v_h}")
    s_hoff = 40
    k(f"s_mul_i32 s{s_hoff}, s{s_cb}, 5120")
    k(f"s_add_u32 s{s_hoff}, s{s_hoff}, {WS_H}")
    s_rmoff = 41
    k(f"s_mul_i32 s{s_rmoff}, s{s_cb}, 160")
    k("s_waitcnt lgkmcnt(0)")
    k.srd(sW, 4, Kdim * 1280)
    k.srd(sWS, 12, WS_SIZE)
    if name == "k3":
        k.srd(sX2, 6, 2048 * 1280)
    else:
        k.srd(sB, 8, 1280)
        k.srd(sO, 10, 2048 * 1280)

    def issue_chunk(c):
        slot = c % R
        for i in range(5):
            k(f"s_add_u32 m0, s{s_l}, {slot*20480 + i*1024}")
            k.nop(1)
            k.vmissue(f"buffer_load_dwordx4 v{v_w+i}, s[{sW}:{sW+3}], s{s_off} offen lds", f"c{c}")
        for i in range(4):
            k.vmissue(f"buffer_load_dwordx4 {vr(XB+slot*16+4*i,4)}, v{v_x}, s[{sWS}:{sWS+3}], s{s_xoff} offen offset:{i*1024}", f"c{c}")
        k(f"s_add_u32 s{s_off}, s{s_off}, {128*1280}")
        k(f"s_add_u32 s{s_xoff}, s{s_xoff}, 4096")

    def issue_epi():
        if name == "k3":
            for t in range(5):
                k.vmissue(f"buffer_load_dwordx2 {vr(RES+2*t,2)}, v{v_rm}, s[{sX2}:{sX2+3}], s{s_rmoff} offen offset:{t*32}", "epi")
        else:
            for t in range(5):
                k.vmissue(f"buffer_load_dwordx2 {vr(RES+2*t,2)}, v{v_h}, s[{sWS}:{sWS+3}], s{s_hoff} offen offset:{(t*1024)%4096}" if t < 4 else
                          f"buffer_load_dwordx2 {vr(RES+2*t,2)}, v{t2}, s[{sWS}:{sWS+3}], s{s_hoff} offen", "epi")
            for t in range(5):
                k.vmissue(f"buffer_load_dwordx2 {vr(BIA+2*t,2)}, v{t1}, s[{sB}:{sB+3}], s{s_rmoff} offen offset:{t*32}", "epi")
    k(f"v_add_u32 v{t2}, 4096, v{v_h}")
    k(f"v_lshlrev_b32 v{t1}, 3, v{v_g}")
    npre = min(R, NCH)
    for c in range(npre):
        issue_chunk(c)
    if npre == NCH:
        issue_epi()

    def reads(c, i, buf):
        slot = c % R
        base = v_ab + slot // 3
        for t in range(5):
            for j in range(2):
                off = (slot % 3) * 20480 + i * 5120 + j * 2560 + t * 32
                k(f"ds_read_b64_tr_b16 {vr(AF+buf*20+4*t+2*j,2)}, v{base} offset:{off}")
    for c in range(NCH):
        k.vmwait(f"c{c}")
        k("s_barrier")
        reads(c, 0, 0)
        if c >= 1 and c - 1 + R < NCH:
            issue_chunk(c - 1 + R)
            if c - 1 + R == NCH - 1:
                issue_epi()
        for i in range(4):
            buf = i & 1
            k("s_waitcnt lgkmcnt(0)")
            if i < 3:
                reads(c, i + 1, buf ^ 1)
            X = XB + (c % R) * 16 + 4 * i
            for t in range(5):
                k(f"v_mfma_f32_16x16x32_bf16 {vr(ACC+4*t,4)}, {vr(AF+buf*20+4*t,4)}, {vr(X,4)}, {vr(ACC+4*t,4)}")
    k.vmwait("epi")
    k.nop(8)
    T = AF
    for t in range(5):
        a = ACC + 4 * t
        k(f"v_cvt_pk_bf16_f32 v{T}, v{a}, v{a+1}")
        k(f"v_cvt_pk_bf16_f32 v{T+1}, v{a+2}, v{a+3}")
        k(f"v_lshlrev_b32 v{a}, 16, v{T}")
        k(f"v_and_b32 v{a+1}, 0xffff0000, v{T}")
        k(f"v_lshlrev_b32 v{a+2}, 16, v{T+1}")
        k(f"v_and_b32 v{a+3}, 0xffff0000, v{T+1}")
        if name == "k5":
            k(f"v_lshlrev_b32 v{T+2}, 16, v{BIA+2*t}")
            k(f"v_and_b32 v{T+3}, 0xffff0000, v{BIA+2*t}")
            k(f"v_lshlrev_b32 v{T+4}, 16, v{BIA+2*t+1}")
            k(f"v_and_b32 v{T+5}, 0xffff0000, v{BIA+2*t+1}")
            for r in range(4):
                k(f"v_add_f32 v{a+r}, v{a+r}, v{T+2+r}")
            k(f"v_cvt_pk_bf16_f32 v{T}, v{a}, v{a+1}")
            k(f"v_cvt_pk_bf16_f32 v{T+1}, v{a+2}, v{a+3}")
            k(f"v_lshlrev_b32 v{a}, 16, v{T}")
            k(f"v_and_b32 v{a+1}, 0xffff0000, v{T}")
            k(f"v_lshlrev_b32 v{a+2}, 16, v{T+1}")
            k(f"v_and_b32 v{a+3}, 0xffff0000, v{T+1}")
        k(f"v_lshlrev_b32 v{T+2}, 16, v{RES+2*t}")
        k(f"v_and_b32 v{T+3}, 0xffff0000, v{RES+2*t}")
        k(f"v_lshlrev_b32 v{T+4}, 16, v{RES+2*t+1}")
        k(f"v_and_b32 v{T+5}, 0xffff0000, v{RES+2*t+1}")
        for r in range(4):
            k(f"v_add_f32 v{a+r}, v{a+r}, v{T+2+r}")
        k(f"v_cvt_pk_bf16_f32 v{T+8+2*t}, v{a}, v{a+1}")
        k(f"v_cvt_pk_bf16_f32 v{T+9+2*t}, v{a+2}, v{a+3}")
        if name == "k3":
            if t < 4:
                k(f"buffer_store_dwordx2 {vr(T+8+2*t,2)}, v{v_h}, s[{sWS}:{sWS+3}], s{s_hoff} offen offset:{t*1024}")
            else:
                k(f"buffer_store_dwordx2 {vr(T+8+2*t,2)}, v{t2}, s[{sWS}:{sWS+3}], s{s_hoff} offen")
        else:
            k(f"buffer_store_dwordx2 {vr(T+8+2*t,2)}, v{v_rm}, s[{sO}:{sO+3}], s{s_rmoff} offen offset:{t*32}")
    k.label(f"{name}_end")
    k("s_endpgm")
    return k.text(NV), name + "_kernel", (256, 256, min(R, NCH) * 20480)


def gen_k4():
    k = Kern("k4_kernel")
    LDS_SCR = 122880
    sW, sWS, sB = 16, 20, 24
    s_tb, s_cb, s_w, s_t, s_t2, s_off, s_xoff, s_l = 32, 33, 34, 35, 36, 37, 38, 39
    s_ones = 40
    v_l, v_q, v_half = 1, 2, 3
    v_x = 4
    v_w = 5
    v_a, v_a2 = 11, 12
    t0, t1, t2, t3 = 13, 14, 15, 16
    v_sum, v_sq = 18, 20
    v_ones = 24
    AF = 28
    BIA = 52
    E = 76
    XB = 96
    NV = 256
    k("s_cmp_ge_u32 s2, 256")
    k("s_cbranch_scc1 k4_end")
    k(f"s_load_dwordx4 s[4:7], s[0:1], {KA['w1']}")
    k(f"s_load_dwordx2 s[12:13], s[0:1], {KA['ws']}")
    wave_lane_setup(k, s_w, v_l)
    k(f"v_and_b32 v{v_q}, 31, v{v_l}")
    k(f"v_lshrrev_b32 v{v_half}, 5, v{v_l}")
    k(f"s_and_b32 s{s_t}, s2, 7")
    k(f"s_lshr_b32 s{s_t2}, s2, 3")
    k(f"s_lshr_b32 s{s_tb}, s{s_t}, 1")
    k(f"s_lshl_b32 s{s_tb}, s{s_tb}, 2")
    k(f"s_and_b32 s{s_cb}, s{s_t2}, 3")
    k(f"s_add_u32 s{s_tb}, s{s_tb}, s{s_cb}")
    k(f"s_and_b32 s{s_cb}, s{s_t}, 1")
    k(f"s_lshl_b32 s{s_cb}, s{s_cb}, 3")
    k(f"s_lshr_b32 s{s_t2}, s{s_t2}, 2")
    k(f"s_add_u32 s{s_cb}, s{s_cb}, s{s_t2}")
    k(f"v_lshlrev_b32 v{v_x}, 4, v{v_l}")
    for i in range(6):
        k(f"v_add_u32 v{t0}, {i*64}, v{v_l}")
        k(f"v_mul_u32_u24 v{t1}, 5462, v{t0}")
        k(f"v_lshrrev_b32 v{t1}, 16, v{t1}")
        k(f"v_mul_u32_u24 v{t2}, 12, v{t1}")
        k(f"v_sub_u32 v{t0}, v{t0}, v{t2}")
        k(f"v_lshlrev_b32 v{t0}, 4, v{t0}")
        k(f"v_mul_u32_u24 v{t2}, 3072, v{t1}")
        k(f"v_add_u32 v{v_w+i}, v{t2}, v{t0}")
    k(f"v_bfe_u32 v{t0}, v{v_l}, 2, 2")
    k(f"v_lshl_add_u32 v{t0}, v{v_half}, 3, v{t0}")
    k(f"v_mul_u32_u24 v{v_a}, 192, v{t0}")
    k(f"v_bfe_u32 v{t0}, v{v_l}, 4, 1")
    k(f"v_lshl_add_u32 v{v_a}, v{t0}, 5, v{v_a}")
    k(f"v_and_b32 v{t0}, 3, v{v_l}")
    k(f"v_lshl_add_u32 v{v_a}, v{t0}, 3, v{v_a}")
    k(f"v_add_u32 v{v_a2}, {20*3072}, v{v_a}")
    k(f"s_mov_b32 s{s_ones}, 0x3f803f80")
    for i in range(4):
        k(f"v_mov_b32 v{v_ones+i}, s{s_ones}")
    for i in range(4):
        k(f"v_mov_b32 v{v_sum+i}, 0")
    for i in range(96):
        k(f"v_accvgpr_write_b32 a{i}, 0")
    k(f"s_lshl_b32 s{s_t}, s{s_tb}, 2")
    k(f"s_add_u32 s{s_t}, s{s_t}, s{s_w}")
    k(f"s_mul_i32 s{s_xoff}, s{s_t}, {640*64}")
    k(f"s_add_u32 s{s_xoff}, s{s_xoff}, {WS_H}")
    k(f"s_mul_i32 s{s_off}, s{s_cb}, 192")
    k(f"s_mul_i32 s{s_t}, s{s_w}, {32*3072}")
    k(f"s_add_u32 s{s_off}, s{s_off}, s{s_t}")
    k(f"s_mul_i32 s{s_l}, s{s_w}, 6144")
    k("s_waitcnt lgkmcnt(0)")
    k.srd(sW, 4, 640 * 3072)
    k.srd(sB, 6, 3072)
    k.srd(sWS, 12, WS_SIZE)

    def issue_chunk(c):
        for i in range(6):
            k(f"s_add_u32 m0, s{s_l}, {c*24576 + i*1024}")
            k.nop(1)
            k.vmissue(f"buffer_load_dwordx4 v{v_w+i}, s[{sW}:{sW+3}], s{s_off} offen lds", f"c{c}")
        for i in range(8):
            if i == 4:
                k(f"s_add_u32 s{s_xoff}, s{s_xoff}, 4096")
            k.vmissue(f"buffer_load_dwordx4 {vr(XB+(c*8+i)*4,4)}, v{v_x}, s[{sWS}:{sWS+3}], s{s_xoff} offen offset:{(i%4)*1024}", f"c{c}")
        k(f"s_add_u32 s{s_off}, s{s_off}, {128*3072}")
        k(f"s_add_u32 s{s_xoff}, s{s_xoff}, 4096")
    for c in range(4):
        issue_chunk(c)

    def reads(s, buf):
        base = v_a if s < 20 else v_a2
        for t in range(3):
            for j in range(2):
                off = (s % 20) * 3072 + j * 768 + t * 64
                k(f"ds_read_b64_tr_b16 {vr(AF+buf*12+4*t+2*j,2)}, v{base} offset:{off}")
    for c in range(5):
        k.vmwait(f"c{c}")
        k("s_barrier")
        reads(8 * c, 0)
        if c == 0:
            issue_chunk(4)
        if c == 1:
            k(f"v_lshlrev_b32 v{t3}, 3, v{v_half}")
            k(f"s_mul_i32 s{s_t}, s{s_cb}, 192")
            for t in range(3):
                for q in range(4):
                    k.vmissue(f"buffer_load_dwordx2 {vr(BIA+(t*4+q)*2,2)}, v{t3}, s[{sB}:{sB+3}], s{s_t} offen offset:{t*64+q*16}", "epi")
        for i in range(8):
            s = 8 * c + i
            buf = i & 1
            k("s_waitcnt lgkmcnt(0)")
            if i < 7:
                reads(s + 1, buf ^ 1)
            X = XB + 4 * s
            for t in range(3):
                k(f"v_mfma_f32_32x32x16_bf16 {ar(16*t,16)}, {vr(AF+buf*12+4*t,4)}, {vr(X,4)}, {ar(16*t,16)}")
                for r in ((0, 1), (2,), (3,))[t]:
                    k(f"v_dot2_f32_bf16 v{v_sum+(r&1)}, v{X+r}, v{v_ones}, v{v_sum+(r&1)}")
                    k(f"v_dot2_f32_bf16 v{v_sq+(r&1)}, v{X+r}, v{X+r}, v{v_sq+(r&1)}")
            lab = k.newlabel("cs")
            k(f"s_cmp_eq_u32 s{s_w}, {i&3}")
            k(f"s_cbranch_scc0 {lab}")
            for t in range(3):
                k(f"v_mfma_f32_32x32x16_bf16 {ar(48+16*t,16)}, {vr(AF+buf*12+4*t,4)}, {vr(v_ones,4)}, {ar(48+16*t,16)}")
            k.label(lab)
    k.nop(16)
    v_mean, v_rstd = E, E + 1
    k(f"v_add_f32 v{v_sum}, v{v_sum}, v{v_sum+1}")
    k(f"v_add_f32 v{v_sq}, v{v_sq}, v{v_sq+1}")
    xsum_halves(k, v_sum, t0)
    xsum_halves(k, v_sq, t0)
    ln_stats(k, v_sum, v_sq, v_mean, v_rstd, t0, t1)
    k(f"s_mul_i32 s{s_t}, s{s_w}, 384")
    k(f"s_add_u32 s{s_t}, s{s_t}, {LDS_SCR}")
    k(f"v_lshlrev_b32 v{t0}, 4, v{v_half}")
    k(f"v_add_u32 v{t1}, s{s_t}, v{t0}")
    for t in range(3):
        for q in range(4):
            k(f"ds_write_b128 v{t1}, {ar(48+16*t+4*q,4)} offset:{t*128+q*32}")
    k("s_waitcnt lgkmcnt(0)")
    k("s_barrier")
    k(f"v_add_u32 v{t0}, {LDS_SCR}, v{t0}")
    k(f"s_lshl_b32 s{s_t}, s{s_tb}, 7")
    k(f"s_lshl_b32 s{s_t2}, s{s_w}, 5")
    k(f"s_add_u32 s{s_t}, s{s_t}, s{s_t2}")
    k(f"v_add_u32 v{t1}, s{s_t}, v{v_q}")
    k(f"v_lshrrev_b32 v{t2}, 4, v{t1}")
    k(f"v_mul_u32_u24 v{t2}, {1536*32}, v{t2}")
    k(f"v_and_b32 v{t1}, 15, v{t1}")
    k(f"v_lshl_add_u32 v{t2}, v{t1}, 4, v{t2}")
    k(f"v_lshl_add_u32 v{t2}, v{v_half}, 3, v{t2}")
    k(f"s_mul_i32 s{s_t}, s{s_cb}, {12*256}")
    k(f"s_add_u32 s{s_t}, s{s_t}, {WS_H1}")
    k.vmwait("epi")
    for t in range(3):
        for q in range(4):
            for w in range(4 if q < 3 else 3):
                k(f"ds_read_b128 {vr(XB+(q*4+w)*4,4)}, v{t0} offset:{w*384+t*128+q*32}")
        k("s_waitcnt lgkmcnt(0)")
        k(f"ds_read_b128 {vr(XB+(3*4+3)*4,4)}, v{t0} offset:{3*384+t*128+3*32}")
        k("s_waitcnt lgkmcnt(0)")
        for q in range(4):
            Z = XB + 64 + q * 4
            Bq = XB + 80
            for r in range(4):
                b = XB + q * 16 + r
                k(f"v_add_f32 v{b}, v{b}, v{b+4}")
                k(f"v_add_f32 v{b+8}, v{b+8}, v{b+12}")
                k(f"v_add_f32 v{b}, v{b}, v{b+8}")
                k(f"v_accvgpr_read_b32 v{Z+r}, a{16*t+4*q+r}")
            bi = BIA + (t * 4 + q) * 2
            k(f"v_lshlrev_b32 v{Bq}, 16, v{bi}")
            k(f"v_and_b32 v{Bq+1}, 0xffff0000, v{bi}")
            k(f"v_lshlrev_b32 v{Bq+2}, 16, v{bi+1}")
            k(f"v_and_b32 v{Bq+3}, 0xffff0000, v{bi+1}")
            for r in range(4):
                b = XB + q * 16 + r
                k(f"v_fma_f32 v{Z+r}, -v{v_mean}, v{b}, v{Z+r}")
                k(f"v_fma_f32 v{Z+r}, v{Z+r}, v{v_rstd}, v{Bq+r}")
                k(f"v_max_f32 v{Z+r}, 0, v{Z+r}")
                k(f"v_mul_f32 v{Z+r}, v{Z+r}, v{Z+r}")
            O2 = XB + 96 + (t * 4 + q) * 2
            k(f"v_cvt_pk_bf16_f32 v{O2}, v{Z}, v{Z+1}")
            k(f"v_cvt_pk_bf16_f32 v{O2+1}, v{Z+2}, v{Z+3}")
            k(f"buffer_store_dwordx2 {vr(O2,2)}, v{t2}, s[{sWS}:{sWS+3}], s{s_t} offen offset:{(4*t+q)*256}")
    k.label("k4_end")
    k("s_endpgm")
    return k.text(NV, na=96), "k4_kernel", (256, 256, LDS_SCR + 1536)


def main(outpath):
    ks = [gen_k1(), gen_k2(), gen_g16("k3", 640, 5), gen_k4(), gen_g16("k5", 1536, 7)]
    hdr = open("cdna_kernels/" + NAME + ".s.ref").read().split("\n")
    head = [l for l in hdr if l.startswith(";") and "@launch" not in l and "Override" not in l and "grid=ceil" not in l]
    s = "\n".join(head) + "\n"
    for (_, name, (g, b, lds)) in ks:
        s += f"; @launch kernel={name} grid=({g},1,1) block=({b},1,1) lds={lds}\n"
    s += '.amdgcn_target "amdgcn-amd-amdhsa--gfx950"\n.text\n'
    for ((txt, kd), _, _) in ks:
        s += txt
    s += '.section .rodata,"a"\n'
    for ((txt, kd), _, _) in ks:
        s += kd
    open(outpath, "w").write(s)


if __name__ == "__main__":
    main(sys.argv[1] if len(sys.argv) > 1 else "cdna_kernels/" + NAME + ".s")
```

```python
import sys
def kernel(name, body, iters=200, nv=128):
    s = f"""; @launch grid=(1,1,1) block=(1024,1,1) lds=0
.amdgcn_target "amdgcn-amd-amdhsa--gfx950"
.text
.globl {name}
.p2align 8
.type {name},@function
{name}:
    s_load_dwordx2 s[4:5], s[0:1], 0
    s_waitcnt lgkmcnt(0)
    s_mov_b32 s8, s4
    s_mov_b32 s9, s5
    s_mov_b32 s10, 16384
    s_mov_b32 s11, 0x00020000
    v_lshrrev_b32 v1, 6, v0
    s_nop 1
    v_readfirstlane_b32 s12, v1
"""
    for i in range(2, nv):
        s += f"    v_mov_b32 v{i}, 0.5\n"
    s += f"""
    s_barrier
    s_mov_b32 s20, {iters}
    s_memtime s[16:17]
    s_waitcnt lgkmcnt(0)
L_loop:
{body}
    s_sub_u32 s20, s20, 1
    s_cmp_lg_u32 s20, 0
    s_cbranch_scc1 L_loop
    s_nop 15
    s_nop 15
    s_memtime s[18:19]
    s_waitcnt lgkmcnt(0)
    s_sub_u32 s18, s18, s16
    s_lshl_b32 s13, s2, 4
    s_add_u32 s12, s12, s13
    s_lshl_b32 s12, s12, 2
    v_mov_b32 v1, s12
    v_mov_b32 v2, s18
    buffer_store_dword v2, v1, s[8:11], 0 offen
    s_waitcnt vmcnt(0)
    s_endpgm
.section .rodata,"a"
.p2align 6
.amdhsa_kernel {name}
  .amdhsa_next_free_vgpr {nv}
  .amdhsa_next_free_sgpr 32
  .amdhsa_accum_offset {nv}
  .amdhsa_group_segment_fixed_size 0
  .amdhsa_kernarg_size 16
  .amdhsa_user_sgpr_count 2
  .amdhsa_user_sgpr_kernarg_segment_ptr 1
  .amdhsa_system_sgpr_workgroup_id_x 1
.end_amdhsa_kernel
"""
    return s

bodies = {}
bodies["exp16"] = "\n".join(f"    v_exp_f32 v{16+i}, v{32+i}" for i in range(16))
bodies["add16"] = "\n".join(f"    v_add_f32 v{16+i}, v{32+i}, v{48+i}" for i in range(16))
bodies["fma16"] = "\n".join(f"    v_fma_f32 v{16+i}, v{32+i}, v{48+i}, v{64+i}" for i in range(16))
bodies["pkfma16"] = "\n".join(f"    v_pk_fma_f32 v[{16+2*i}:{17+2*i}], v[{48+2*i}:{49+2*i}], v[{80+2*i}:{81+2*i}], v[{80+2*i}:{81+2*i}]" for i in range(16))
bodies["cvt16"] = "\n".join(f"    v_cvt_pk_bf16_f32 v{16+i}, v{32+i}, v{48+i}" for i in range(16))
bodies["max316"] = "\n".join(f"    v_max3_f32 v{16+i}, v{32+i}, v{48+i}, v{64+i}" for i in range(16))
bodies["perm16"] = "\n".join(f"    v_perm_b32 v{16+i}, v{32+i}, v{48+i}, v{64+i}" for i in range(16))
bodies["exp16add16"] = "\n".join(f"    v_exp_f32 v{16+i}, v{32+i}\n    v_add_f32 v{64+i}, v{80+i}, v{96+i}" for i in range(16))
bodies["exp16add32"] = "\n".join(f"    v_exp_f32 v{16+i}, v{32+i}\n    v_add_f32 v{64+i}, v{80+i}, v{96+i}\n    v_add_f32 v{48+i}, v{80+i}, v{96+i}" for i in range(16))
def attn(nexp=16, ncvt=8, nmfma=4, extra=0):
    L = []
    mf = [f"    v_mfma_f32_32x32x16_bf16 v[64:79], v[2:5], v[6:9], v[64:79]",
          f"    v_mfma_f32_32x32x16_bf16 v[80:95], v[2:5], v[6:9], v[80:95]",
          f"    v_mfma_f32_32x32x16_bf16 v[96:111], v[2:5], v[6:9], v[96:111]",
          f"    v_mfma_f32_32x32x16_bf16 v[112:127], v[2:5], v[6:9], v[112:127]"]
    for q in range(4):
        if q < nmfma: L.append(mf[q])
        for i in range(nexp//4):
            L.append(f"    v_exp_f32 v{16+q*4+i}, v{32+q*4+i}")
        for i in range(ncvt//4):
            L.append(f"    v_cvt_pk_bf16_f32 v{48+q*2+i}, v{10+i}, v{12+i}")
        for i in range(extra//4):
            L.append(f"    v_max3_f32 v{56+q*2+i}, v{10+i}, v{12+i}, v{14}")
    return "\n".join(L)
bodies["max16"] = "\n".join(f"    v_max_f32 v{16+i}, v{32+i}, v{48+i}" for i in range(16))
bodies["mul16"] = "\n".join(f"    v_mul_f32 v{16+i}, v{32+i}, v{48+i}" for i in range(16))
bodies["and16"] = "\n".join(f"    v_and_b32 v{16+i}, v{32+i}, v{48+i}" for i in range(16))
bodies["andor16"] = "\n".join(f"    v_and_or_b32 v{16+i}, v{32+i}, v{48+i}, v{64+i}" for i in range(16))
bodies["lshladd16"] = "\n".join(f"    v_lshl_add_u32 v{16+i}, v{32+i}, 23, v{64+i}" for i in range(16))
bodies["lshlor16"] = "\n".join(f"    v_lshl_or_b32 v{16+i}, v{32+i}, 16, v{64+i}" for i in range(16))
bodies["addu16"] = "\n".join(f"    v_add_u32 v{16+i}, v{32+i}, v{64+i}" for i in range(16))
bodies["mov16"] = "\n".join(f"    v_mov_b32 v{16+i}, v{32+i}" for i in range(16))
bodies["pkadd16"] = "\n".join(f"    v_pk_add_f32 v[{16+2*i}:{17+2*i}], v[{48+2*i}:{49+2*i}], v[{80+2*i}:{81+2*i}]" for i in range(16))
bodies["pkmul16"] = "\n".join(f"    v_pk_mul_f32 v[{16+2*i}:{17+2*i}], v[{48+2*i}:{49+2*i}], v[{80+2*i}:{81+2*i}]" for i in range(16))
bodies["fmac16"] = "\n".join(f"    v_fmac_f32 v{16+i}, v{32+i}, v{48+i}" for i in range(16))
bodies["fmaak16"] = "\n".join(f"    v_fmaak_f32 v{16+i}, v{32+i}, v{48+i}, 0x3f000000" for i in range(16))
bodies["fmas16"] = "\n".join(f"    v_fma_f32 v{16+i}, v{32+i}, s4, v{64+i}" for i in range(16))
bodies["exph16"] = "\n".join(f"    v_exp_f16 v{16+i}, v{32+i}" for i in range(16))
bodies["ldexp16"] = "\n".join(f"    v_ldexp_f32 v{16+i}, v{32+i}, v{48+i}" for i in range(16))
bodies["cvtf16_16"] = "\n".join(f"    v_cvt_pkrtz_f16_f32 v{16+i}, v{32+i}, v{48+i}" for i in range(16))
bodies["pkfmah16"] = "\n".join(f"    v_pk_fma_f16 v{16+i}, v{32+i}, v{48+i}, v{64+i}" for i in range(16))
bodies["movsdwa16"] = "\n".join(f"    v_mov_b32_sdwa v{16+i}, v{32+i} dst_sel:WORD_1 dst_unused:UNUSED_PRESERVE src0_sel:WORD_1" for i in range(16))
bodies["alignbit16"] = "\n".join(f"    v_alignbit_b32 v{16+i}, v{32+i}, v{48+i}, 16" for i in range(16))
bodies["bfi16"] = "\n".join(f"    v_bfi_b32 v{16+i}, v{32+i}, v{48+i}, v{64+i}" for i in range(16))
bodies["exp16fma16"] = "\n".join(f"    v_exp_f32 v{16+i}, v{32+i}\n    v_fma_f32 v{64+i}, v{80+i}, v{96+i}, v{112+i}" for i in range(16))
bodies["exp16cvt16"] = "\n".join(f"    v_exp_f32 v{16+i}, v{32+i}\n    v_cvt_pk_bf16_f32 v{64+i}, v{80+i}, v{96+i}" for i in range(16))
bodies["attn"] = attn()
bodies["attn_nomfma"] = attn(nmfma=0)
bodies["attn_mfmaonly"] = attn(nexp=0, ncvt=0)
bodies["attn_max"] = attn(extra=8)
bodies["attn_noexp"] = attn(nexp=0)
for k, b in bodies.items():
    open(f"mb_{k}.s", "w").write(kernel(f"mb_{k}_kernel", "\n".join([b]*8), iters=100))
print(" ".join(bodies.keys()))
```

```python
import sys
sys.path.insert(0, "work")
import gen_mb1
from gen_mb1 import kernel
B = {}
B["dot_indep"] = "\n".join(f"    v_dot2_f32_bf16 v{16+i}, v{32+i}, v{48+i}, v{16+i}" for i in range(16))
B["dot_2acc"] = "\n".join(f"    v_dot2_f32_bf16 v{16+(i&1)}, v{32+i}, v{48+i}, v{16+(i&1)}" for i in range(16))
B["dot_4acc"] = "\n".join(f"    v_dot2_f32_bf16 v{16+(i&3)}, v{32+i}, v{48+i}, v{16+(i&3)}" for i in range(16))
B["dotc_4acc"] = "\n".join(f"    v_dot2c_f32_bf16 v{16+(i&3)}, v{32+i}, v{48+i}" for i in range(16))
def mixed(op, n, m32=True):
    L = []
    for q in range(4):
        if m32: L.append(f"    v_mfma_f32_32x32x16_bf16 v[{64+16*q}:{79+16*q}], v[2:5], v[6:9], v[{64+16*q}:{79+16*q}]")
        else: L.append(f"    v_mfma_f32_16x16x32_bf16 v[{64+4*q}:{67+4*q}], v[2:5], v[6:9], v[{64+4*q}:{67+4*q}]")
        for i in range(n):
            j = q*n + i
            if op == "dot": L.append(f"    v_dot2_f32_bf16 v{16+(j&3)}, v{32+j%16}, v{48+j%16}, v{16+(j&3)}")
            elif op == "dotc": L.append(f"    v_dot2c_f32_bf16 v{16+(j&3)}, v{32+j%16}, v{48+j%16}")
            else: L.append(f"    v_fma_f32 v{16+(j&3)}, v{32+j%16}, v{48+j%16}, v{16+(j&3)}")
    return "\n".join(L)
B["m32_dot2"] = mixed("dot", 2)
B["m32_dot4"] = mixed("dot", 4)
B["m32_dotc2"] = mixed("dotc", 2)
B["m32_fma2"] = mixed("fma", 2)
B["m32_fma4"] = mixed("fma", 4)
B["m16_dot2"] = mixed("dot", 2, False)
B["m16_fma2"] = mixed("fma", 2, False)
B["m16_only"] = mixed("fma", 0, False)
for k, b in B.items():
    open(f"mb_{k}.s", "w").write(kernel(f"mb_{k}_kernel", "\n".join([b]*8), iters=100))
print(" ".join(B.keys()))
```

```python
import sys, struct

NAME = "sequential_preLN__grouped_kv_mqa__dense_activation_squared_relu__prompt"

KA = dict(x=0, wq=8, wk=16, wv=24, wo=32, bx=40, w1=48, b1=56, w2=64, b2=72, out=80, dbg=88, ws=96)
WS_Q = 0x000000
WS_KV = 0x300000
WS_KMAX = 0x340000
WS_O = 0x400000
WS_H = 0x700000
WS_H1 = 0xA00000
WS_SIZE = 0x1200000

def f2u(f):
    return struct.unpack("<I", struct.pack("<f", f))[0]

import os
STAMP = int(os.environ.get("STAMP", "0"))
STAMP_WG = int(os.environ.get("STAMP_WG", "0"))
STAMP_WAVE = int(os.environ.get("STAMP_WAVE", "0"))
K2VAR = os.environ.get("K2VAR", "")
QSCALE = (20 ** -0.5) * 1.4426950408889634


class Kern:
    def __init__(self, name):
        self.name = name
        self.L = []
        self.vm = []
        self.uid = 0

    def __call__(self, s):
        for line in s.strip().split("\n"):
            self.L.append("    " + line.strip())

    def label(self, l):
        self.L.append(f"{l}:")

    def newlabel(self, base="L"):
        self.uid += 1
        return f"{self.name}_{base}{self.uid}"

    def vmissue(self, s, tag):
        self(s)
        self.vm.append(tag)

    def vmwait(self, tags, extra=""):
        if not isinstance(tags, (list, tuple, set)):
            tags = [tags]
        last = -1
        for i, t in enumerate(self.vm):
            if t in tags:
                last = i
        n = len(self.vm) - 1 - last
        assert n <= 63, n
        self(f"s_waitcnt vmcnt({n}) {extra}".strip())
        self.vm = self.vm[last + 1:]

    def nop(self, n):
        while n > 0:
            k = min(n, 16)
            self(f"s_nop {k-1}")
            n -= k

    def srd(self, d, base, nbytes, off=0):
        if off:
            self(f"s_add_u32 s{d}, s{base}, {hex(off)}")
            self(f"s_addc_u32 s{d+1}, s{base+1}, 0")
        else:
            self(f"s_mov_b32 s{d}, s{base}")
            self(f"s_mov_b32 s{d+1}, s{base+1}")
        self(f"s_mov_b32 s{d+2}, {hex(nbytes)}")
        self(f"s_mov_b32 s{d+3}, 0x00020000")

    def stamp_init(self):
        if not STAMP: return
        self.nst = 0
        self(f"s_load_dwordx2 s[90:91], s[0:1], {KA['dbg']}")
        self("s_memrealtime s[92:93]")
        self.stamp()

    def stamp(self):
        if not STAMP: return
        assert self.nst < 14
        self(f"s_memtime s[{60+2*self.nst}:{61+2*self.nst}]")
        self.nst += 1

    def stamp_flush(self, s_w):
        if not STAMP: return
        self.stamp()
        self("s_memrealtime s[94:95]")
        self("s_waitcnt lgkmcnt(0) vmcnt(0)")
        lab = self.newlabel("st")
        self(f"s_cmp_lg_u32 s2, {STAMP_WG}")
        self(f"s_cbranch_scc1 {lab}")
        if STAMP == 1:
            self(f"s_cmp_lg_u32 s{s_w}, {STAMP_WAVE}")
            self(f"s_cbranch_scc1 {lab}")
        self("s_mov_b32 s96, s90")
        self("s_mov_b32 s97, s91")
        self("s_mov_b32 s98, 256")
        self("s_mov_b32 s99, 0x00020000")
        if STAMP == 1:
            for i in range(1, self.nst):
                self(f"s_sub_u32 s100, s{60+2*i}, s60")
                self(f"v_mov_b32 v1, s100")
                self(f"v_mov_b32 v2, {4*i}")
                self("buffer_store_dword v1, v2, s[96:99], 0 offen")
            self("s_sub_u32 s100, s94, s92")
            self("v_mov_b32 v1, s100")
            self("v_mov_b32 v2, 60")
            self("buffer_store_dword v1, v2, s[96:99], 0 offen")
        else:
            self(f"s_lshl_b32 s101, s{s_w}, 5")
            for i in range(1, min(self.nst, 8)):
                self(f"s_sub_u32 s100, s{60+2*i}, s60")
                self(f"v_mov_b32 v1, s100")
                self(f"v_mov_b32 v2, {4*(i-1)}")
                self("buffer_store_dword v1, v2, s[96:99], s101 offen")
            self("v_mov_b32 v1, s60")
            self("v_mov_b32 v2, 28")
            self("buffer_store_dword v1, v2, s[96:99], s101 offen")
        self.label(lab)

    def text(self, nv, na=0, ns=102):
        acc = (nv + 3) // 4 * 4
        tot = acc + na if na else nv
        s = f".globl {self.name}\n.p2align 8\n.type {self.name},@function\n{self.name}:\n"
        s += "\n".join(self.L) + "\n"
        kd = f""".p2align 6
.amdhsa_kernel {self.name}
  .amdhsa_next_free_vgpr {tot}
  .amdhsa_next_free_sgpr {ns}
  .amdhsa_accum_offset {acc}
  .amdhsa_group_segment_fixed_size 0
  .amdhsa_kernarg_size 104
  .amdhsa_user_sgpr_count 2
  .amdhsa_user_sgpr_kernarg_segment_ptr 1
  .amdhsa_system_sgpr_workgroup_id_x 1
.end_amdhsa_kernel
"""
        return s, kd


def vr(a, n):
    return f"v[{a}:{a+n-1}]" if n > 1 else f"v{a}"


def ar(a, n):
    return f"a[{a}:{a+n-1}]" if n > 1 else f"a{a}"


def bf16r(k, dst, src):
    k(f"v_cvt_pk_bf16_f32 v{dst}, v{src}, v{src}")
    k(f"v_lshlrev_b32 v{dst}, 16, v{dst}")


def xsum_rows(k, v, t):
    k(f"v_mov_b32 v{t}, v{v}")
    k.nop(2)
    k(f"v_permlane16_swap_b32 v{v}, v{t}")
    k.nop(2)
    k(f"v_add_f32 v{v}, v{v}, v{t}")
    xsum_halves(k, v, t)


def xsum_halves(k, v, t):
    k(f"v_mov_b32 v{t}, v{v}")
    k.nop(2)
    k(f"v_permlane32_swap_b32 v{v}, v{t}")
    k.nop(2)
    k(f"v_add_f32 v{v}, v{v}, v{t}")


def ln_stats(k, vsum, vsq, vmean, vrstd, t0, t1):
    inv = hex(f2u(1.0 / 640))
    k(f"v_mul_f32 v{t0}, {inv}, v{vsum}")
    k(f"v_mul_f32 v{t1}, {inv}, v{vsq}")
    k(f"v_fma_f32 v{t1}, -v{t0}, v{t0}, v{t1}")
    k(f"v_max_f32 v{t1}, 0, v{t1}")
    bf16r(k, vmean, t0)
    bf16r(k, t1, t1)
    k(f"v_add_f32 v{t1}, {hex(f2u(1e-5))}, v{t1}")
    bf16r(k, t1, t1)
    k(f"v_sqrt_f32 v{t1}, v{t1}")
    k.nop(1)
    bf16r(k, t1, t1)
    k(f"v_rcp_f32 v{vrstd}, v{t1}")
    k.nop(1)


def wave_lane_setup(k, s_w, v_l):
    k(f"v_lshrrev_b32 v{v_l}, 6, v0")
    k.nop(1)
    k(f"v_readfirstlane_b32 s{s_w}, v{v_l}")
    k(f"v_and_b32 v{v_l}, 63, v0")


def dma_offsets_160(k, vout, v_l, ld, t0, t1, t2):
    for i in range(5):
        k(f"v_add_u32 v{t0}, {i*64}, v{v_l}")
        k(f"v_mul_u32_u24 v{t1}, 6554, v{t0}")
        k(f"v_lshrrev_b32 v{t1}, 16, v{t1}")
        k(f"v_mul_u32_u24 v{t2}, 10, v{t1}")
        k(f"v_sub_u32 v{t0}, v{t0}, v{t2}")
        k(f"v_lshlrev_b32 v{t0}, 4, v{t0}")
        k(f"v_bfe_u32 v{t2}, v{t1}, 2, 2")
        k(f"v_lshlrev_b32 v{t2}, 3, v{t2}")
        k(f"v_and_b32 v{vout+i}, 3, v{t1}")
        k(f"v_add_u32 v{t2}, v{t2}, v{vout+i}")
        k(f"v_lshrrev_b32 v{t1}, 4, v{t1}")
        k(f"v_lshl_add_u32 v{t2}, v{t1}, 2, v{t2}")
        k(f"v_mul_u32_u24 v{t2}, {ld}, v{t2}")
        k(f"v_add_u32 v{vout+i}, v{t2}, v{t0}")
```

```python
import sys
sys.path.insert(0, "work")
from common import *

WS_WO = 0x1000000
WS_W1 = 0x1100000
WS_W2 = 0x1300000
WS_EX = 0x1500000
WS_ST = 0x1510000
WS_SIZE = 0x1600000
PD16 = int(os.environ.get("PD16", "2"))
PD32 = int(os.environ.get("PD32", "3"))
NOPF = int(os.environ.get("NOPF", "0"))


def gemm_pipeline(k, n, D, nreads, read_fn, mfma_fn, sync_at, side):
    nbuf = D + 1
    for i in range(min(D, n)):
        if i in sync_at:
            sync_at[i]()
        read_fn(i, i % nbuf)
    for i in range(n):
        cnt = sum(nreads(j) for j in range(i + 1, min(i + D, n)))
        assert cnt <= 15
        k(f"s_waitcnt lgkmcnt({cnt})")
        mfma_fn(i, i % nbuf)
        j = i + D
        if j < n:
            if j in sync_at:
                sync_at[j]()
            read_fn(j, j % nbuf)
        side(i)


def sdiv(k, q, r, x, d, tmp):
    m = (2 ** 32 + d - 1) // d
    k(f"s_mul_hi_u32 s{q}, s{x}, {hex(m)}")
    k(f"s_mul_i32 s{tmp}, s{q}, {d}")
    k(f"s_sub_u32 s{r}, s{x}, s{tmp}")


def decode_tb_cb(k, s_tb, s_cb, s_t, s_t2):
    k(f"s_and_b32 s{s_t}, s2, 7")
    k(f"s_lshr_b32 s{s_t2}, s2, 3")
    k(f"s_lshl_b32 s{s_tb}, s{s_t}, 2")
    k(f"s_and_b32 s{s_t}, s{s_t2}, 3")
    k(f"s_add_u32 s{s_tb}, s{s_tb}, s{s_t}")
    k(f"s_lshr_b32 s{s_cb}, s{s_t2}, 2")


def interleave(k, chains):
    pos = [0] * len(chains)
    last = [-100] * len(chains)
    n = 0
    while any(p < len(c) for p, c in zip(pos, chains)):
        did = False
        for i, c in enumerate(chains):
            if pos[i] < len(c) and n - last[i] - 1 >= c[pos[i]][1]:
                k(c[pos[i]][0])
                last[i] = n
                pos[i] += 1
                n += 1
                did = True
        if not did:
            k("s_nop 0")
            n += 1


def helper_prefetch(k, srd, base_pair, off, nbytes, v_l, v_pf, v_dum, s_t, s_t2):
    k.srd(srd, base_pair, nbytes, off)
    k(f"s_lshr_b32 s{s_t}, s2, 3")
    k(f"s_lshl_b32 s{s_t}, s{s_t}, 13")
    k(f"v_lshlrev_b32 v{v_pf}, 7, v{v_l}")
    per = 32 * 64 * 128
    for i in range((nbytes + per - 1) // per):
        k(f"s_add_u32 s{s_t2}, s{s_t}, {i*per}")
        k(f"buffer_load_dword v{v_dum}, v{v_pf}, s[{srd}:{srd+3}], s{s_t2} offen")


class Sprinkle:
    def __init__(self):
        self.q = []

    def add(self, f):
        self.q.append(f)

    def emit(self, n):
        for _ in range(n):
            if self.q:
                self.q.pop(0)()


def frag_src(k, s_src, s_f, NT, S, KS, ld, TN, MT, s_a, s_b, s_c, s_d, s_t):
    sdiv(k, s_b, s_c, s_f, NT, s_t)
    sdiv(k, s_a, s_d, s_b, S, s_t)
    k(f"s_mul_i32 s{s_src}, s{s_d}, {KS*ld}")
    k(f"s_mul_i32 s{s_t}, s{s_a}, {TN*2}")
    k(f"s_add_u32 s{s_src}, s{s_src}, s{s_t}")
    k(f"s_mul_i32 s{s_t}, s{s_c}, {MT*2}")
    k(f"s_add_u32 s{s_src}, s{s_src}, s{s_t}")


def gen_k1():
    k = Kern("k1_kernel")
    LDS_KV = 102400
    LDS_SCR = 128000
    sX, sW, sKV, sWS = 16, 20, 24, 28
    s_tb, s_cb, s_w, s_t, s_t2, s_off, s_l = 32, 33, 34, 35, 36, 37, 41
    s_ones = 38
    s_qoff = 42
    s_rot = 44
    v_l, v_idx, v_g = 1, 2, 3
    v_x = 4
    v_w = 5
    v_a = 10
    v_akv = 11
    t0, t1, t2, t3 = 12, 13, 14, 15
    v_sum, v_sq = 16, 18
    v_ones = 20
    XB = 24
    D = 6
    AF = 104
    VAR, VKR = 132, 136
    QAD = 140
    ACC = 160
    CS = 188
    E = 216

    k("s_cmp_ge_u32 s2, 256")
    k("s_cbranch_scc1 k1_end")
    k.stamp_init()
    k(f"s_load_dwordx4 s[4:7], s[0:1], {KA['x']}")
    k(f"s_load_dwordx4 s[8:11], s[0:1], {KA['wk']}")
    k(f"s_load_dwordx2 s[12:13], s[0:1], {KA['ws']}")
    k(f"s_load_dwordx2 s[14:15], s[0:1], {KA['wo']}")
    wave_lane_setup(k, s_w, v_l)
    k(f"v_and_b32 v{v_idx}, 15, v{v_l}")
    k(f"v_lshrrev_b32 v{v_g}, 4, v{v_l}")
    k(f"s_cmp_eq_u32 s{s_w}, 4")
    k("s_cbranch_scc1 k1_helper")
    decode_tb_cb(k, s_tb, s_cb, s_t, s_t2)
    k(f"s_lshl_b32 s{s_t}, s{s_tb}, 6")
    k(f"s_lshl_b32 s{s_t2}, s{s_w}, 4")
    k(f"s_add_u32 s{s_t}, s{s_t}, s{s_t2}")
    k(f"v_add_u32 v{t0}, s{s_t}, v{v_idx}")
    k(f"v_mul_u32_u24 v{v_x}, 1280, v{t0}")
    k(f"v_lshl_add_u32 v{v_x}, v{v_g}, 4, v{v_x}")
    for i in range(4):
        k(f"s_add_u32 s{s_t}, s{s_w}, {i}")
        k(f"s_and_b32 s{s_t}, s{s_t}, 3")
        k(f"s_lshl_b32 s{s_rot+i}, s{s_t}, 6")
    dma_offsets_160(k, v_w, v_l, 1280, t0, t1, t2)
    k(f"s_mul_i32 s{s_off}, s{s_cb}, 160")
    k(f"s_mul_i32 s{s_t}, s{s_w}, {32*1280}")
    k(f"s_add_u32 s{s_off}, s{s_off}, s{s_t}")
    k(f"s_mul_i32 s{s_l}, s{s_w}, 5120")
    k("s_waitcnt lgkmcnt(0)")
    k.srd(sX, 4, 2048 * 1280)
    k.srd(sW, 6, 640 * 1280)

    def chunk_loads(c):
        fs = []
        for i in range(4):
            s = 4 * c + i
            fs.append(lambda s=s, c=c, i=i: k.vmissue(f"buffer_load_dwordx4 {vr(XB+4*s,4)}, v{v_x}, s[{sX}:{sX+3}], s{s_rot+i} offen offset:{c*256}", f"c{c}"))
        for i in range(5):
            def f(i=i, c=c):
                k(f"s_add_u32 m0, s{s_l}, {c*20480 + i*1024}")
                k(f"s_add_u32 s{s_t2}, s{s_off}, {c*128*1280}")
                k.vmissue(f"buffer_load_dwordx4 v{v_w+i}, s[{sW}:{sW+3}], s{s_t2} offen lds", f"c{c}")
            fs.append(f)
        return fs
    for f in chunk_loads(0):
        f()
    k.srd(sWS, 12, WS_SIZE)
    k(f"s_cmp_eq_u32 s{s_cb}, 0")
    k(f"s_cselect_b32 s{sKV}, s8, s10")
    k(f"s_cselect_b32 s{sKV+1}, s9, s11")
    k(f"s_mov_b32 s{sKV+2}, 25600")
    k(f"s_mov_b32 s{sKV+3}, 0x00020000")
    k(f"s_cmp_ge_u32 s{s_cb}, 2")
    k(f"s_cbranch_scc1 k1_nokvload")
    k(f"v_lshlrev_b32 v{t0}, 4, v{v_l}")
    for i in range(7):
        k(f"s_add_u32 s{s_t}, s{s_w}, {4*i}")
        k(f"s_min_u32 s{s_t}, s{s_t}, 24")
        k(f"s_lshl_b32 s{s_t}, s{s_t}, 10")
        k(f"s_add_u32 m0, s{s_t}, {LDS_KV}")
        k.nop(1)
        k(f"buffer_load_dwordx4 v{t0}, s[{sKV}:{sKV+3}], s{s_t} offen lds")
    k.label("k1_nokvload")
    for f in chunk_loads(1):
        f()
    k(f"v_lshrrev_b32 v{t0}, 2, v{v_idx}")
    k(f"v_lshl_add_u32 v{t1}, v{v_g}, 2, v{t0}")
    k(f"v_mul_u32_u24 v{v_a}, 160, v{t1}")
    k(f"v_and_b32 v{t2}, 3, v{v_idx}")
    k(f"v_lshl_add_u32 v{v_a}, v{t2}, 3, v{v_a}")
    k(f"v_lshl_add_u32 v{t1}, v{v_g}, 3, v{t0}")
    k(f"v_mul_u32_u24 v{v_akv}, 40, v{t1}")
    k(f"v_lshl_add_u32 v{v_akv}, v{t2}, 3, v{v_akv}")
    k(f"v_add_u32 v{v_akv}, {LDS_KV}, v{v_akv}")
    for i in range(4):
        k(f"s_mul_i32 s{s_t}, s{s_rot+i}, 80")
        k(f"v_add_u32 v{VAR+i}, s{s_t}, v{v_a}")
        k(f"s_mul_i32 s{s_t}, s{s_rot+i}, 20")
        k(f"v_add_u32 v{VKR+i}, s{s_t}, v{v_akv}")
    k(f"s_and_b32 s{s_t}, s{s_w}, 1")
    k(f"s_lshl_b32 s{s_t}, s{s_t}, 4")
    k(f"v_add_u32 v{t3}, s{s_t}, v{v_idx}")
    for t in range(5):
        k(f"v_add_u32 v{t0}, {4*t}, v{v_g}")
        k(f"v_mul_u32_u24 v{t1}, 52, v{t0}")
        k(f"v_lshrrev_b32 v{t1}, 8, v{t1}")
        k(f"v_mul_u32_u24 v{t2}, 5, v{t1}")
        k(f"v_sub_u32 v{t0}, v{t0}, v{t2}")
        k(f"v_lshrrev_b32 v{t2}, 1, v{t0}")
        k(f"v_lshl_add_u32 v{t2}, v{t2}, 5, v{t3}")
        k(f"v_lshlrev_b32 v{t2}, 4, v{t2}")
        k(f"v_and_b32 v{QAD+t}, 1, v{t0}")
        k(f"v_lshl_add_u32 v{t2}, v{QAD+t}, 3, v{t2}")
        k(f"v_cmp_eq_u32 vcc, 4, v{t0}")
        k(f"v_lshlrev_b32 v{QAD+t}, 3, v{t3}")
        k(f"v_add_u32 v{QAD+t}, 1024, v{QAD+t}")
        k(f"v_cndmask_b32 v{t2}, v{t2}, v{QAD+t}, vcc")
        k(f"v_mul_u32_u24 v{t1}, {64*1280}, v{t1}")
        k(f"v_add_u32 v{QAD+t}, v{t1}, v{t2}")
    k(f"s_lshl_b32 s{s_qoff}, s{s_cb}, 8")
    k(f"s_lshl_b32 s{s_t}, s{s_tb}, 1")
    k(f"s_add_u32 s{s_qoff}, s{s_qoff}, s{s_t}")
    k(f"s_lshr_b32 s{s_t}, s{s_w}, 1")
    k(f"s_add_u32 s{s_qoff}, s{s_qoff}, s{s_t}")
    k(f"s_mul_i32 s{s_qoff}, s{s_qoff}, 1280")
    k(f"s_add_u32 s{s_qoff}, s{s_qoff}, {WS_Q}")
    k(f"s_mov_b32 s{s_ones}, 0x3f803f80")
    for i in range(4):
        k(f"v_mov_b32 v{v_ones+i}, s{s_ones}")
    for i in range(4):
        k(f"v_mov_b32 v{v_sum+i}, 0")
    for i in range(56):
        k(f"v_mov_b32 v{ACC+i}, 0")
    vm_snapshot = list(k.vm)
    k.stamp()

    def mainloop(mode):
        k.vm = list(vm_snapshot)
        nt = 5 if mode == 'q' else 7
        n = 20 * nt
        spr = Sprinkle()

        def read_fn(i, buf):
            s, t = divmod(i, nt)
            c, ii = divmod(s, 4)
            if c == 4 and t == 0:
                k(f"v_add_u32 v{VAR+ii}, 81920, v{VAR+ii}")
            for j in range(2):
                if t < 5:
                    off = (c % 4) * 20480 + j * 2560 + t * 32
                    base = VAR + ii
                else:
                    off = c * 5120 + j * 160 + (t - 5) * 32
                    base = VKR + ii
                k(f"ds_read_b64_tr_b16 {vr(AF+buf*4+2*j,2)}, v{base} offset:{off}")

        def mfma_fn(i, buf):
            s, t = divmod(i, nt)
            X = XB + 4 * s
            A = AF + 4 * buf
            swap = (mode == 'v' and t >= 5)
            a, b = (vr(X, 4), vr(A, 4)) if swap else (vr(A, 4), vr(X, 4))
            k(f"v_mfma_f32_16x16x32_bf16 {vr(ACC+4*t,4)}, {a}, {b}, {vr(ACC+4*t,4)}")
            if s % 4 == 0:
                a, b = (vr(v_ones, 4), vr(A, 4)) if swap else (vr(A, 4), vr(v_ones, 4))
                k(f"v_mfma_f32_16x16x32_bf16 {vr(CS+4*t,4)}, {a}, {b}, {vr(CS+4*t,4)}")

        def stats_burst(c):
            for r in range(16):
                X = XB + 16 * c + r
                k(f"v_dot2_f32_bf16 v{v_sum+(r&1)}, v{X}, v{v_ones}, v{v_sum+(r&1)}")
                k(f"v_dot2_f32_bf16 v{v_sq+(r&1)}, v{X}, v{X}, v{v_sq+(r&1)}")

        def mk_sync(c):
            def f():
                k.vmwait(f"c{c}")
                stats_burst(c)
                k("s_barrier")
                if mode == 'q' and c in (0, 1, 4):
                    k.stamp()
                if c + 2 < 5:
                    for g in chunk_loads(c + 2):
                        spr.add(g)
            return f
        sync_at = {4 * c * nt: mk_sync(c) for c in range(5)}

        def side(i):
            spr.emit(1)
        gemm_pipeline(k, n, D, lambda j: 2, read_fn, mfma_fn, sync_at, side)
        assert not spr.q
    k(f"s_cmp_eq_u32 s{s_cb}, 0")
    k("s_cbranch_scc1 k1_loop_k")
    k(f"s_cmp_eq_u32 s{s_cb}, 1")
    k("s_cbranch_scc1 k1_loop_v")
    mainloop('q')
    k.label("k1_epi")
    k.stamp()
    k.vm = []
    k.nop(6)
    v_mean, v_rstd = E, E + 1
    k(f"s_mul_i32 s{s_t}, s{s_w}, {7*64}")
    k(f"s_add_u32 s{s_t}, s{s_t}, {LDS_SCR}")
    k(f"v_lshlrev_b32 v{t0}, 4, v{v_g}")
    k(f"v_add_u32 v{t0}, s{s_t}, v{t0}")
    for t in range(5):
        k(f"ds_write_b128 v{t0}, {vr(CS+4*t,4)} offset:{t*64}")
    k(f"s_cmp_eq_u32 s{s_cb}, 1")
    k("s_cbranch_scc1 k1_csw_v")
    for t in range(5, 7):
        k(f"ds_write_b128 v{t0}, {vr(CS+4*t,4)} offset:{t*64}")
    k.label("k1_csw_done")
    k("s_waitcnt lgkmcnt(0)")
    k("s_barrier")
    k(f"v_lshlrev_b32 v{t2}, 4, v{v_g}")
    k(f"v_add_u32 v{t2}, {LDS_SCR}, v{t2}")
    for t in range(5):
        for w in range(4):
            if t * 4 + w == 15:
                k("s_waitcnt lgkmcnt(8)")
            k(f"ds_read_b128 {vr(XB+(t*4+w)*4,4)}, v{t2} offset:{(w*7+t)*64}")
    k(f"v_add_f32 v{v_sum}, v{v_sum}, v{v_sum+1}")
    k(f"v_add_f32 v{v_sq}, v{v_sq}, v{v_sq+1}")
    xsum_rows(k, v_sum, t0)
    xsum_rows(k, v_sq, t0)
    ln_stats(k, v_sum, v_sq, v_mean, v_rstd, t0, t1)
    k(f"v_mov_b32 v{t0}, v{t2}")
    k("s_waitcnt lgkmcnt(0)")
    v_rs = E + 2
    k(f"v_mul_f32 v{v_rs}, {hex(f2u(QSCALE))}, v{v_rstd}")
    for t in range(5):
        for r in range(4):
            b = XB + t * 16 + r
            a = ACC + 4 * t + r
            k(f"v_add_f32 v{b}, v{b}, v{b+4}")
            k(f"v_add_f32 v{b+8}, v{b+8}, v{b+12}")
            k(f"v_add_f32 v{b}, v{b}, v{b+8}")
            k(f"v_fma_f32 v{a}, -v{v_mean}, v{b}, v{a}")
            k(f"v_mul_f32 v{a}, v{a}, v{v_rs}")
        k(f"v_cvt_pk_bf16_f32 v{E+4+2*t}, v{ACC+4*t}, v{ACC+4*t+1}")
        k(f"v_cvt_pk_bf16_f32 v{E+5+2*t}, v{ACC+4*t+2}, v{ACC+4*t+3}")
        k(f"buffer_store_dwordx2 {vr(E+4+2*t,2)}, v{QAD+t}, s[{sWS}:{sWS+3}], s{s_qoff} offen")
    k.stamp_flush(s_w)
    k(f"s_cmp_lt_u32 s{s_cb}, 2")
    k("s_cbranch_scc1 k1_kv_epi")
    k.label("k1_end")
    k("s_endpgm")

    k.label("k1_csw_v")
    k(f"v_lshlrev_b32 v{t1}, 2, v{v_idx}")
    k(f"v_add_u32 v{t1}, s{s_t}, v{t1}")
    for t in range(5, 7):
        k(f"ds_write_b32 v{t1}, v{CS+4*t} offset:{t*64}")
    k("s_branch k1_csw_done")

    k.label("k1_kv_epi")
    s_base, s_u = 39, 40
    k(f"s_lshl_b32 s{s_t}, s{s_tb}, 1")
    k(f"s_lshr_b32 s{s_t2}, s{s_w}, 1")
    k(f"s_add_u32 s{s_t}, s{s_t}, s{s_t2}")
    k(f"s_mul_i32 s{s_base}, s{s_t}, 2560")
    k(f"s_add_u32 s{s_base}, s{s_base}, {WS_KV}")
    k(f"s_and_b32 s{s_u}, s{s_w}, 1")
    k(f"s_cmp_eq_u32 s{s_cb}, 1")
    k("s_cbranch_scc1 k1_epi_v")
    for t in range(5, 7):
        for w in range(4):
            k(f"ds_read_b128 {vr(XB+((t-5)*4+w)*4,4)}, v{t0} offset:{(w*7+t)*64}")
    k("s_waitcnt lgkmcnt(0)")
    for t in range(5, 7):
        for r in range(4):
            b = XB + (t - 5) * 16 + r
            a = ACC + 4 * t + r
            k(f"v_add_f32 v{b}, v{b}, v{b+4}")
            k(f"v_add_f32 v{b+8}, v{b+8}, v{b+12}")
            k(f"v_add_f32 v{b}, v{b}, v{b+8}")
            k(f"v_fma_f32 v{a}, -v{v_mean}, v{b}, v{a}")
            k(f"v_mul_f32 v{a}, v{a}, v{v_rstd}")
    P = E + 16
    k(f"v_cvt_pk_bf16_f32 v{P}, v{ACC+20}, v{ACC+21}")
    k(f"v_cvt_pk_bf16_f32 v{P+1}, v{ACC+22}, v{ACC+23}")
    k(f"v_cvt_pk_bf16_f32 v{P+2}, v{ACC+24}, v{ACC+25}")
    k(f"v_cvt_pk_bf16_f32 v{P+3}, v{ACC+26}, v{ACC+27}")
    k(f"v_cmp_eq_u32 vcc, 0, v{v_g}")
    k.nop(2)
    k(f"v_cndmask_b32 v{P+2}, 0, v{P+2}, vcc")
    k(f"v_cndmask_b32 v{P+3}, 0, v{P+3}, vcc")
    k(f"s_lshl_b32 s{s_t}, s{s_u}, 4")
    k(f"v_add_u32 v{t1}, s{s_t}, v{v_idx}")
    k(f"v_lshrrev_b32 v{t2}, 1, v{v_g}")
    k(f"v_lshl_add_u32 v{t2}, v{t2}, 5, v{t1}")
    k(f"v_lshlrev_b32 v{t2}, 4, v{t2}")
    k(f"v_and_b32 v{t3}, 1, v{v_g}")
    k(f"v_lshl_add_u32 v{t2}, v{t3}, 3, v{t2}")
    k(f"buffer_store_dwordx2 {vr(P,2)}, v{t2}, s[{sWS}:{sWS+3}], s{s_base} offen")
    k(f"v_lshlrev_b32 v{t2}, 3, v{t1}")
    k(f"v_add_u32 v{t2}, 2304, v{t2}")
    k(f"v_mov_b32 v{t1}, 0x7ffffff8")
    k(f"v_cndmask_b32 v{t2}, v{t1}, v{t2}, vcc")
    k(f"buffer_store_dwordx2 {vr(P+2,2)}, v{t2}, s[{sWS}:{sWS+3}], s{s_base} offen")
    k(f"v_mov_b32 v{t3}, 0")
    for i in range(4):
        k(f"v_dot2_f32_bf16 v{t3}, v{P+i}, v{P+i}, v{t3}")
    k.nop(3)
    xsum_rows(k, t3, t0)
    for sh in (8, 4, 2, 1):
        k.nop(2)
        k(f"v_max_f32_dpp v{t3}, v{t3}, v{t3} row_ror:{sh} row_mask:0xf bank_mask:0xf")
    k(f"s_lshl_b32 s{s_t}, s{s_tb}, 2")
    k(f"s_add_u32 s{s_t}, s{s_t}, s{s_w}")
    k(f"s_lshl_b32 s{s_t}, s{s_t}, 2")
    k(f"s_add_u32 s{s_t}, s{s_t}, {WS_KMAX}")
    k(f"v_mov_b32 v{t2}, 0")
    k(f"buffer_store_dword v{t3}, v{t2}, s[{sWS}:{sWS+3}], s{s_t} offen")
    k("s_endpgm")
    k.label("k1_epi_v")
    k(f"v_lshlrev_b32 v{t1}, 2, v{v_idx}")
    k(f"v_add_u32 v{t1}, {LDS_SCR}, v{t1}")
    for t in range(5, 7):
        for w in range(4):
            k(f"ds_read_b32 v{XB+(t-5)*4+w}, v{t1} offset:{(w*7+t)*64}")
    k(f"s_lshl_b32 s{s_t}, s{s_w}, 7")
    k(f"s_add_u32 s{s_t}, s{s_t}, {LDS_SCR+1792}")
    k(f"v_lshlrev_b32 v{t2}, 2, v{v_idx}")
    k(f"v_add_u32 v{t2}, s{s_t}, v{t2}")
    k(f"ds_write_b32 v{t2}, v{v_mean}")
    k(f"ds_write_b32 v{t2}, v{v_rstd} offset:64")
    k(f"v_lshlrev_b32 v{t2}, 4, v{v_g}")
    k(f"v_add_u32 v{t2}, s{s_t}, v{t2}")
    k("s_waitcnt lgkmcnt(0)")
    M4, R4 = XB + 16, XB + 20
    k(f"ds_read_b128 {vr(M4,4)}, v{t2}")
    k(f"ds_read_b128 {vr(R4,4)}, v{t2} offset:64")
    k("s_waitcnt lgkmcnt(0)")
    for t in range(5, 7):
        b = XB + (t - 5) * 4
        k(f"v_add_f32 v{b}, v{b}, v{b+1}")
        k(f"v_add_f32 v{b+2}, v{b+2}, v{b+3}")
        k(f"v_add_f32 v{b}, v{b}, v{b+2}")
        for r in range(4):
            a = ACC + 4 * t + r
            k(f"v_fma_f32 v{a}, -v{M4+r}, v{b}, v{a}")
            k(f"v_mul_f32 v{a}, v{a}, v{R4+r}")
        k(f"v_cvt_pk_bf16_f32 v{P+2*(t-5)}, v{ACC+4*t}, v{ACC+4*t+1}")
        k(f"v_cvt_pk_bf16_f32 v{P+2*(t-5)+1}, v{ACC+4*t+2}, v{ACC+4*t+3}")
    k(f"v_and_b32 v{t1}, 1, v{v_g}")
    k(f"s_lshl_b32 s{s_t}, s{s_u}, 1")
    k(f"v_add_u32 v{t1}, s{s_t}, v{t1}")
    k(f"v_mul_u32_u24 v{t1}, 20, v{t1}")
    k(f"v_add_u32 v{t1}, v{t1}, v{v_idx}")
    k(f"v_lshlrev_b32 v{t1}, 4, v{t1}")
    k(f"v_lshrrev_b32 v{t2}, 1, v{v_g}")
    k(f"v_lshl_add_u32 v{t1}, v{t2}, 3, v{t1}")
    k(f"buffer_store_dwordx2 {vr(P,2)}, v{t1}, s[{sWS}:{sWS+3}], s{s_base} offen offset:1024")
    k(f"v_cmp_gt_u32 vcc, 4, v{v_idx}")
    k.nop(2)
    k(f"v_mov_b32 v{t2}, 0x7ffffff8")
    k(f"v_cndmask_b32 v{t1}, v{t2}, v{t1}, vcc")
    k(f"buffer_store_dwordx2 {vr(P+2,2)}, v{t1}, s[{sWS}:{sWS+3}], s{s_base} offen offset:{1024+256}")
    k("s_endpgm")

    k.label("k1_loop_k")
    mainloop('k')
    k("s_branch k1_epi")
    k.label("k1_loop_v")
    mainloop('v')
    k("s_branch k1_epi")

    k.label("k1_helper")
    sC, sWO = 48, 52
    s_a, s_b, s_c, s_d, s_f = 56, 57, 58, 59, 39
    k("s_getpc_b64 s[48:49]")
    k.label("k1_pc")
    k("s_sub_u32 s48, s48, k1_pc-k1_kernel")
    k("s_subb_u32 s49, s49, 0")
    k("s_mov_b32 s50, text_end-k1_kernel")
    k("s_mov_b32 s51, 0x00020000")
    k(f"s_lshr_b32 s{s_t}, s2, 3")
    k(f"s_lshl_b32 s{s_t}, s{s_t}, 13")
    k(f"v_lshlrev_b32 v{t0}, 7, v{v_l}")
    k(f"buffer_load_dword v{t1}, v{t0}, s[48:51], s{s_t} offen")
    k(f"v_mul_u32_u24 v{t2}, {8*1280}, v{v_g}")
    k(f"v_lshl_add_u32 v{t2}, v{v_idx}, 1, v{t2}")
    k(f"v_lshlrev_b32 v{t3}, 4, v{v_l}")
    k("s_waitcnt lgkmcnt(0)")
    k.srd(sWO, 14, 640 * 1280)
    k.srd(sWS, 12, WS_SIZE)
    if "k1pf" in K2VAR:
        slab = 256 * 1280
        k(f"s_and_b32 s{s_a}, s2, 7")
        k(f"s_mul_i32 s{s_a}, s{s_a}, {slab}")
        k(f"s_add_u32 s4, s4, s{s_a}")
        k("s_addc_u32 s5, s5, 0")
        helper_prefetch(k, sX, 4, 0, slab, v_l, t0, t1, s_t, s_t2)
        helper_prefetch(k, sW, 6, 0, 640 * 1280, v_l, t0, t1, s_t, s_t2)
    for j in range(4):
        k("s_barrier")
        if "nohelp" in K2VAR:
            continue
        k(f"s_add_u32 s{s_f}, s2, {256*j}")
        k(f"s_min_u32 s{s_f}, s{s_f}, 799")
        k(f"s_lshl_b32 s{s_rot+j}, s{s_f}, 10")
        k(f"s_add_u32 s{s_rot+j}, s{s_rot+j}, {WS_WO}")
        frag_src(k, s_off, s_f, 5, 20, 32, 1280, 80, 16, s_a, s_b, s_c, s_d, s_t)
        for e in range(8):
            k(f"s_add_u32 s{s_t2}, s{s_off}, {e*1280}")
            k(f"buffer_load_ushort v{XB+8*j+e}, v{t2}, s[{sWO}:{sWO+3}], s{s_t2} offen")
    k("s_barrier")
    k("s_barrier")
    if "nohelp" not in K2VAR:
        k("s_waitcnt vmcnt(0)")
        for j in range(4):
            for e in range(4):
                k(f"v_lshl_or_b32 v{ACC+4*j+e}, v{XB+8*j+2*e+1}, 16, v{XB+8*j+2*e}")
            k(f"buffer_store_dwordx4 {vr(ACC+4*j,4)}, v{t3}, s[{sWS}:{sWS+3}], s{s_rot+j} offen")
    k("s_endpgm")
    return k.text(248), "k1_kernel", (256, 320, LDS_SCR + 1792 + 512)


def gen_k2():
    k = Kern("k2_kernel")
    sWS, sKVs = 16, 20
    s_tb, s_hg, s_w, s_t, s_t2, s_kh, s_cnt, s_h, s_dma = 32, 33, 34, 35, 36, 38, 39, 40, 41
    s_vm = 42
    s_a, s_b, s_c, s_d = 54, 55, 56, 57
    v_l, v_q, v_half = 1, 2, 3
    t0, t1, t2, t3 = 4, 5, 6, 7
    v_k1, v_k2, v_v = 8, 9, 10
    v_dma = 11
    v_km = 12
    v_oa = 13
    QA1, QA2, QB1, QB2 = 16, 20, 24, 28
    SA, SB = 32, 48
    PA, PB = 64, 72
    OA, OB = 80, 96
    KF = 112
    VF = 128
    MX = 144
    NV = 152

    k("s_cmp_ge_u32 s2, 256")
    k("s_cbranch_scc1 k2_end")
    k.stamp_init()
    k(f"s_load_dwordx2 s[12:13], s[0:1], {KA['ws']}")
    k(f"s_load_dwordx4 s[4:7], s[0:1], {KA['w1']}")
    k(f"s_load_dwordx2 s[8:9], s[0:1], {KA['w2']}")
    wave_lane_setup(k, s_w, v_l)
    k(f"v_and_b32 v{v_q}, 31, v{v_l}")
    k(f"v_lshrrev_b32 v{v_half}, 5, v{v_l}")
    k(f"v_lshlrev_b32 v{v_dma}, 4, v{v_l}")
    k(f"s_cmp_eq_u32 s{s_w}, 8")
    k("s_cbranch_scc1 k2_helper")
    decode_tb_cb(k, s_tb, s_hg, s_t, s_t2)
    k(f"s_lshr_b32 s{s_kh}, s{s_w}, 2")
    k(f"s_and_b32 s{s_t}, s{s_w}, 3")
    k(f"s_lshl_b32 s{s_h}, s{s_hg}, 2")
    k(f"s_add_u32 s{s_h}, s{s_h}, s{s_t}")
    k(f"v_lshlrev_b32 v{t0}, 3, v{v_q}")
    k(f"v_lshlrev_b32 v{t2}, 3, v{v_l}")
    k(f"s_mul_i32 s{s_dma}, s{s_kh}, 81920")
    k(f"s_and_b32 s{s_t2}, s{s_w}, 3")
    k(f"s_lshl_b32 s{s_t2}, s{s_t2}, 10")
    k(f"s_add_u32 s{s_dma}, s{s_dma}, s{s_t2}")
    k(f"s_lshl_b32 s{s_t}, s{s_h}, 6")
    k(f"s_lshl_b32 s{s_t2}, s{s_tb}, 1")
    k(f"s_add_u32 s{s_t}, s{s_t}, s{s_t2}")
    k(f"s_mul_i32 s{s_t}, s{s_t}, 1280")
    k(f"s_add_u32 s{s_t}, s{s_t}, {WS_Q}")
    k(f"s_mov_b32 s{s_a}, {WS_KMAX}")
    k("s_waitcnt lgkmcnt(0)")
    k.srd(sWS, 12, WS_SIZE)
    k.srd(sKVs, 12, 163840, WS_KV)

    def dma(i, tag):
        k(f"s_add_u32 m0, s{s_dma}, {i*4096}")
        k(f"s_add_u32 s{s_b}, s{s_dma}, {i*4096}")
        k.vmissue(f"buffer_load_dwordx4 v{v_dma}, s[{sKVs}:{sKVs+3}], s{s_b} offen lds", tag)
    k.vmissue(f"buffer_load_dwordx4 {vr(QA1,4)}, v{v_dma}, s[{sWS}:{sWS+3}], s{s_t} offen", "q")
    k.vmissue(f"buffer_load_dwordx2 {vr(QA2,2)}, v{t0}, s[{sWS}:{sWS+3}], s{s_t} offen offset:1024", "q")
    k.vmissue(f"buffer_load_dwordx4 {vr(QB1,4)}, v{v_dma}, s[{sWS}:{sWS+3}], s{s_t} offen offset:1280", "q")
    k.vmissue(f"buffer_load_dwordx2 {vr(QB2,2)}, v{t0}, s[{sWS}:{sWS+3}], s{s_t} offen offset:2304", "q")
    k.vmissue(f"buffer_load_dwordx2 {vr(MX,2)}, v{t2}, s[{sWS}:{sWS+3}], s{s_a} offen", "q")
    for i in range(2):
        dma(i, "stA")
    for i in range(2, 5):
        dma(i, "stB")
    k(f"s_mov_b32 s{s_vm}, 0x000fffff")
    k(f"s_mov_b32 s{s_vm+1}, 0x000fffff")
    k(f"s_mul_i32 s{s_t}, s{s_kh}, 81920")
    k(f"v_add_u32 v{v_k1}, s{s_t}, v{v_dma}")
    k(f"v_add_u32 v{v_k2}, s{s_t}, v{t0}")
    k(f"v_mul_u32_u24 v{v_v}, 20, v{v_half}")
    k(f"v_add_u32 v{v_v}, v{v_v}, v{v_q}")
    k(f"v_lshlrev_b32 v{v_v}, 4, v{v_v}")
    k(f"v_add_u32 v{v_v}, s{s_t}, v{v_v}")
    for b in range(2):
        k(f"v_mov_b32 v{KF+8*b+6}, 0x3f803f80")
        k(f"v_mov_b32 v{KF+8*b+7}, 0x00003f80")
    k(f"v_and_b32 v{t2}, 27, v{v_q}")
    k(f"v_cmp_eq_u32 vcc, 24, v{t2}")
    k(f"v_mov_b32 v{t3}, 0x3f803f80")
    k.nop(1)
    k(f"v_cndmask_b32 v{t3}, 0, v{t3}, vcc")
    for i in range(16):
        k(f"v_mov_b32 v{VF+i}, v{t3}")
    for i in range(32):
        k(f"v_mov_b32 v{OA+i}, 0")
    for i in range(8):
        k(f"v_mov_b32 v{PB+i}, 0")
    mA, mB = MX + 4, MX + 5
    k(f"v_mov_b32 v{mA}, 0")
    k(f"v_mov_b32 v{mB}, 0")
    k(f"v_mov_b32 v{QA2+3}, 0")
    k(f"v_mov_b32 v{QB2+3}, 0")
    k(f"v_cmp_eq_u32 vcc, 0, v{v_half}")
    k.vmwait("q")
    for Q2 in (QA2, QB2):
        k(f"v_cndmask_b32 v{Q2}, 0, v{Q2}, vcc")
        k(f"v_cndmask_b32 v{Q2+1}, 0, v{Q2+1}, vcc")
    chK = [(f"v_max_f32 v{v_km}, v{MX}, v{MX+1}", 0)]
    for sh in (8, 4, 2, 1):
        chK.append((f"v_max_f32_dpp v{v_km}, v{v_km}, v{v_km} row_ror:{sh} row_mask:0xf bank_mask:0xf", 2))
    chK += [(f"v_mov_b32 v{t0}, v{v_km}", 0), (f"v_permlane16_swap_b32 v{v_km}, v{t0}", 2), (f"v_max_f32 v{v_km}, v{v_km}, v{t0}", 1),
            (f"v_mov_b32 v{t0}, v{v_km}", 0), (f"v_permlane32_swap_b32 v{v_km}, v{t0}", 2), (f"v_max_f32 v{v_km}, v{v_km}, v{t0}", 1)]
    chs = [chK]
    for (Q1, Q2, m, tt) in ((QA1, QA2, mA, t1), (QB1, QB2, mB, t2)):
        c = [(f"v_dot2_f32_bf16 v{m}, v{r}, v{r}, v{m}", 0) for r in (Q1, Q1 + 1, Q1 + 2, Q1 + 3, Q2, Q2 + 1)]
        c += [(f"v_mov_b32 v{tt}, v{m}", 3), (f"v_permlane32_swap_b32 v{m}, v{tt}", 2), (f"v_add_f32 v{m}, v{m}, v{tt}", 1)]
        chs.append(c)
    interleave(k, chs)
    chs = []
    for (Q2, m) in ((QA2, mA), (QB2, mB)):
        chs.append([(f"v_mul_f32 v{m}, v{m}, v{v_km}", 0), (f"v_sqrt_f32 v{m}, v{m}", 0),
                    (f"v_mul_f32 v{m}, {hex(f2u(1.0 + 2**-6))}, v{m}", 1),
                    (f"v_lshrrev_b32 v{m}, 16, v{m}", 0), (f"v_add_u32 v{m}, 0x8001, v{m}", 0),
                    (f"v_cndmask_b32 v{Q2+2}, 0, v{m}, vcc", 0)])
    interleave(k, chs)

    def split_m(Q2, m):
        k(f"v_sub_f32 v{t0}, 0, v{m}")
        k(f"v_and_b32 v{t1}, 0xffff0000, v{t0}")
        k(f"v_sub_f32 v{t0}, v{t0}, v{t1}")
        k(f"v_and_b32 v{t2}, 0xffff0000, v{t0}")
        k(f"v_sub_f32 v{t0}, v{t0}, v{t2}")
        k(f"v_lshrrev_b32 v{t1}, 16, v{t1}")
        k(f"v_or_b32 v{t1}, v{t1}, v{t2}")
        k(f"v_lshrrev_b32 v{t0}, 16, v{t0}")
        k(f"v_cndmask_b32 v{Q2+2}, 0, v{t1}, vcc")
        k(f"v_cndmask_b32 v{Q2+3}, 0, v{t0}, vcc")

    BASE_SW = 24

    def toff(t):
        return (t - BASE_SW if t >= BASE_SW else t) * 2560
    adv = {"k": False, "v": False}

    def rdK(t):
        if t > 31:
            return
        if t >= BASE_SW and not adv["k"]:
            adv["k"] = True
            k(f"v_add_u32 v{v_k1}, {BASE_SW*2560}, v{v_k1}")
            k(f"v_add_u32 v{v_k2}, {BASE_SW*2560}, v{v_k2}")
        buf = t & 1
        k(f"ds_read_b128 {vr(KF+8*buf,4)}, v{v_k1} offset:{toff(t)}")
        k(f"ds_read_b64 {vr(KF+8*buf+4,2)}, v{v_k2} offset:{toff(t)+2304}")

    def rdV(t):
        if t > 31:
            return
        if t >= BASE_SW and not adv["v"]:
            adv["v"] = True
            k(f"v_add_u32 v{v_v}, {BASE_SW*2560}, v{v_v}")
        buf = t & 1
        k(f"s_mov_b64 exec, s[{s_vm}:{s_vm+1}]")
        k(f"ds_read_b128 {vr(VF+8*buf,4)}, v{v_v} offset:{toff(t)+1024}")
        k(f"ds_read_b128 {vr(VF+8*buf+4,4)}, v{v_v} offset:{toff(t)+1024+640}")
        k("s_mov_b64 exec, -1")

    def qk(S, Q1, Q2, buf):
        return [f"v_mfma_f32_32x32x16_bf16 {vr(S,16)}, {vr(KF+8*buf,4)}, {vr(Q1,4)}, 0",
                f"v_mfma_f32_32x32x16_bf16 {vr(S,16)}, {vr(KF+8*buf+4,4)}, {vr(Q2,4)}, {vr(S,16)}"]

    def pv(O, P, buf):
        return [f"v_mfma_f32_32x32x16_bf16 {vr(O,16)}, {vr(VF+8*buf,4)}, {vr(P,4)}, {vr(O,16)}",
                f"v_mfma_f32_32x32x16_bf16 {vr(O,16)}, {vr(VF+8*buf+4,4)}, {vr(P+4,4)}, {vr(O,16)}"]

    def phase(S, P, mf, pre=None):
        for gidx in range(4):
            if pre and gidx == 0:
                pre()
            if mf[gidx]:
                k(mf[gidx])
            for i in range(4):
                r = S + 4 * gidx + i
                k(f"v_exp_f32 v{r}, v{r}")
            if gidx > 0:
                g0 = gidx - 1
                k(f"v_cvt_pk_bf16_f32 v{P+2*g0}, v{S+4*g0}, v{S+4*g0+1}")
                k(f"v_cvt_pk_bf16_f32 v{P+2*g0+1}, v{S+4*g0+2}, v{S+4*g0+3}")
        k(f"v_cvt_pk_bf16_f32 v{P+6}, v{S+12}, v{S+13}")
        k(f"v_cvt_pk_bf16_f32 v{P+7}, v{S+14}, v{S+15}")

    k.stamp()
    k.vmwait("stA")
    k("s_barrier")
    k.stamp()
    rdK(0)
    rdV(0)
    rdK(1)
    k("s_waitcnt lgkmcnt(4)")
    for m in qk(SA, QA1, QA2, 0):
        k(m)
    k.nop(12)
    for t in range(32):
        b = t & 1
        if t % 4 == 0 and t >= 4:
            k("s_barrier")
        k(f"s_setprio {3 - (t % 4)}")
        mf = qk(SB, QB1, QB2, b) + pv(OB, PB, b ^ 1)
        phase(SA, PA, mf)

        def pre(t=t):
            k("s_waitcnt lgkmcnt(0)")
            if t == 1:
                k.vmwait("stB")
                k("s_barrier")
            if t == 6:
                k("s_barrier")
            rdK(t + 2)
            rdV(t + 1)
        mf = (qk(SA, QA1, QA2, b ^ 1) if t < 31 else [None, None]) + pv(OA, PA, b)
        phase(SB, PB, mf, pre=pre)
    k.stamp()
    k.nop(2)
    for m in pv(OB, PB, 1):
        k(m)
    k(f"s_mul_i32 s{s_t}, s{s_kh}, 81920")
    k(f"s_and_b32 s{s_t2}, s{s_w}, 3")
    k(f"s_mul_i32 s{s_t2}, s{s_t2}, 3328")
    k(f"s_add_u32 s{s_a}, s{s_t}, s{s_t2}")
    k(f"s_xor_b32 s{s_t}, s{s_kh}, 1")
    k(f"s_mul_i32 s{s_t}, s{s_t}, 81920")
    k(f"s_add_u32 s{s_b}, s{s_t}, s{s_t2}")
    k(f"v_add_u32 v{t0}, s{s_a}, v{v_dma}")
    k(f"v_add_u32 v{t1}, s{s_b}, v{v_dma}")
    k(f"v_lshlrev_b32 v{t2}, 2, v{v_l}")
    k(f"v_add_u32 v{t3}, s{s_b}, v{t2}")
    k(f"v_add_u32 v{t2}, s{s_a}, v{t2}")
    k(f"s_cmp_eq_u32 s{s_kh}, 0")
    k("s_cbranch_scc1 k2_send0")
    for i in range(3):
        k(f"ds_write_b128 v{t0}, {vr(OA+4*i,4)} offset:{i*1024}")
    k(f"ds_write_b32 v{t2}, v{OA+12} offset:3072")
    k.nop(4)
    k("s_waitcnt lgkmcnt(0)")
    for i in range(13):
        k(f"v_mov_b32 v{OA+i}, v{OB+i}")
    for i in range(8):
        k(f"v_mov_b32 v{QA1+i}, v{QB1+i}")
    k("s_branch k2_sent")
    k.label("k2_send0")
    k.nop(4)
    for i in range(3):
        k(f"ds_write_b128 v{t0}, {vr(OB+4*i,4)} offset:{i*1024}")
    k(f"ds_write_b32 v{t2}, v{OB+12} offset:3072")
    k.label("k2_sent")
    v_a0 = MX
    k(f"s_lshl_b32 s{s_t}, s{s_tb}, 6")
    k(f"s_lshl_b32 s{s_t2}, s{s_kh}, 5")
    k(f"s_add_u32 s{s_t}, s{s_t}, s{s_t2}")
    k(f"v_add_u32 v{v_a0}, s{s_t}, v{v_q}")
    k(f"v_lshrrev_b32 v{v_a0+1}, 4, v{v_a0}")
    k(f"v_mul_u32_u24 v{v_a0+1}, {80*256}, v{v_a0+1}")
    k(f"v_and_b32 v{v_a0}, 15, v{v_a0}")
    k(f"v_lshl_add_u32 v{v_a0+1}, v{v_a0}, 4, v{v_a0+1}")
    k(f"s_mul_i32 s{s_t}, s{s_h}, 5")
    for i, dg in enumerate((0, 2, 4)):
        k(f"v_add_u32 v{v_a0}, s{s_t}, v{v_half}")
        k(f"v_add_u32 v{v_a0}, {dg}, v{v_a0}")
        k(f"v_lshrrev_b32 v{v_a0+2}, 1, v{v_a0}")
        k(f"v_lshl_add_u32 v{v_a0+2}, v{v_a0+2}, 8, v{v_a0+1}")
        k(f"v_and_b32 v{v_a0}, 1, v{v_a0}")
        k(f"v_lshl_add_u32 v{v_oa+i}, v{v_a0}, 3, v{v_a0+2}")
    k(f"v_cmp_eq_u32 vcc, 0, v{v_half}")
    k(f"v_mov_b32 v{v_a0}, 0x7ffffff8")
    k.nop(1)
    k(f"v_cndmask_b32 v{v_oa+2}, v{v_a0}, v{v_oa+2}, vcc")
    k("s_waitcnt lgkmcnt(0)")
    k("s_barrier")
    for i in range(3):
        k(f"ds_read_b128 {vr(OB+4*i,4)}, v{t1} offset:{i*1024}")
    k(f"ds_read_b32 v{OB+12}, v{t3} offset:3072")
    k("s_waitcnt lgkmcnt(0)")
    k(f"v_add_f32 v{OA+12}, v{OA+12}, v{OB+12}")
    for i in range(12):
        k(f"v_add_f32 v{OA+i}, v{OA+i}, v{OB+i}")
    k(f"v_cmp_nle_f32 vcc, {hex(f2u(2.0**-64))}, v{OA+12}")
    k(f"s_mov_b64 s[{s_a}:{s_a+1}], vcc")
    k(f"v_cmp_nge_f32 vcc, {hex(f2u(2.0**64))}, v{OA+12}")
    k.nop(2)
    k(f"s_or_b64 vcc, vcc, s[{s_a}:{s_a+1}]")
    k("s_cbranch_vccnz k2_fallback")
    k.label("k2_final")
    k(f"v_rcp_f32 v{t3}, v{OA+12}")
    k.nop(1)
    for i in range(12):
        k(f"v_mul_f32 v{OA+i}, v{OA+i}, v{t3}")
    for i in range(6):
        k(f"v_cvt_pk_bf16_f32 v{PA+i}, v{OA+2*i}, v{OA+2*i+1}")
    k(f"s_mov_b32 s{s_t}, {WS_O}")
    for i in range(3):
        k(f"buffer_store_dwordx2 {vr(PA+2*i,2)}, v{v_oa+i}, s[{sWS}:{sWS+3}], s{s_t} offen")
    k.stamp_flush(s_w)
    k.label("k2_end")
    k("s_endpgm")
    k.label("k2_fallback")
    k(f"v_mov_b32 v{QA2+2}, 0")
    k(f"v_mov_b32 v{QA2+3}, 0")
    k(f"v_mov_b32 v{mA}, 0xff800000")
    k(f"v_lshlrev_b32 v{v_k2}, 3, v{v_q}")
    k(f"v_mul_u32_u24 v{v_v}, 20, v{v_half}")
    k(f"v_add_u32 v{v_v}, v{v_v}, v{v_q}")
    k(f"v_lshlrev_b32 v{v_v}, 4, v{v_v}")
    k(f"s_mov_b32 s{s_cnt}, 0")
    k.label("k2_fb_max")
    k(f"buffer_load_dwordx4 {vr(KF,4)}, v{v_dma}, s[{sKVs}:{sKVs+3}], s{s_cnt} offen")
    k(f"buffer_load_dwordx2 {vr(KF+4,2)}, v{v_k2}, s[{sKVs}:{sKVs+3}], s{s_cnt} offen offset:2304")
    k("s_waitcnt vmcnt(0)")
    for m in qk(SA, QA1, QA2, 0):
        k(m)
    k.nop(16)
    for i in range(8):
        k(f"v_max3_f32 v{mA}, v{SA+2*i}, v{SA+2*i+1}, v{mA}")
    k(f"s_add_u32 s{s_cnt}, s{s_cnt}, 2560")
    k(f"s_cmp_lt_u32 s{s_cnt}, 163840")
    k("s_cbranch_scc1 k2_fb_max")
    k(f"v_mov_b32 v{t0}, v{mA}")
    k.nop(2)
    k(f"v_permlane32_swap_b32 v{mA}, v{t0}")
    k.nop(2)
    k(f"v_max_f32 v{mA}, v{mA}, v{t0}")
    k(f"v_cmp_eq_u32 vcc, 0, v{v_half}")
    split_m(QA2, mA)
    for i in range(16):
        k(f"v_mov_b32 v{OA+i}, 0")
    k(f"s_mov_b32 s{s_cnt}, 0")
    k.label("k2_fb_main")
    k(f"buffer_load_dwordx4 {vr(KF,4)}, v{v_dma}, s[{sKVs}:{sKVs+3}], s{s_cnt} offen")
    k(f"buffer_load_dwordx2 {vr(KF+4,2)}, v{v_k2}, s[{sKVs}:{sKVs+3}], s{s_cnt} offen offset:2304")
    k(f"s_mov_b64 exec, s[{s_vm}:{s_vm+1}]")
    k(f"buffer_load_dwordx4 {vr(VF,4)}, v{v_v}, s[{sKVs}:{sKVs+3}], s{s_cnt} offen offset:1024")
    k(f"buffer_load_dwordx4 {vr(VF+4,4)}, v{v_v}, s[{sKVs}:{sKVs+3}], s{s_cnt} offen offset:1664")
    k("s_mov_b64 exec, -1")
    k("s_waitcnt vmcnt(0)")
    for m in qk(SA, QA1, QA2, 0):
        k(m)
    k.nop(16)
    for i in range(16):
        k(f"v_exp_f32 v{SA+i}, v{SA+i}")
    k.nop(1)
    for i in range(8):
        k(f"v_cvt_pk_bf16_f32 v{PA+i}, v{SA+2*i}, v{SA+2*i+1}")
    k.nop(2)
    for m in pv(OA, PA, 0):
        k(m)
    k(f"s_add_u32 s{s_cnt}, s{s_cnt}, 2560")
    k(f"s_cmp_lt_u32 s{s_cnt}, 163840")
    k("s_cbranch_scc1 k2_fb_main")
    k.nop(16)
    k("s_branch k2_final")

    k.label("k2_helper")
    sW1, sW2, sPF, sB1 = 24, 28, 44, 48
    s_f, s_src = 37, 58
    s_dst = 60 if not STAMP else 60
    DST = [32, 33, 38, 40]
    RL, RS, CSA, ONE = 32, 64, 80, 96
    v_r32, v_r16 = 8, 9
    k("s_setprio 3")
    k(f"v_mul_u32_u24 v{v_r32}, {8*3072}, v{v_half}")
    k(f"v_lshl_add_u32 v{v_r32}, v{v_q}, 1, v{v_r32}")
    k(f"v_lshrrev_b32 v{t2}, 4, v{v_l}")
    k(f"v_mul_u32_u24 v{v_r16}, {8*1280}, v{t2}")
    k(f"v_and_b32 v{t2}, 15, v{v_l}")
    k(f"v_lshl_add_u32 v{v_r16}, v{t2}, 1, v{v_r16}")
    for i in range(16):
        k(f"v_mov_b32 v{CSA+i}, 0")
    for i in range(4):
        k(f"v_mov_b32 v{ONE+i}, 0x3f803f80")
    k("s_waitcnt lgkmcnt(0)")
    k.srd(sWS, 12, WS_SIZE)
    k.srd(sKVs, 12, 163840, WS_KV)
    k.srd(sW1, 4, 640 * 3072)
    k.srd(sW2, 8, 1536 * 1280)
    k.srd(sB1, 6, 3072)

    def hdma(lo, hi):
        lab = k.newlabel("hd")
        k(f"s_mov_b32 s{s_cnt}, {20480 + lo*1024}")
        k.label(lab)
        k(f"s_mov_b32 m0, s{s_cnt}")
        k(f"s_add_u32 s{s_t}, s{s_cnt}, 81920")
        k(f"buffer_load_dwordx4 v{v_dma}, s[{sKVs}:{sKVs+3}], s{s_cnt} offen lds")
        k(f"s_mov_b32 m0, s{s_t}")
        k(f"s_add_u32 s{s_cnt}, s{s_cnt}, 1024")
        k(f"buffer_load_dwordx4 v{v_dma}, s[{sKVs}:{sKVs+3}], s{s_t} offen lds")
        k(f"s_cmp_lt_u32 s{s_cnt}, {20480 + hi*1024}")
        k(f"s_cbranch_scc1 {lab}")
    k("s_barrier")
    hdma(0, 15)
    k("s_barrier")
    k("s_waitcnt vmcnt(10)")
    hdma(15, 40)
    k("s_waitcnt vmcnt(20)")
    hdma(40, 60)
    k("s_barrier")
    k("s_waitcnt vmcnt(0)")
    k("s_barrier")
    s_T, s_p = 52, 53
    k(f"s_min_u32 s{s_f}, s2, 239")
    sdiv(k, s_T, s_p, s_f, 5, s_t)
    sdiv(k, s_a, s_c, s_T, 3, s_t)
    k(f"s_mul_i32 s{s_src}, s{s_p}, {128*3072}")
    k(f"s_lshl_b32 s{s_t}, s{s_T}, 6")
    k(f"s_add_u32 s{s_src}, s{s_src}, s{s_t}")
    s_d1 = 59
    k(f"s_mul_i32 s{s_d1}, s{s_a}, 40")
    k(f"s_lshl_b32 s{s_t}, s{s_p}, 3")
    k(f"s_add_u32 s{s_d1}, s{s_d1}, s{s_t}")
    k(f"s_mul_i32 s{s_d1}, s{s_d1}, 3")
    k(f"s_add_u32 s{s_d1}, s{s_d1}, s{s_c}")
    k(f"s_lshl_b32 s{s_d1}, s{s_d1}, 10")
    k(f"s_add_u32 s{s_d1}, s{s_d1}, {WS_W1}")

    def w1_loads(b):
        for j in range(4):
            for e in range(8):
                k(f"s_add_u32 s{s_t2}, s{s_src}, {((4*b+j)*16+e)*3072}")
                k(f"buffer_load_ushort v{RL+8*j+e}, v{v_r32}, s[{sW1}:{sW1+3}], s{s_t2} offen")

    def pack():
        k("s_waitcnt vmcnt(0)")
        for j in range(4):
            for e in range(4):
                k(f"v_lshl_or_b32 v{RS+4*j+e}, v{RL+8*j+2*e+1}, 16, v{RL+8*j+2*e}")

    def w1_store(b):
        for j in range(4):
            k(f"s_add_u32 s{s_t2}, s{s_d1}, {(4*b+j)*3072}")
            k(f"buffer_store_dwordx4 {vr(RS+4*j,4)}, v{v_dma}, s[{sWS}:{sWS+3}], s{s_t2} offen")
            k(f"v_mfma_f32_32x32x16_bf16 {vr(CSA,16)}, {vr(ONE,4)}, {vr(RS+4*j,4)}, {vr(CSA,16)}")

    def w2_loads(b):
        for j in range(4):
            k(f"s_add_u32 s{s_f}, s2, {256*(4*b+j)}")
            k(f"s_min_u32 s{s_f}, s{s_f}, 1919")
            k(f"s_lshl_b32 s{DST[j]}, s{s_f}, 10")
            k(f"s_add_u32 s{DST[j]}, s{DST[j]}, {WS_W2}")
            frag_src(k, s_dma, s_f, 5, 48, 32, 1280, 80, 16, s_a, s_b, s_c, s_d, s_t)
            for e in range(8):
                k(f"s_add_u32 s{s_t2}, s{s_dma}, {e*1280}")
                k(f"buffer_load_ushort v{RL+8*j+e}, v{v_r16}, s[{sW2}:{sW2+3}], s{s_t2} offen")

    def w2_store():
        for j in range(4):
            k(f"buffer_store_dwordx4 {vr(RS+4*j,4)}, v{v_dma}, s[{sWS}:{sWS+3}], s{DST[j]} offen")
    w1_loads(0)
    k("s_barrier")
    pack()
    w1_loads(1)
    w1_store(0)
    k("s_barrier")
    pack()
    k(f"v_lshlrev_b32 v{t0}, 1, v{v_q}")
    k(f"s_lshl_b32 s{s_t}, s{s_T}, 6")
    k(f"buffer_load_ushort v{t3}, v{t0}, s[{sB1}:{sB1+3}], s{s_t} offen")
    w2_loads(0)
    w1_store(1)
    k("s_barrier")
    k(f"v_and_b32 v{t1}, 0xffff0000, v{CSA}")
    k(f"v_sub_f32 v{t0}, v{CSA}, v{t1}")
    k(f"v_and_b32 v{t2}, 0xffff0000, v{t0}")
    k(f"v_sub_f32 v{t0}, v{t0}, v{t2}")
    k(f"v_lshrrev_b32 v{t1}, 16, v{t1}")
    k(f"v_lshrrev_b32 v{t2}, 16, v{t2}")
    k(f"v_lshrrev_b32 v{t0}, 16, v{t0}")
    k(f"v_lshlrev_b32 v{v_km}, 4, v{v_q}")
    k(f"s_lshl_b32 s{s_a}, s{s_T}, 10")
    k(f"s_add_u32 s{s_a}, s{s_a}, {WS_EX}")
    k(f"s_mul_i32 s{s_b}, s{s_p}, 3")
    for i, reg in enumerate((t1, t2, t0)):
        k(f"s_add_u32 s{s_c}, s{s_b}, {i}")
        k(f"s_lshr_b32 s{s_d}, s{s_c}, 3")
        k(f"s_lshl_b32 s{s_d}, s{s_d}, 9")
        k(f"s_and_b32 s{s_c}, s{s_c}, 7")
        k(f"s_lshl_b32 s{s_c}, s{s_c}, 1")
        k(f"s_add_u32 s{s_c}, s{s_c}, s{s_d}")
        k(f"s_add_u32 s{s_c}, s{s_c}, s{s_a}")
        k(f"buffer_store_short v{reg}, v{v_km}, s[{sWS}:{sWS+3}], s{s_c} offen")
    pack()
    k(f"buffer_store_short v{t3}, v{v_km}, s[{sWS}:{sWS+3}], s{s_a} offen offset:{512+14}")
    w2_store()
    k.nop(2)
    w2_loads(1)
    k("s_barrier")
    pack()
    w2_store()
    if not NOPF:
        for (off, K_) in ((WS_H1, 1536), (WS_H, 640), (WS_O, 640)):
            slab = 256 * K_ * 2
            k(f"s_and_b32 s{s_a}, s2, 7")
            k(f"s_mul_i32 s{s_a}, s{s_a}, {slab}")
            k(f"s_add_u32 s14, s12, s{s_a}")
            k("s_addc_u32 s15, s13, 0")
            helper_prefetch(k, sPF, 14, off, slab, v_l, t0, t1, s_t, s_t2)
        helper_prefetch(k, sPF, 12, WS_WO, 800 * 1024, v_l, t0, t1, s_t, s_t2)
        k("s_barrier")
        k("s_barrier")
    k("s_endpgm")
    return k.text(NV), "k2_kernel", (256, 576, 163840)


def gen_g16(name, Kdim):
    k = Kern(name + "_kernel")
    NCH = Kdim // 128
    PD = PD16
    R, RX, D = PD + 2, PD + 1, 8
    sWS, sX2, sB, sO = 20, 24, 28, 44
    s_tb, s_cb, s_w, s_t, s_t2, s_off, s_xoff, s_l = 32, 33, 34, 35, 36, 37, 38, 39
    s_hoff, s_rmoff = 40, 41
    v_l, v_idx, v_g = 1, 2, 3
    v_x = 4
    v_a2 = 5
    v_st = 6
    v_s1, v_s2 = 8, 9
    v_rm = 11
    t0, t1, t2, t3 = 12, 13, 14, 15
    RES = 20
    BIA = 30
    AF = 40
    ACC = 80
    XB = 100
    NV = XB + RX * 16
    WSW = WS_WO if name == "k3" else WS_W2
    helper = False
    k("s_cmp_ge_u32 s2, 256")
    k(f"s_cbranch_scc1 {name}_end")
    k.stamp_init()
    k(f"s_load_dwordx2 s[12:13], s[0:1], {KA['ws']}")
    if name == "k3":
        k(f"s_load_dwordx2 s[6:7], s[0:1], {KA['x']}")
    else:
        k(f"s_load_dwordx4 s[8:11], s[0:1], {KA['b2']}")
    wave_lane_setup(k, s_w, v_l)
    if helper:
        k(f"s_cmp_eq_u32 s{s_w}, 4")
        k(f"s_cbranch_scc1 {name}_helper")
    decode_tb_cb(k, s_tb, s_cb, s_t, s_t2)
    k(f"v_lshlrev_b32 v{v_x}, 4, v{v_l}")
    k(f"s_lshl_b32 s{s_t}, s{s_tb}, 2")
    k(f"s_add_u32 s{s_t}, s{s_t}, s{s_w}")
    k(f"s_mul_i32 s{s_xoff}, s{s_t}, {Kdim*32}")
    k(f"s_add_u32 s{s_xoff}, s{s_xoff}, {WS_O if name == 'k3' else WS_H1}")
    k(f"s_mul_i32 s{s_off}, s{s_cb}, {Kdim*160}")
    k(f"s_mul_i32 s{s_l}, s{s_w}, 5120")
    k(f"s_add_u32 s{s_off}, s{s_off}, s{s_l}")
    k(f"s_add_u32 s{s_off}, s{s_off}, {WSW}")
    k("s_waitcnt lgkmcnt(0)")
    k.srd(sWS, 12, WS_SIZE)

    def chunk_loads(c):
        fs = []
        for i in range(4):
            def fx(i=i, c=c):
                k(f"s_add_u32 s{s_t2}, s{s_xoff}, {c*4096}")
                k.vmissue(f"buffer_load_dwordx4 {vr(XB+(c%RX)*16+4*i,4)}, v{v_x}, s[{sWS}:{sWS+3}], s{s_t2} offen offset:{i*1024}", f"c{c}")
            fs.append(fx)
        for i in range(5):
            def fw(i=i, c=c):
                k(f"s_add_u32 m0, s{s_l}, {(c%R)*20480 + i*1024}")
                k(f"s_add_u32 s{s_t2}, s{s_off}, {c*20480 + i*1024}")
                k.vmissue(f"buffer_load_dwordx4 v{v_x}, s[{sWS}:{sWS+3}], s{s_t2} offen lds", f"c{c}")
            fs.append(fw)
        return fs
    for c in range(PD):
        for f in chunk_loads(c):
            f()
    if name == "k3":
        k.srd(sX2, 6, 2048 * 1280)
    else:
        k.srd(sB, 8, 1280)
        k.srd(sO, 10, 2048 * 1280)
    k(f"v_and_b32 v{v_idx}, 15, v{v_l}")
    k(f"v_lshrrev_b32 v{v_g}, 4, v{v_l}")
    k(f"v_add_u32 v{v_a2}, {3*20480}, v{v_x}")
    for i in range(20):
        k(f"v_mov_b32 v{ACC+i}, 0")
    k(f"s_lshl_b32 s{s_t}, s{s_tb}, 6")
    k(f"s_lshl_b32 s{s_t2}, s{s_w}, 4")
    k(f"s_add_u32 s{s_t}, s{s_t}, s{s_t2}")
    k(f"v_add_u32 v{t0}, s{s_t}, v{v_idx}")
    k(f"v_mul_u32_u24 v{v_rm}, 1280, v{t0}")
    k(f"v_lshl_add_u32 v{v_rm}, v{v_g}, 3, v{v_rm}")
    k(f"v_lshlrev_b32 v{v_st}, 6, v{t0}")
    v_h = t3
    k(f"v_lshrrev_b32 v{t1}, 5, v{t0}")
    k(f"v_mul_u32_u24 v{v_h}, {640*64}, v{t1}")
    k(f"v_and_b32 v{t1}, 31, v{t0}")
    k(f"v_lshl_add_u32 v{v_h}, v{t1}, 4, v{v_h}")
    k(f"v_lshrrev_b32 v{t1}, 1, v{v_g}")
    k(f"v_lshl_add_u32 v{v_h}, v{t1}, 9, v{v_h}")
    k(f"v_and_b32 v{t1}, 1, v{v_g}")
    k(f"v_lshl_add_u32 v{v_h}, v{t1}, 3, v{v_h}")
    k(f"s_mul_i32 s{s_hoff}, s{s_cb}, 5120")
    k(f"s_add_u32 s{s_hoff}, s{s_hoff}, {WS_H}")
    k(f"s_mul_i32 s{s_rmoff}, s{s_cb}, 160")
    k(f"v_add_u32 v{t2}, 4096, v{v_h}")
    k(f"v_lshlrev_b32 v{t1}, 3, v{v_g}")
    k(f"v_mov_b32 v{v_s1}, 0")
    k(f"v_mov_b32 v{v_s2}, 0")
    k(f"v_mov_b32 v7, 0x3f803f80")

    def epi_loads():
        fs = []
        for t in range(5):
            if name == "k3":
                fs.append(lambda t=t: k.vmissue(f"buffer_load_dwordx2 {vr(RES+2*t,2)}, v{v_rm}, s[{sX2}:{sX2+3}], s{s_rmoff} offen offset:{t*32}", "epi"))
            else:
                if t < 4:
                    fs.append(lambda t=t: k.vmissue(f"buffer_load_dwordx2 {vr(RES+2*t,2)}, v{v_h}, s[{sWS}:{sWS+3}], s{s_hoff} offen offset:{t*1024}", "epi"))
                else:
                    fs.append(lambda t=t: k.vmissue(f"buffer_load_dwordx2 {vr(RES+2*t,2)}, v{t2}, s[{sWS}:{sWS+3}], s{s_hoff} offen", "epi"))
                fs.append(lambda t=t: k.vmissue(f"buffer_load_dwordx2 {vr(BIA+2*t,2)}, v{t1}, s[{sB}:{sB+3}], s{s_rmoff} offen offset:{t*32}", "epi"))
        return fs
    spr = Sprinkle()
    k.stamp()

    def read_fn(i, buf):
        c, r = divmod(i, 20)
        slot = c % R
        base, off = (v_x, slot * 20480) if slot < 3 else (v_a2, (slot - 3) * 20480)
        k(f"ds_read_b128 {vr(AF+4*buf,4)}, v{base} offset:{off + r*1024}")

    def mfma_fn(i, buf):
        c, r = divmod(i, 20)
        s, t = divmod(r, 5)
        X = XB + (c % RX) * 16 + 4 * s
        k(f"v_mfma_f32_16x16x32_bf16 {vr(ACC+4*t,4)}, {vr(AF+4*buf,4)}, {vr(X,4)}, {vr(ACC+4*t,4)}")

    def mk_sync(c):
        def f():
            k.vmwait(f"c{c}")
            k("s_barrier")
            if c in (0, 1, NCH - 1):
                k.stamp()
        return f
    sync_at = {20 * c: mk_sync(c) for c in range(NCH)}

    def side(i):
        c, r = divmod(i, 20)
        if r == 0:
            if c + PD < NCH:
                for f in chunk_loads(c + PD):
                    spr.add(f)
            elif c + PD == NCH:
                for f in epi_loads():
                    spr.add(f)
        spr.emit(1)
    gemm_pipeline(k, 20 * NCH, D, lambda j: 1, read_fn, mfma_fn, sync_at, side)
    assert not spr.q
    k.stamp()
    k.vmwait("epi")
    k.nop(6)
    T = AF
    for t in range(5):
        a = ACC + 4 * t
        k(f"v_cvt_pk_bf16_f32 v{T}, v{a}, v{a+1}")
        k(f"v_cvt_pk_bf16_f32 v{T+1}, v{a+2}, v{a+3}")
        k(f"v_lshlrev_b32 v{a}, 16, v{T}")
        k(f"v_and_b32 v{a+1}, 0xffff0000, v{T}")
        k(f"v_lshlrev_b32 v{a+2}, 16, v{T+1}")
        k(f"v_and_b32 v{a+3}, 0xffff0000, v{T+1}")
        if name == "k5":
            k(f"v_lshlrev_b32 v{T+2}, 16, v{BIA+2*t}")
            k(f"v_and_b32 v{T+3}, 0xffff0000, v{BIA+2*t}")
            k(f"v_lshlrev_b32 v{T+4}, 16, v{BIA+2*t+1}")
            k(f"v_and_b32 v{T+5}, 0xffff0000, v{BIA+2*t+1}")
            for r in range(4):
                k(f"v_add_f32 v{a+r}, v{a+r}, v{T+2+r}")
            k(f"v_cvt_pk_bf16_f32 v{T}, v{a}, v{a+1}")
            k(f"v_cvt_pk_bf16_f32 v{T+1}, v{a+2}, v{a+3}")
            k(f"v_lshlrev_b32 v{a}, 16, v{T}")
            k(f"v_and_b32 v{a+1}, 0xffff0000, v{T}")
            k(f"v_lshlrev_b32 v{a+2}, 16, v{T+1}")
            k(f"v_and_b32 v{a+3}, 0xffff0000, v{T+1}")
        k(f"v_lshlrev_b32 v{T+2}, 16, v{RES+2*t}")
        k(f"v_and_b32 v{T+3}, 0xffff0000, v{RES+2*t}")
        k(f"v_lshlrev_b32 v{T+4}, 16, v{RES+2*t+1}")
        k(f"v_and_b32 v{T+5}, 0xffff0000, v{RES+2*t+1}")
        for r in range(4):
            k(f"v_add_f32 v{a+r}, v{a+r}, v{T+2+r}")
        k(f"v_cvt_pk_bf16_f32 v{T+8+2*t}, v{a}, v{a+1}")
        k(f"v_cvt_pk_bf16_f32 v{T+9+2*t}, v{a+2}, v{a+3}")
        if name == "k3":
            if t < 4:
                k(f"buffer_store_dwordx2 {vr(T+8+2*t,2)}, v{v_h}, s[{sWS}:{sWS+3}], s{s_hoff} offen offset:{t*1024}")
            else:
                k(f"buffer_store_dwordx2 {vr(T+8+2*t,2)}, v{t2}, s[{sWS}:{sWS+3}], s{s_hoff} offen")
        else:
            k(f"buffer_store_dwordx2 {vr(T+8+2*t,2)}, v{v_rm}, s[{sO}:{sO+3}], s{s_rmoff} offen offset:{t*32}")
    if name == "k3":
        for i in range(10):
            k(f"v_dot2_f32_bf16 v{v_s1}, v{T+8+i}, v7, v{v_s1}")
            k(f"v_dot2_f32_bf16 v{v_s2}, v{T+8+i}, v{T+8+i}, v{v_s2}")
        chs = []
        for v, tt in ((v_s1, t0), (v_s2, t1)):
            chs.append([(f"v_mov_b32 v{tt}, v{v}", 3), (f"v_permlane16_swap_b32 v{v}, v{tt}", 2), (f"v_add_f32 v{v}, v{v}, v{tt}", 1),
                        (f"v_mov_b32 v{tt}, v{v}", 0), (f"v_permlane32_swap_b32 v{v}, v{tt}", 2), (f"v_add_f32 v{v}, v{v}, v{tt}", 1)])
        k.nop(3)
        interleave(k, chs)
        k(f"s_lshl_b32 s{s_t}, s{s_cb}, 3")
        k(f"s_add_u32 s{s_t}, s{s_t}, {WS_ST}")
        k(f"buffer_store_dwordx2 {vr(v_s1,2)}, v{v_st}, s[{sWS}:{sWS+3}], s{s_t} offen")
    k.stamp_flush(s_w)
    k.label(f"{name}_end")
    k("s_endpgm")
    if helper:
        k.label(f"{name}_helper")
        slab = 256 * Kdim * 2
        k(f"s_and_b32 s{s_l}, s2, 7")
        k(f"s_mul_i32 s{s_l}, s{s_l}, {slab}")
        k("s_waitcnt lgkmcnt(0)")
        k(f"s_add_u32 s14, s12, s{s_l}")
        k("s_addc_u32 s15, s13, 0")
        helper_prefetch(k, 48, 14, WS_O if name == "k3" else WS_H1, slab, v_l, t0, t1, s_t, s_t2)
        k("s_barrier")
        if name == "k3":
            helper_prefetch(k, 52, 12, WS_W1, 1920 * 1024, v_l, t0, t1, s_t, s_t2)
        for c in range(NCH - 1):
            k("s_barrier")
        k("s_endpgm")
    return k.text(NV), name + "_kernel", (256, 320 if helper else 256, R * 20480)


def gen_k4():
    k = Kern("k4_kernel")
    CK = 4
    NCH = 40 // CK
    PD = PD32
    R, RX, D = PD + 2, PD + 1, 6
    CB = CK * 3 * 1024
    sWS = 20
    s_tb, s_cb, s_w, s_t, s_t2, s_off, s_xoff, s_l = 32, 33, 34, 35, 36, 37, 38, 39
    v_l, v_q, v_half = 1, 2, 3
    v_x = 4
    v_x2 = 5
    t0, t1, t2, t3 = 12, 13, 14, 15
    BX = 16
    ST = 20
    AF = 28
    EXA = 56
    E = 68
    ACC = 80
    XB = 128
    NV = XB + RX * 16
    helper = False
    k("s_cmp_ge_u32 s2, 256")
    k("s_cbranch_scc1 k4_end")
    k.stamp_init()
    k(f"s_load_dwordx2 s[12:13], s[0:1], {KA['ws']}")
    wave_lane_setup(k, s_w, v_l)
    if helper:
        k(f"s_cmp_eq_u32 s{s_w}, 4")
        k("s_cbranch_scc1 k4_helper")
    k(f"s_and_b32 s{s_t}, s2, 7")
    k(f"s_lshl_b32 s{s_tb}, s{s_t}, 1")
    k(f"s_bfe_u32 s{s_t}, s2, 0x10003")
    k(f"s_add_u32 s{s_tb}, s{s_tb}, s{s_t}")
    k(f"s_lshr_b32 s{s_cb}, s2, 4")
    k(f"v_lshlrev_b32 v{v_x}, 4, v{v_l}")
    k(f"s_lshl_b32 s{s_t}, s{s_tb}, 2")
    k(f"s_add_u32 s{s_t}, s{s_t}, s{s_w}")
    k(f"s_mul_i32 s{s_xoff}, s{s_t}, {640*64}")
    k(f"s_add_u32 s{s_xoff}, s{s_xoff}, {WS_H}")
    k(f"s_mul_i32 s{s_off}, s{s_cb}, {640*192}")
    k(f"s_mul_i32 s{s_l}, s{s_w}, {CB//4}")
    k(f"s_add_u32 s{s_off}, s{s_off}, s{s_l}")
    k(f"s_add_u32 s{s_off}, s{s_off}, {WS_W1}")
    k("s_waitcnt lgkmcnt(0)")
    k.srd(sWS, 12, WS_SIZE)

    def chunk_loads(c):
        fs = []
        for i in range(CK):
            def fx(i=i, c=c):
                k(f"s_add_u32 s{s_t2}, s{s_xoff}, {c*CK*1024}")
                k.vmissue(f"buffer_load_dwordx4 {vr(XB+((c%RX)*CK+i)*4,4)}, v{v_x}, s[{sWS}:{sWS+3}], s{s_t2} offen offset:{i*1024}", f"c{c}")
            fs.append(fx)
        for i in range(CB // 4096):
            def fw(i=i, c=c):
                k(f"s_add_u32 m0, s{s_l}, {(c%R)*CB + i*1024}")
                k(f"s_add_u32 s{s_t2}, s{s_off}, {c*CB + i*1024}")
                k.vmissue(f"buffer_load_dwordx4 v{v_x}, s[{sWS}:{sWS+3}], s{s_t2} offen lds", f"c{c}")
            fs.append(fw)
        return fs
    for c in range(PD):
        for f in chunk_loads(c):
            f()
    k(f"v_and_b32 v{v_q}, 31, v{v_l}")
    k(f"v_lshrrev_b32 v{v_half}, 5, v{v_l}")
    k(f"v_add_u32 v{v_x2}, {5*CB}, v{v_x}")
    for i in range(48):
        k(f"v_mov_b32 v{ACC+i}, 0")
    k(f"s_lshl_b32 s{s_t}, s{s_tb}, 7")
    k(f"s_lshl_b32 s{s_t2}, s{s_w}, 5")
    k(f"s_add_u32 s{s_t}, s{s_t}, s{s_t2}")
    k(f"v_add_u32 v{t1}, s{s_t}, v{v_q}")
    k(f"v_lshlrev_b32 v{t3}, 6, v{t1}")
    k(f"v_lshl_add_u32 v{t3}, v{v_half}, 5, v{t3}")
    k(f"v_lshrrev_b32 v{t2}, 4, v{t1}")
    k(f"v_mul_u32_u24 v{t2}, {1536*32}, v{t2}")
    k(f"v_and_b32 v{t1}, 15, v{t1}")
    k(f"v_lshl_add_u32 v{t2}, v{t1}, 4, v{t2}")
    k(f"v_lshl_add_u32 v{t2}, v{v_half}, 8, v{t2}")
    s_so, s_ex, s_st = 40, 41, 42
    k(f"s_mul_i32 s{s_so}, s{s_cb}, {12*256}")
    k(f"s_add_u32 s{s_so}, s{s_so}, {WS_H1}")
    k(f"s_mul_i32 s{s_ex}, s{s_cb}, 3072")
    k(f"s_add_u32 s{s_ex}, s{s_ex}, {WS_EX}")
    k(f"s_mov_b32 s{s_st}, {WS_ST}")

    def epi_loads():
        fs = []
        for i in range(2):
            fs.append(lambda i=i: k.vmissue(f"buffer_load_dwordx4 {vr(ST+4*i,4)}, v{t3}, s[{sWS}:{sWS+3}], s{s_st} offen offset:{i*16}", "epi"))
        for t in range(3):
            fs.append(lambda t=t: k.vmissue(f"buffer_load_dwordx4 {vr(EXA+4*t,4)}, v{v_x}, s[{sWS}:{sWS+3}], s{s_ex} offen offset:{t*1024}", "epi"))
        return fs
    spr = Sprinkle()
    k.stamp()
    UPC = CK * 3
    v_mean, v_rstd, v_sum, v_sq = E, E + 1, E + 2, E + 3

    def stats_code():
        kk = Kern("tmp")
        kk(f"v_add_f32 v{v_sum}, v{ST}, v{ST+2}")
        kk(f"v_add_f32 v{v_sq}, v{ST+1}, v{ST+3}")
        kk(f"v_add_f32 v{ST+4}, v{ST+4}, v{ST+6}")
        kk(f"v_add_f32 v{ST+5}, v{ST+5}, v{ST+7}")
        kk(f"v_add_f32 v{v_sum}, v{v_sum}, v{ST+4}")
        kk(f"v_add_f32 v{v_sq}, v{v_sq}, v{ST+5}")
        xsum_halves(kk, v_sum, t0)
        xsum_halves(kk, v_sq, t0)
        ln_stats(kk, v_sum, v_sq, v_mean, v_rstd, t0, t1)
        kk(f"v_xor_b32 v{t0}, 0x80000000, v{v_mean}")
        kk(f"v_lshrrev_b32 v{BX}, 16, v{t0}")
        kk(f"v_or_b32 v{BX}, v{BX}, v{t0}")
        kk(f"v_mov_b32 v{BX+1}, v{BX}")
        kk(f"v_mov_b32 v{BX+2}, v{BX}")
        kk(f"v_lshrrev_b32 v{t0}, 16, v{t0}")
        kk(f"v_or_b32 v{t0}, v{t0}, v{t1}")
        kk(f"v_cmp_eq_u32 vcc, 0, v{v_half}")
        kk.nop(2)
        kk(f"v_cndmask_b32 v{BX+3}, v{t0}, v{BX}, vcc")
        kk(f"v_mul_f32 v{v_rstd}, v{v_rstd}, v{v_rstd}")
        kk(f"v_mov_b32 v{v_rstd+1}, v{v_rstd}")
        return [l.strip() for l in kk.L]

    def read_fn(i, buf):
        c, r = divmod(i, UPC)
        slot = c % R
        base, off = (v_x, slot * CB) if slot < 5 else (v_x2, (slot - 5) * CB)
        k(f"ds_read_b128 {vr(AF+4*buf,4)}, v{base} offset:{off + r*1024}")

    def mfma_fn(i, buf):
        c, r = divmod(i, UPC)
        s, t = divmod(r, 3)
        X = XB + ((c % RX) * CK + s) * 4
        k(f"v_mfma_f32_32x32x16_bf16 {vr(ACC+16*t,16)}, {vr(AF+4*buf,4)}, {vr(X,4)}, {vr(ACC+16*t,16)}")

    def mk_sync(c):
        def f():
            k.vmwait(f"c{c}")
            k("s_barrier")
            if c in (0, 1, NCH - 1):
                k.stamp()
        return f
    sync_at = {UPC * c: mk_sync(c) for c in range(NCH)}
    spr2 = Sprinkle()

    def side(i):
        c, r = divmod(i, UPC)
        if r == 0:
            if c + PD < NCH:
                for f in chunk_loads(c + PD):
                    spr.add(f)
            elif c + PD == NCH:
                for f in epi_loads():
                    spr.add(f)
            if c == NCH - 1:
                k.vmwait("epi")
                for l in stats_code():
                    spr2.add(lambda l=l: k(l))
        spr.emit(1)
        spr2.emit(4)
    gemm_pipeline(k, UPC * NCH, D, lambda j: 1, read_fn, mfma_fn, sync_at, side)
    assert not spr.q
    spr2.emit(1000)
    k.stamp()
    k.nop(2)
    for t in range(3):
        k(f"v_mfma_f32_32x32x16_bf16 {vr(ACC+16*t,16)}, {vr(EXA+4*t,4)}, {vr(BX,4)}, {vr(ACC+16*t,16)}")
    k.nop(10)
    R2 = E + 4
    k(f"v_mov_b32 v{R2}, v{v_rstd}")
    k(f"v_mov_b32 v{R2+1}, v{v_rstd}")
    TM = XB
    for t in range(3):
        for qp in range(2):
            O4 = XB + 32 + (t * 2 + qp) * 4
            for qq in range(2):
                z = ACC + 16 * t + 8 * qp + 4 * qq
                m = TM + 4 * qq
                for r in range(4):
                    k(f"v_max_f32 v{m+r}, 0, v{z+r}")
                k(f"v_pk_mul_f32 {vr(z,2)}, {vr(z,2)}, {vr(R2,2)}")
                k(f"v_pk_mul_f32 {vr(z+2,2)}, {vr(z+2,2)}, {vr(R2,2)}")
                k(f"v_pk_mul_f32 {vr(z,2)}, {vr(z,2)}, {vr(m,2)}")
                k(f"v_pk_mul_f32 {vr(z+2,2)}, {vr(z+2,2)}, {vr(m+2,2)}")
                k(f"v_cvt_pk_bf16_f32 v{O4+2*qq}, v{z}, v{z+1}")
                k(f"v_cvt_pk_bf16_f32 v{O4+2*qq+1}, v{z+2}, v{z+3}")
            k.nop(2)
            k(f"v_permlane32_swap_b32 v{O4}, v{O4+2}")
            k(f"v_permlane32_swap_b32 v{O4+1}, v{O4+3}")
            k(f"buffer_store_dwordx4 {vr(O4,4)}, v{t2}, s[{sWS}:{sWS+3}], s{s_so} offen offset:{(4*t+2*qp)*256}")
    k.stamp_flush(s_w)
    k.label("k4_end")
    k("s_endpgm")
    if helper:
        k.label("k4_helper")
        slab = 256 * 640 * 2
        k(f"s_and_b32 s{s_l}, s2, 7")
        k(f"s_mul_i32 s{s_l}, s{s_l}, {slab}")
        k("s_waitcnt lgkmcnt(0)")
        k(f"s_add_u32 s14, s12, s{s_l}")
        k("s_addc_u32 s15, s13, 0")
        helper_prefetch(k, 48, 14, WS_H, slab, v_l, t0, t1, s_t, s_t2)
        k("s_barrier")
        k("s_barrier")
        helper_prefetch(k, 52, 12, WS_W2, 1920 * 1024, v_l, t0, t1, s_t, s_t2)
        for c in range(NCH - 2):
            k("s_barrier")
        k("s_endpgm")
    return k.text(NV), "k4_kernel", (256, 320 if helper else 256, R * CB)


def gen_kp(order):
    k = Kern("kp_kernel")
    k("s_cmp_ge_u32 s2, 256")
    k("s_cbranch_scc1 kp_end")
    k(f"s_load_dwordx2 s[12:13], s[0:1], {KA['ws']}")
    k("v_and_b32 v1, 63, v0")
    k("s_waitcnt lgkmcnt(0)")
    for ch in order:
        off, nb = {"o": (WS_WO, 800 * 1024), "1": (WS_W1, 1920 * 1024), "2": (WS_W2, 1920 * 1024)}[ch]
        helper_prefetch(k, 48, 12, off, nb, 1, 4, 5, 35, 36)
        k("s_waitcnt vmcnt(0)")
    k.label("kp_end")
    k("s_endpgm")
    return k.text(16), "kp_kernel", (256, 64, 0)


def main(outpath):
    ks = [gen_k1(), gen_k2(), gen_g16("k3", 640), gen_k4(), gen_g16("k5", 1536)]
    if os.environ.get("EMPTY"):
        e = Kern("ke_kernel")
        e("s_endpgm")
        for _ in range(int(os.environ["EMPTY"])):
            pass
        ks.append((e.text(8), "ke_kernel", (256, 64, 0)))
    if os.environ.get("KP"):
        ks.insert(2, gen_kp(os.environ["KP"]))
    hdr = open("cdna_kernels/" + NAME + ".s.ref").read().split("\n")
    head = [l for l in hdr if l.startswith(";") and "@launch" not in l and "Override" not in l and "grid=ceil" not in l]
    s = "\n".join(head) + "\n"
    for (_, name, (g, b, lds)) in ks:
        for _rep in range(2 if name[:2] in os.environ.get("DUP", "") else 1):
            s += f"; @launch kernel={name} grid=({g},1,1) block=({b},1,1) lds={lds}\n"
    s += '.amdgcn_target "amdgcn-amd-amdhsa--gfx950"\n.text\n'
    for ((txt, kd), _, _) in ks:
        s += txt
    s += "text_end:\n"
    s += '.section .rodata,"a"\n'
    for ((txt, kd), _, _) in ks:
        s += kd
    open(outpath, "w").write(s)


if __name__ == "__main__":
    main(sys.argv[1] if len(sys.argv) > 1 else "cdna_kernels/" + NAME + ".s")
```

```python
import sys, struct

NAME = "sequential_preLN__grouped_kv_mqa__dense_activation_squared_relu__prompt"

KA = dict(x=0, wq=8, wk=16, wv=24, wo=32, bx=40, w1=48, b1=56, w2=64, b2=72, out=80, dbg=88, ws=96)
WS_Q = 0x000000
WS_KV = 0x300000
WS_KMAX = 0x340000
WS_O = 0x400000
WS_H = 0x700000
WS_H1 = 0xA00000
WS_SIZE = 0x1200000

def f2u(f):
    return struct.unpack("<I", struct.pack("<f", f))[0]

import os
STAMP = int(os.environ.get("STAMP", "0"))
STAMP_WG = int(os.environ.get("STAMP_WG", "0"))
STAMP_WAVE = int(os.environ.get("STAMP_WAVE", "0"))
K2VAR = os.environ.get("K2VAR", "")
QSCALE = (20 ** -0.5) * 1.4426950408889634


class Kern:
    def __init__(self, name):
        self.name = name
        self.L = []
        self.vm = []
        self.uid = 0

    def __call__(self, s):
        for line in s.strip().split("\n"):
            self.L.append("    " + line.strip())

    def label(self, l):
        self.L.append(f"{l}:")

    def newlabel(self, base="L"):
        self.uid += 1
        return f"{self.name}_{base}{self.uid}"

    def vmissue(self, s, tag):
        self(s)
        self.vm.append(tag)

    def vmwait(self, tags, extra=""):
        if not isinstance(tags, (list, tuple, set)):
            tags = [tags]
        last = -1
        for i, t in enumerate(self.vm):
            if t in tags:
                last = i
        n = len(self.vm) - 1 - last
        assert n <= 63, n
        self(f"s_waitcnt vmcnt({n}) {extra}".strip())
        self.vm = self.vm[last + 1:]

    def nop(self, n):
        while n > 0:
            k = min(n, 16)
            self(f"s_nop {k-1}")
            n -= k

    def srd(self, d, base, nbytes, off=0):
        if off:
            self(f"s_add_u32 s{d}, s{base}, {hex(off)}")
            self(f"s_addc_u32 s{d+1}, s{base+1}, 0")
        else:
            self(f"s_mov_b32 s{d}, s{base}")
            self(f"s_mov_b32 s{d+1}, s{base+1}")
        self(f"s_mov_b32 s{d+2}, {hex(nbytes)}")
        self(f"s_mov_b32 s{d+3}, 0x00020000")

    def stamp_init(self):
        if not STAMP: return
        self.nst = 0
        if STAMP == 3:
            self(f"s_load_dwordx2 s[90:91], s[0:1], {KA['ws']}")
            self("s_memrealtime s[92:93]")
            return
        self(f"s_load_dwordx2 s[90:91], s[0:1], {KA['dbg']}")
        self("s_memrealtime s[92:93]")
        self.stamp()

    def stamp(self):
        if not STAMP or STAMP == 3: return
        assert self.nst < 14
        self(f"s_memtime s[{60+2*self.nst}:{61+2*self.nst}]")
        self.nst += 1

    def stamp_flush(self, s_w):
        if not STAMP: return
        if STAMP == 3:
            kid = int(self.name[1])
            self("s_waitcnt vmcnt(0)")
            self("s_memrealtime s[94:95]")
            self("s_waitcnt lgkmcnt(0)")
            self("s_add_u32 s96, s90, 0x1f00000")
            self("s_addc_u32 s97, s91, 0")
            self("s_mov_b32 s98, 0x100000")
            self("s_mov_b32 s99, 0x00020000")
            self(f"s_lshl_b32 s100, s2, 4")
            self(f"s_add_u32 s100, s100, s{s_w}")
            self(f"s_lshl_b32 s100, s100, 3")
            self(f"s_add_u32 s100, s100, {kid*0x10000}")
            self("v_mov_b32 v6, s92")
            self("v_mov_b32 v7, s94")
            self("v_mov_b32 v5, 0")
            self("buffer_store_dwordx2 v[6:7], v5, s[96:99], s100 offen")
            return
        self.stamp()
        self("s_memrealtime s[94:95]")
        self("s_waitcnt lgkmcnt(0) vmcnt(0)")
        lab = self.newlabel("st")
        self(f"s_cmp_lg_u32 s2, {STAMP_WG}")
        self(f"s_cbranch_scc1 {lab}")
        if STAMP == 1:
            self(f"s_cmp_lg_u32 s{s_w}, {STAMP_WAVE}")
            self(f"s_cbranch_scc1 {lab}")
        self("s_mov_b32 s96, s90")
        self("s_mov_b32 s97, s91")
        self("s_mov_b32 s98, 256")
        self("s_mov_b32 s99, 0x00020000")
        if STAMP == 1:
            for i in range(1, self.nst):
                self(f"s_sub_u32 s100, s{60+2*i}, s60")
                self(f"v_mov_b32 v1, s100")
                self(f"v_mov_b32 v2, {4*i}")
                self("buffer_store_dword v1, v2, s[96:99], 0 offen")
            self("s_sub_u32 s100, s94, s92")
            self("v_mov_b32 v1, s100")
            self("v_mov_b32 v2, 60")
            self("buffer_store_dword v1, v2, s[96:99], 0 offen")
        else:
            self(f"s_lshl_b32 s101, s{s_w}, 5")
            for i in range(1, min(self.nst, 8)):
                self(f"s_sub_u32 s100, s{60+2*i}, s60")
                self(f"v_mov_b32 v1, s100")
                self(f"v_mov_b32 v2, {4*(i-1)}")
                self("buffer_store_dword v1, v2, s[96:99], s101 offen")
            self("v_mov_b32 v1, s60")
            self("v_mov_b32 v2, 28")
            self("buffer_store_dword v1, v2, s[96:99], s101 offen")
        self.label(lab)

    def text(self, nv, na=0, ns=102):
        acc = (nv + 3) // 4 * 4
        tot = acc + na if na else nv
        s = f".globl {self.name}\n.p2align 8\n.type {self.name},@function\n{self.name}:\n"
        s += "\n".join(self.L) + "\n"
        kd = f""".p2align 6
.amdhsa_kernel {self.name}
  .amdhsa_next_free_vgpr {tot}
  .amdhsa_next_free_sgpr {ns}
  .amdhsa_accum_offset {acc}
  .amdhsa_group_segment_fixed_size 0
  .amdhsa_kernarg_size 104
  .amdhsa_user_sgpr_count 2
  .amdhsa_user_sgpr_kernarg_segment_ptr 1
  .amdhsa_system_sgpr_workgroup_id_x 1
.end_amdhsa_kernel
"""
        return s, kd


def vr(a, n):
    return f"v[{a}:{a+n-1}]" if n > 1 else f"v{a}"


def ar(a, n):
    return f"a[{a}:{a+n-1}]" if n > 1 else f"a{a}"


def bf16r(k, dst, src):
    k(f"v_cvt_pk_bf16_f32 v{dst}, v{src}, v{src}")
    k(f"v_lshlrev_b32 v{dst}, 16, v{dst}")


def xsum_rows(k, v, t):
    k(f"v_mov_b32 v{t}, v{v}")
    k.nop(2)
    k(f"v_permlane16_swap_b32 v{v}, v{t}")
    k.nop(2)
    k(f"v_add_f32 v{v}, v{v}, v{t}")
    xsum_halves(k, v, t)


def xsum_halves(k, v, t):
    k(f"v_mov_b32 v{t}, v{v}")
    k.nop(2)
    k(f"v_permlane32_swap_b32 v{v}, v{t}")
    k.nop(2)
    k(f"v_add_f32 v{v}, v{v}, v{t}")


def ln_stats(k, vsum, vsq, vmean, vrstd, t0, t1):
    inv = hex(f2u(1.0 / 640))
    k(f"v_mul_f32 v{t0}, {inv}, v{vsum}")
    k(f"v_mul_f32 v{t1}, {inv}, v{vsq}")
    k(f"v_fma_f32 v{t1}, -v{t0}, v{t0}, v{t1}")
    k(f"v_max_f32 v{t1}, 0, v{t1}")
    bf16r(k, vmean, t0)
    bf16r(k, t1, t1)
    k(f"v_add_f32 v{t1}, {hex(f2u(1e-5))}, v{t1}")
    bf16r(k, t1, t1)
    k(f"v_sqrt_f32 v{t1}, v{t1}")
    k.nop(1)
    bf16r(k, t1, t1)
    k(f"v_rcp_f32 v{vrstd}, v{t1}")
    k.nop(1)


def wave_lane_setup(k, s_w, v_l):
    k(f"v_lshrrev_b32 v{v_l}, 6, v0")
    k.nop(1)
    k(f"v_readfirstlane_b32 s{s_w}, v{v_l}")
    k(f"v_and_b32 v{v_l}, 63, v0")


def dma_offsets_160(k, vout, v_l, ld, t0, t1, t2):
    for i in range(5):
        k(f"v_add_u32 v{t0}, {i*64}, v{v_l}")
        k(f"v_mul_u32_u24 v{t1}, 6554, v{t0}")
        k(f"v_lshrrev_b32 v{t1}, 16, v{t1}")
        k(f"v_mul_u32_u24 v{t2}, 10, v{t1}")
        k(f"v_sub_u32 v{t0}, v{t0}, v{t2}")
        k(f"v_lshlrev_b32 v{t0}, 4, v{t0}")
        k(f"v_bfe_u32 v{t2}, v{t1}, 2, 2")
        k(f"v_lshlrev_b32 v{t2}, 3, v{t2}")
        k(f"v_and_b32 v{vout+i}, 3, v{t1}")
        k(f"v_add_u32 v{t2}, v{t2}, v{vout+i}")
        k(f"v_lshrrev_b32 v{t1}, 4, v{t1}")
        k(f"v_lshl_add_u32 v{t2}, v{t1}, 2, v{t2}")
        k(f"v_mul_u32_u24 v{t2}, {ld}, v{t2}")
        k(f"v_add_u32 v{vout+i}, v{t2}, v{t0}")
```

```python
import sys
sys.path.insert(0, "work")
from common import *

WS_WO = 0x1000000
WS_W1 = 0x1100000
WS_W2 = 0x1300000
WS_EX = 0x1500000
WS_ST = 0x1520000
WS_XG = 0x1600000
WS_SIZE = 0x1900000
PD16 = int(os.environ.get("PD16", "2"))
PD32 = int(os.environ.get("PD32", "3"))
NOPF = int(os.environ.get("NOPF", "0"))
PFORDER = os.environ.get("PFORDER", "hOXo")
SC = os.environ.get("SC", "sc1")
SC4 = os.environ.get("SC4", "")
MAP4 = int(os.environ.get("MAP4", "1"))
MAP5 = int(os.environ.get("MAP5", "0"))
ROT = int(os.environ.get("ROT", "0"))
PFT = int(os.environ.get("PFT", "14"))


def gemm_pipeline(k, n, D, nreads, read_fn, mfma_fn, sync_at, side):
    nbuf = D + 1
    for i in range(min(D, n)):
        if i in sync_at:
            sync_at[i]()
        read_fn(i, i % nbuf)
    for i in range(n):
        cnt = sum(nreads(j) for j in range(i + 1, min(i + D, n)))
        assert cnt <= 15
        k(f"s_waitcnt lgkmcnt({cnt})")
        mfma_fn(i, i % nbuf)
        j = i + D
        if j < n:
            if j in sync_at:
                sync_at[j]()
            read_fn(j, j % nbuf)
        side(i)


def sdiv(k, q, r, x, d, tmp):
    m = (2 ** 32 + d - 1) // d
    k(f"s_mul_hi_u32 s{q}, s{x}, {hex(m)}")
    k(f"s_mul_i32 s{tmp}, s{q}, {d}")
    k(f"s_sub_u32 s{r}, s{x}, s{tmp}")


def decode_tb_cb(k, s_tb, s_cb, s_t, s_t2):
    k(f"s_and_b32 s{s_t}, s2, 7")
    k(f"s_lshr_b32 s{s_t2}, s2, 3")
    k(f"s_lshl_b32 s{s_tb}, s{s_t}, 2")
    k(f"s_and_b32 s{s_t}, s{s_t2}, 3")
    k(f"s_add_u32 s{s_tb}, s{s_tb}, s{s_t}")
    k(f"s_lshr_b32 s{s_cb}, s{s_t2}, 2")


def interleave(k, chains):
    pos = [0] * len(chains)
    last = [-100] * len(chains)
    n = 0
    while any(p < len(c) for p, c in zip(pos, chains)):
        did = False
        for i, c in enumerate(chains):
            if pos[i] < len(c) and n - last[i] - 1 >= c[pos[i]][1]:
                k(c[pos[i]][0])
                last[i] = n
                pos[i] += 1
                n += 1
                did = True
        if not did:
            k("s_nop 0")
            n += 1


def helper_prefetch(k, srd, base_pair, off, nbytes, v_l, v_pf, v_dum, s_t, s_t2):
    k.srd(srd, base_pair, nbytes, off)
    k(f"s_lshr_b32 s{s_t}, s2, 3")
    k(f"s_lshl_b32 s{s_t}, s{s_t}, 13")
    k(f"v_lshlrev_b32 v{v_pf}, 7, v{v_l}")
    per = 32 * 64 * 128
    for i in range((nbytes + per - 1) // per):
        k(f"s_add_u32 s{s_t2}, s{s_t}, {i*per}")
        k(f"buffer_load_dword v{v_dum}, v{v_pf}, s[{srd}:{srd+3}], s{s_t2} offen")


class Sprinkle:
    def __init__(self):
        self.q = []

    def add(self, f):
        self.q.append(f)

    def emit(self, n):
        for _ in range(n):
            if self.q:
                self.q.pop(0)()


def frag_src(k, s_src, s_f, NT, S, KS, ld, TN, MT, s_a, s_b, s_c, s_d, s_t):
    sdiv(k, s_b, s_c, s_f, NT, s_t)
    sdiv(k, s_a, s_d, s_b, S, s_t)
    k(f"s_mul_i32 s{s_src}, s{s_d}, {KS*ld}")
    k(f"s_mul_i32 s{s_t}, s{s_a}, {TN*2}")
    k(f"s_add_u32 s{s_src}, s{s_src}, s{s_t}")
    k(f"s_mul_i32 s{s_t}, s{s_c}, {MT*2}")
    k(f"s_add_u32 s{s_src}, s{s_src}, s{s_t}")


def gen_k1():
    k = Kern("k1_kernel")
    R, RXL, PD = 4, 3, 2
    LDS_X = R * 20480
    LDS_KV = LDS_X + RXL * 16384
    LDS_SCR = LDS_KV + 25600
    sX, sW, sKV, sWS = 16, 20, 24, 28
    s_tb, s_cb, s_w, s_t, s_t2, s_off, s_l = 32, 33, 34, 35, 36, 37, 41
    s_ones = 38
    s_qoff = 42
    s_xl = 43
    s_rot = 44
    v_l, v_idx, v_g = 1, 2, 3
    v_w = 5
    v_a = 10
    v_akv = 11
    t0, t1, t2, t3 = 12, 13, 14, 15
    v_sum, v_sq = 16, 18
    v_ones = 20
    XB = 24
    D = 5
    AF = 104
    VAR, VKR = 132, 136
    QAD = 140
    VXS, VXR = 145, 149
    ACC = 160
    CS = 188
    E = 216

    k("s_getpc_b64 s[48:49]")
    k.label("k1_pc")
    k("s_cmp_ge_u32 s2, 256")
    k("s_cbranch_scc1 k1_end")
    k(f"s_load_dwordx4 s[4:7], s[0:1], {KA['x']}")
    k(f"s_load_dwordx4 s[8:11], s[0:1], {KA['wk']}")
    k(f"s_load_dwordx2 s[12:13], s[0:1], {KA['ws']}")
    k("s_sub_u32 s48, s48, k1_pc-k1_kernel")
    k("s_subb_u32 s49, s49, 0")
    k("s_mov_b32 s50, text_end-k1_kernel")
    k("s_mov_b32 s51, 0x00020000")
    k(f"s_lshr_b32 s{s_t}, s2, 3")
    k(f"s_lshl_b32 s{s_t}, s{s_t}, 15")
    k(f"v_lshlrev_b32 v{t0}, 7, v0")
    k(f"buffer_load_dword v{E}, v{t0}, s[48:51], s{s_t} offen")
    k.stamp_init()
    wave_lane_setup(k, s_w, v_l)
    k(f"v_and_b32 v{v_idx}, 15, v{v_l}")
    k(f"v_lshrrev_b32 v{v_g}, 4, v{v_l}")
    decode_tb_cb(k, s_tb, s_cb, s_t, s_t2)
    k(f"s_lshl_b32 s{s_t}, s{s_tb}, 6")
    k(f"s_lshl_b32 s{s_t2}, s{s_w}, 4")
    k(f"s_add_u32 s{s_t}, s{s_t}, s{s_t2}")
    for j in range(4):
        k(f"v_add_u32 v{t0}, {4*j}, v{v_g}")
        k(f"v_xor_b32 v{t1}, v{v_idx}, v{t0}")
        k(f"v_add_u32 v{t0}, s{s_t}, v{t0}")
        k(f"v_mul_u32_u24 v{t0}, 1280, v{t0}")
        k(f"v_lshl_add_u32 v{VXS+j}, v{t1}, 4, v{t0}")
    k(f"s_lshl_b32 s{s_xl}, s{s_w}, 12")
    k(f"s_add_u32 s{s_xl}, s{s_xl}, {LDS_X}")
    k(f"s_mul_i32 s{s_off}, s{s_cb}, 160")
    k(f"s_mul_i32 s{s_t}, s{s_w}, {32*1280}")
    k(f"s_add_u32 s{s_off}, s{s_off}, s{s_t}")
    k(f"s_mul_i32 s{s_l}, s{s_w}, 5120")
    dma_offsets_160(k, v_w, v_l, 1280, t0, t1, t2)
    k("s_waitcnt lgkmcnt(0)")
    k.srd(sX, 4, 2048 * 1280)
    k.srd(sW, 6, 640 * 1280)

    def chunk_loads(c):
        fs = []
        for i in range(4):
            def fx(i=i, c=c):
                k(f"s_add_u32 m0, s{s_xl}, {(c%RXL)*16384 + i*1024}")
                k(f"s_mov_b32 s{s_t2}, {c*256}")
                k.vmissue(f"buffer_load_dwordx4 v{VXS+i}, s[{sX}:{sX+3}], s{s_t2} offen lds", f"c{c}")
            fs.append(fx)
        for i in range(5):
            def f(i=i, c=c):
                k(f"s_add_u32 m0, s{s_l}, {(c%R)*20480 + i*1024}")
                k(f"s_add_u32 s{s_t2}, s{s_off}, {c*128*1280}")
                k.vmissue(f"buffer_load_dwordx4 v{v_w+i}, s[{sW}:{sW+3}], s{s_t2} offen lds", f"c{c}")
            fs.append(f)
        return fs
    for f in chunk_loads(0):
        f()
    k.srd(sWS, 12, WS_SIZE)
    k(f"s_cmp_eq_u32 s{s_cb}, 0")
    k(f"s_cselect_b32 s{sKV}, s8, s10")
    k(f"s_cselect_b32 s{sKV+1}, s9, s11")
    k(f"s_mov_b32 s{sKV+2}, 25600")
    k(f"s_mov_b32 s{sKV+3}, 0x00020000")
    k(f"s_cmp_ge_u32 s{s_cb}, 2")
    k(f"s_cbranch_scc1 k1_nokvload")
    k(f"v_lshlrev_b32 v{t0}, 4, v{v_l}")
    for i in range(7):
        k(f"s_add_u32 s{s_t}, s{s_w}, {4*i}")
        k(f"s_min_u32 s{s_t}, s{s_t}, 24")
        k(f"s_lshl_b32 s{s_t}, s{s_t}, 10")
        k(f"s_add_u32 m0, s{s_t}, {LDS_KV}")
        k.nop(1)
        k(f"buffer_load_dwordx4 v{t0}, s[{sKV}:{sKV+3}], s{s_t} offen lds")
    k.label("k1_nokvload")
    K1PF = int(os.environ.get("K1PF", "1"))

    def sparse_pf(first_chunk):
        r0 = 128 * first_chunk
        k(f"s_lshr_b32 s{s_t}, s2, 3")
        k(f"s_lshl_b32 s{s_t}, s{s_t}, 2")
        k(f"s_add_u32 s{s_t}, s{s_t}, s{s_w}")
        k(f"s_lshl_b32 s{s_t}, s{s_t}, 13")
        k(f"s_add_u32 s{s_t}, s{s_t}, {r0*1280}")
        k(f"v_lshlrev_b32 v{t0}, 7, v{v_l}")
        k.vmissue(f"buffer_load_dword v{E+1}, v{t0}, s[{sW}:{sW+3}], s{s_t} offen", "c2")
        k(f"s_lshl_b32 s{s_t}, s{s_tb}, 6")
        k(f"s_lshl_b32 s{s_t2}, s{s_cb}, 3")
        k(f"s_add_u32 s{s_t}, s{s_t}, s{s_t2}")
        k(f"s_lshl_b32 s{s_t2}, s{s_w}, 1")
        k(f"s_add_u32 s{s_t}, s{s_t}, s{s_t2}")
        k(f"s_mul_i32 s{s_t}, s{s_t}, 1280")
        k(f"v_mul_u32_u24 v{t0}, 1280, v{v_g}")
        k(f"v_lshl_add_u32 v{t0}, v{v_idx}, 7, v{t0}")
        k(f"v_cmp_gt_u32 vcc, 10, v{v_idx}")
        k(f"v_cmp_gt_u32 s[52:53], 32, v{v_l}")
        k(f"v_mov_b32 v{t1}, 0x7fffff00")
        k("s_and_b64 vcc, vcc, s[52:53]")
        k.nop(1)
        k(f"v_cndmask_b32 v{t0}, v{t1}, v{t0}, vcc")
        k.vmissue(f"buffer_load_dword v{E+2}, v{t0}, s[{sX}:{sX+3}], s{s_t} offen", "c2")
    if K1PF == 2:
        sparse_pf(1)
    for f in chunk_loads(1):
        f()
    if K1PF == 1:
        sparse_pf(2)
    k(f"v_lshrrev_b32 v{t0}, 2, v{v_idx}")
    k(f"v_lshl_add_u32 v{t1}, v{v_g}, 2, v{t0}")
    k(f"v_mul_u32_u24 v{v_a}, 160, v{t1}")
    k(f"v_and_b32 v{t2}, 3, v{v_idx}")
    k(f"v_lshl_add_u32 v{v_a}, v{t2}, 3, v{v_a}")
    k(f"v_lshl_add_u32 v{t1}, v{v_g}, 3, v{t0}")
    k(f"v_mul_u32_u24 v{v_akv}, 40, v{t1}")
    k(f"v_lshl_add_u32 v{v_akv}, v{t2}, 3, v{v_akv}")
    k(f"v_add_u32 v{v_akv}, {LDS_KV}, v{v_akv}")
    k(f"v_lshlrev_b32 v{t3}, 8, v{v_idx}")
    k(f"v_add_u32 v{t3}, s{s_xl}, v{t3}")
    for i in range(4):
        k(f"s_add_u32 s{s_t}, s{s_w}, {i}")
        k(f"s_and_b32 s{s_rot}, s{s_t}, 3")
        k(f"s_mul_i32 s{s_t}, s{s_rot}, 5120")
        k(f"v_add_u32 v{VAR+i}, s{s_t}, v{v_a}")
        k(f"s_mul_i32 s{s_t}, s{s_rot}, 1280")
        k(f"v_add_u32 v{VKR+i}, s{s_t}, v{v_akv}")
        k(f"s_lshl_b32 s{s_t}, s{s_rot}, 2")
        k(f"v_add_u32 v{t0}, s{s_t}, v{v_g}")
        k(f"v_xor_b32 v{t0}, v{t0}, v{v_idx}")
        k(f"v_lshl_add_u32 v{VXR+i}, v{t0}, 4, v{t3}")
    k(f"s_and_b32 s{s_t}, s{s_w}, 1")
    k(f"s_lshl_b32 s{s_t}, s{s_t}, 4")
    k(f"v_add_u32 v{t3}, s{s_t}, v{v_idx}")
    for t in range(5):
        k(f"v_add_u32 v{t0}, {4*t}, v{v_g}")
        k(f"v_mul_u32_u24 v{t1}, 52, v{t0}")
        k(f"v_lshrrev_b32 v{t1}, 8, v{t1}")
        k(f"v_mul_u32_u24 v{t2}, 5, v{t1}")
        k(f"v_sub_u32 v{t0}, v{t0}, v{t2}")
        k(f"v_lshrrev_b32 v{t2}, 1, v{t0}")
        k(f"v_lshl_add_u32 v{t2}, v{t2}, 5, v{t3}")
        k(f"v_lshlrev_b32 v{t2}, 4, v{t2}")
        k(f"v_and_b32 v{QAD+t}, 1, v{t0}")
        k(f"v_lshl_add_u32 v{t2}, v{QAD+t}, 3, v{t2}")
        k(f"v_cmp_eq_u32 vcc, 4, v{t0}")
        k(f"v_lshlrev_b32 v{QAD+t}, 3, v{t3}")
        k(f"v_add_u32 v{QAD+t}, 1024, v{QAD+t}")
        k(f"v_cndmask_b32 v{t2}, v{t2}, v{QAD+t}, vcc")
        k(f"v_mul_u32_u24 v{t1}, {64*1280}, v{t1}")
        k(f"v_add_u32 v{QAD+t}, v{t1}, v{t2}")
    k(f"s_lshl_b32 s{s_qoff}, s{s_cb}, 8")
    k(f"s_lshl_b32 s{s_t}, s{s_tb}, 1")
    k(f"s_add_u32 s{s_qoff}, s{s_qoff}, s{s_t}")
    k(f"s_lshr_b32 s{s_t}, s{s_w}, 1")
    k(f"s_add_u32 s{s_qoff}, s{s_qoff}, s{s_t}")
    k(f"s_mul_i32 s{s_qoff}, s{s_qoff}, 1280")
    k(f"s_add_u32 s{s_qoff}, s{s_qoff}, {WS_Q}")
    k(f"s_mov_b32 s{s_ones}, 0x3f803f80")
    for i in range(4):
        k(f"v_mov_b32 v{v_ones+i}, s{s_ones}")
    for i in range(4):
        k(f"v_mov_b32 v{v_sum+i}, 0")
    for i in range(56):
        k(f"v_mov_b32 v{ACC+i}, 0")
    vm_snapshot = list(k.vm)
    k.stamp()

    def mainloop(mode):
        k.vm = list(vm_snapshot)
        nt = 5 if mode == 'q' else 7
        n = 20 * nt
        spr = Sprinkle()

        def read_fn(i, buf):
            s, t = divmod(i, nt)
            c, ii = divmod(s, 4)
            for j in range(2):
                if t < 5:
                    off = (c % R) * 20480 + j * 2560 + t * 32
                    base = VAR + ii
                else:
                    off = c * 5120 + j * 160 + (t - 5) * 32
                    base = VKR + ii
                k(f"ds_read_b64_tr_b16 {vr(AF+buf*4+2*j,2)}, v{base} offset:{off}")

        def mfma_fn(i, buf):
            s, t = divmod(i, nt)
            c, ii = divmod(s, 4)
            if ii == 0 and t == 0:
                for r in range(16):
                    X = XB + 16 * (c & 1) + r
                    k(f"v_dot2_f32_bf16 v{v_sum+(r&1)}, v{X}, v{v_ones}, v{v_sum+(r&1)}")
                    k(f"v_dot2_f32_bf16 v{v_sq+(r&1)}, v{X}, v{X}, v{v_sq+(r&1)}")
            X = XB + 16 * (c & 1) + 4 * ii
            A = AF + 4 * buf
            swap = (mode == 'v' and t >= 5)
            a, b = (vr(X, 4), vr(A, 4)) if swap else (vr(A, 4), vr(X, 4))
            k(f"v_mfma_f32_16x16x32_bf16 {vr(ACC+4*t,4)}, {a}, {b}, {vr(ACC+4*t,4)}")
            if ii == 0:
                k(f"v_mfma_f32_16x16x32_bf16 {vr(CS+4*t,4)}, {vr(v_ones,4)}, {vr(A,4)}, {vr(CS+4*t,4)}")

        def mk_sync(c):
            def f():
                k.vmwait(f"c{c}")
                for i in range(4):
                    k(f"ds_read_b128 {vr(XB+16*(c&1)+4*i,4)}, v{VXR+i} offset:{(c%RXL)*16384}")
                k("s_barrier")
                if mode == 'q' and c in (0, 1, 4):
                    k.stamp()
            return f
        sync_at = {4 * c * nt: mk_sync(c) for c in range(5)}

        def side(i):
            c, r = divmod(i, 4 * nt)
            if r == 0 and c + PD < 5:
                for g in chunk_loads(c + PD):
                    spr.add(g)
            spr.emit(1)
        gemm_pipeline(k, n, D, lambda j: 2, read_fn, mfma_fn, sync_at, side)
        assert not spr.q
    k(f"s_cmp_eq_u32 s{s_cb}, 0")
    k("s_cbranch_scc1 k1_loop_k")
    k(f"s_cmp_eq_u32 s{s_cb}, 1")
    k("s_cbranch_scc1 k1_loop_v")
    mainloop('q')
    k.label("k1_epi")
    k.stamp()
    k.vm = []
    v_mean, v_rstd = E, E + 1
    BX = E + 4
    LDS_EX = LDS_X
    k(f"s_lshl_b32 s{s_t}, s{s_w}, 8")
    k(f"s_add_u32 s{s_t}, s{s_t}, {LDS_EX}")
    k(f"v_lshlrev_b32 v{t3}, 4, v{v_idx}")
    k(f"v_add_u32 v{t3}, s{s_t}, v{t3}")
    k(f"v_lshlrev_b32 v{t2}, 4, v{v_l}")
    k(f"v_add_u32 v{t2}, {LDS_EX}, v{t2}")
    for t in range(7):
        c = CS + 4 * t
        k(f"v_and_b32 v{c+1}, 0xffff0000, v{c}")
        k(f"v_sub_f32 v{c}, v{c}, v{c+1}")
        k(f"v_and_b32 v{c+2}, 0xffff0000, v{c}")
        k(f"v_sub_f32 v{c+3}, v{c}, v{c+2}")
        k(f"v_lshrrev_b32 v{c}, 16, v{c+1}")
        k(f"v_or_b32 v{c}, v{c}, v{c+2}")
        k(f"v_lshrrev_b32 v{c+1}, 16, v{c+3}")
        k(f"v_mov_b32 v{c+2}, 0")
        k(f"v_mov_b32 v{c+3}, 0")
        k(f"ds_write_b128 v{t3}, {vr(c,4)} offset:{t*1024}")
    k(f"v_add_f32 v{v_sum}, v{v_sum}, v{v_sum+1}")
    k(f"v_add_f32 v{v_sq}, v{v_sq}, v{v_sq+1}")
    k("s_waitcnt lgkmcnt(0)")
    k("s_barrier")
    for t in range(7):
        k(f"ds_read_b128 {vr(XB+4*t,4)}, v{t2} offset:{t*1024}")
    chs = []
    for v, tt in ((v_sum, t0), (v_sq, t1)):
        chs.append([(f"v_mov_b32 v{tt}, v{v}", 0), (f"v_permlane16_swap_b32 v{v}, v{tt}", 2), (f"v_add_f32 v{v}, v{v}, v{tt}", 1),
                    (f"v_mov_b32 v{tt}, v{v}", 0), (f"v_permlane32_swap_b32 v{v}, v{tt}", 2), (f"v_add_f32 v{v}, v{v}, v{tt}", 1)])
    interleave(k, chs)
    ln_stats(k, v_sum, v_sq, v_mean, v_rstd, t0, t1)
    k(f"v_xor_b32 v{t0}, 0x80000000, v{v_mean}")
    k(f"v_lshrrev_b32 v{BX}, 16, v{t0}")
    k(f"v_or_b32 v{BX}, v{BX}, v{t0}")
    k(f"v_mov_b32 v{BX+1}, v{BX}")
    k(f"v_mov_b32 v{BX+2}, 0")
    k(f"v_mov_b32 v{BX+3}, 0")
    v_rs = E + 2
    k(f"v_mul_f32 v{v_rs}, {hex(f2u(QSCALE))}, v{v_rstd}")
    k(f"v_mov_b32 v{v_rs+1}, v{v_rs}")
    k("s_waitcnt lgkmcnt(0)")
    for t in range(5):
        k(f"v_mfma_f32_16x16x32_bf16 {vr(ACC+4*t,4)}, {vr(XB+4*t,4)}, {vr(BX,4)}, {vr(ACC+4*t,4)}")
    k.nop(4)
    O_ = E + 8
    for t in range(5):
        a = ACC + 4 * t
        k(f"v_pk_mul_f32 {vr(a,2)}, {vr(a,2)}, {vr(v_rs,2)}")
        k(f"v_pk_mul_f32 {vr(a+2,2)}, {vr(a+2,2)}, {vr(v_rs,2)}")
        k(f"v_cvt_pk_bf16_f32 v{O_+2*t}, v{a}, v{a+1}")
        k(f"v_cvt_pk_bf16_f32 v{O_+1+2*t}, v{a+2}, v{a+3}")
        k(f"buffer_store_dwordx2 {vr(O_+2*t,2)}, v{QAD+t}, s[{sWS}:{sWS+3}], s{s_qoff} offen")
    k.stamp_flush(s_w)
    k(f"s_cmp_lt_u32 s{s_cb}, 2")
    k("s_cbranch_scc1 k1_kv_epi")
    k.label("k1_end")
    k("s_endpgm")

    k.label("k1_kv_epi")
    s_base, s_u = 39, 40
    k(f"s_lshl_b32 s{s_t}, s{s_tb}, 1")
    k(f"s_lshr_b32 s{s_t2}, s{s_w}, 1")
    k(f"s_add_u32 s{s_t}, s{s_t}, s{s_t2}")
    k(f"s_mul_i32 s{s_base}, s{s_t}, 2560")
    k(f"s_add_u32 s{s_base}, s{s_base}, {WS_KV}")
    k(f"s_and_b32 s{s_u}, s{s_w}, 1")
    k(f"s_cmp_eq_u32 s{s_cb}, 1")
    k("s_cbranch_scc1 k1_epi_v")
    for t in range(5, 7):
        k(f"v_mfma_f32_16x16x32_bf16 {vr(ACC+4*t,4)}, {vr(XB+4*t,4)}, {vr(BX,4)}, {vr(ACC+4*t,4)}")
    P = E + 20
    k(f"v_cmp_eq_u32 vcc, 0, v{v_g}")
    k(f"s_lshl_b32 s{s_t}, s{s_u}, 4")
    k(f"v_add_u32 v{t1}, s{s_t}, v{v_idx}")
    k(f"v_lshrrev_b32 v{t2}, 1, v{v_g}")
    k(f"v_lshl_add_u32 v{t2}, v{t2}, 5, v{t1}")
    k(f"v_lshlrev_b32 v{t2}, 4, v{t2}")
    k(f"v_and_b32 v{t3}, 1, v{v_g}")
    k(f"v_lshl_add_u32 v{t2}, v{t3}, 3, v{t2}")
    k(f"v_lshlrev_b32 v{t0}, 3, v{t1}")
    k(f"v_add_u32 v{t0}, 2304, v{t0}")
    k(f"v_mov_b32 v{t1}, 0x7ffffff8")
    k(f"v_cndmask_b32 v{t1}, v{t1}, v{t0}, vcc")
    for r in range(8):
        k(f"v_mul_f32 v{ACC+20+r}, v{ACC+20+r}, v{v_rstd}")
    k(f"v_cvt_pk_bf16_f32 v{P}, v{ACC+20}, v{ACC+21}")
    k(f"v_cvt_pk_bf16_f32 v{P+1}, v{ACC+22}, v{ACC+23}")
    k(f"v_cvt_pk_bf16_f32 v{P+2}, v{ACC+24}, v{ACC+25}")
    k(f"v_cvt_pk_bf16_f32 v{P+3}, v{ACC+26}, v{ACC+27}")
    k(f"v_cndmask_b32 v{P+2}, 0, v{P+2}, vcc")
    k(f"v_cndmask_b32 v{P+3}, 0, v{P+3}, vcc")
    k(f"buffer_store_dwordx2 {vr(P,2)}, v{t2}, s[{sWS}:{sWS+3}], s{s_base} offen")
    k(f"buffer_store_dwordx2 {vr(P+2,2)}, v{t1}, s[{sWS}:{sWS+3}], s{s_base} offen")
    k(f"v_mov_b32 v{t3}, 0")
    for i in range(4):
        k(f"v_dot2_f32_bf16 v{t3}, v{P+i}, v{P+i}, v{t3}")
    k.nop(3)
    xsum_rows(k, t3, t0)
    for sh in (8, 4, 2, 1):
        k.nop(2)
        k(f"v_max_f32_dpp v{t3}, v{t3}, v{t3} row_ror:{sh} row_mask:0xf bank_mask:0xf")
    k(f"s_lshl_b32 s{s_t}, s{s_tb}, 2")
    k(f"s_add_u32 s{s_t}, s{s_t}, s{s_w}")
    k(f"s_lshl_b32 s{s_t}, s{s_t}, 2")
    k(f"s_add_u32 s{s_t}, s{s_t}, {WS_KMAX}")
    k(f"v_mov_b32 v{t2}, 0")
    k(f"buffer_store_dword v{t3}, v{t2}, s[{sWS}:{sWS+3}], s{s_t} offen")
    k("s_endpgm")
    k.label("k1_epi_v")
    for t in range(5, 7):
        k(f"v_mfma_f32_16x16x32_bf16 {vr(ACC+4*t,4)}, {vr(BX,4)}, {vr(XB+4*t,4)}, {vr(ACC+4*t,4)}")
    k(f"s_lshl_b32 s{s_t}, s{s_w}, 6")
    k(f"s_add_u32 s{s_t}, s{s_t}, {LDS_SCR}")
    k(f"v_lshlrev_b32 v{t2}, 2, v{v_idx}")
    k(f"v_add_u32 v{t2}, s{s_t}, v{t2}")
    k(f"ds_write_b32 v{t2}, v{v_rstd}")
    k(f"v_lshlrev_b32 v{t2}, 4, v{v_g}")
    k(f"v_add_u32 v{t2}, s{s_t}, v{t2}")
    k("s_waitcnt lgkmcnt(0)")
    R4 = XB + 32
    k(f"ds_read_b128 {vr(R4,4)}, v{t2}")
    k(f"v_and_b32 v{t1}, 1, v{v_g}")
    k(f"s_lshl_b32 s{s_t}, s{s_u}, 1")
    k(f"v_add_u32 v{t1}, s{s_t}, v{t1}")
    k(f"v_mul_u32_u24 v{t1}, 20, v{t1}")
    k(f"v_add_u32 v{t1}, v{t1}, v{v_idx}")
    k(f"v_lshlrev_b32 v{t1}, 4, v{t1}")
    k(f"v_lshrrev_b32 v{t2}, 1, v{v_g}")
    k(f"v_lshl_add_u32 v{t1}, v{t2}, 3, v{t1}")
    k(f"v_cmp_gt_u32 vcc, 4, v{v_idx}")
    k(f"v_mov_b32 v{t2}, 0x7ffffff8")
    k.nop(1)
    k(f"v_cndmask_b32 v{t0}, v{t2}, v{t1}, vcc")
    k("s_waitcnt lgkmcnt(0)")
    for t in range(5, 7):
        for r in range(4):
            a = ACC + 4 * t + r
            k(f"v_mul_f32 v{a}, v{a}, v{R4+r}")
        k(f"v_cvt_pk_bf16_f32 v{P+2*(t-5)}, v{ACC+4*t}, v{ACC+4*t+1}")
        k(f"v_cvt_pk_bf16_f32 v{P+2*(t-5)+1}, v{ACC+4*t+2}, v{ACC+4*t+3}")
    k(f"buffer_store_dwordx2 {vr(P,2)}, v{t1}, s[{sWS}:{sWS+3}], s{s_base} offen offset:1024")
    k(f"buffer_store_dwordx2 {vr(P+2,2)}, v{t0}, s[{sWS}:{sWS+3}], s{s_base} offen offset:{1024+256}")
    k("s_endpgm")

    k.label("k1_loop_k")
    mainloop('k')
    k("s_branch k1_epi")
    k.label("k1_loop_v")
    mainloop('v')
    k("s_branch k1_epi")

    return k.text(248), "k1_kernel", (256, 256, LDS_SCR + 512)


def gen_k2():
    k = Kern("k2_kernel")
    sWS, sKVs = 16, 20
    s_tb, s_hg, s_w, s_t, s_t2, s_kh, s_cnt, s_h, s_dma = 32, 33, 34, 35, 36, 38, 39, 40, 41
    s_vm = 42
    s_a, s_b, s_c, s_d = 54, 55, 56, 57
    v_l, v_q, v_half = 1, 2, 3
    t0, t1, t2, t3 = 4, 5, 6, 7
    v_k1, v_k2, v_v = 8, 9, 10
    v_dma = 11
    v_km = 12
    v_oa = 13
    QA1, QA2, QB1, QB2 = 16, 20, 24, 28
    SA, SB = 32, 48
    PA, PB = 64, 72
    OA, OB = 80, 96
    KF = 112
    VF = 128
    MX = 144
    NV = 152

    k("s_cmp_ge_u32 s2, 256")
    k("s_cbranch_scc1 k2_end")
    k.stamp_init()
    k(f"s_load_dwordx2 s[12:13], s[0:1], {KA['ws']}")
    k(f"s_load_dwordx4 s[4:7], s[0:1], {KA['w1']}")
    k(f"s_load_dwordx2 s[8:9], s[0:1], {KA['w2']}")
    wave_lane_setup(k, s_w, v_l)
    k(f"v_and_b32 v{v_q}, 31, v{v_l}")
    k(f"v_lshrrev_b32 v{v_half}, 5, v{v_l}")
    k(f"v_lshlrev_b32 v{v_dma}, 4, v{v_l}")
    k(f"s_cmp_ge_u32 s{s_w}, 8")
    k("s_cbranch_scc1 k2_helper")
    decode_tb_cb(k, s_tb, s_hg, s_t, s_t2)
    k(f"s_lshr_b32 s{s_kh}, s{s_w}, 2")
    k(f"s_and_b32 s{s_t}, s{s_w}, 3")
    k(f"s_lshl_b32 s{s_h}, s{s_hg}, 2")
    k(f"s_add_u32 s{s_h}, s{s_h}, s{s_t}")
    k(f"v_lshlrev_b32 v{t0}, 3, v{v_q}")
    k(f"v_lshlrev_b32 v{t2}, 3, v{v_l}")
    k(f"s_mul_i32 s{s_dma}, s{s_kh}, 81920")
    k(f"s_and_b32 s{s_t2}, s{s_w}, 3")
    k(f"s_lshl_b32 s{s_t2}, s{s_t2}, 10")
    k(f"s_add_u32 s{s_dma}, s{s_dma}, s{s_t2}")
    k(f"s_lshl_b32 s{s_t}, s{s_h}, 6")
    k(f"s_lshl_b32 s{s_t2}, s{s_tb}, 1")
    k(f"s_add_u32 s{s_t}, s{s_t}, s{s_t2}")
    k(f"s_mul_i32 s{s_t}, s{s_t}, 1280")
    k(f"s_add_u32 s{s_t}, s{s_t}, {WS_Q}")
    k(f"s_mov_b32 s{s_a}, {WS_KMAX}")
    k("s_waitcnt lgkmcnt(0)")
    k.srd(sWS, 12, WS_SIZE)
    k.srd(sKVs, 12, 163840, WS_KV)

    def dma(i, tag):
        k(f"s_add_u32 m0, s{s_dma}, {i*4096}")
        k(f"s_add_u32 s{s_b}, s{s_dma}, {i*4096}")
        k.vmissue(f"buffer_load_dwordx4 v{v_dma}, s[{sKVs}:{sKVs+3}], s{s_b} offen lds", tag)
    k.vmissue(f"buffer_load_dwordx4 {vr(QA1,4)}, v{v_dma}, s[{sWS}:{sWS+3}], s{s_t} offen", "q")
    k.vmissue(f"buffer_load_dwordx2 {vr(QA2,2)}, v{t0}, s[{sWS}:{sWS+3}], s{s_t} offen offset:1024", "q")
    k.vmissue(f"buffer_load_dwordx4 {vr(QB1,4)}, v{v_dma}, s[{sWS}:{sWS+3}], s{s_t} offen offset:1280", "q")
    k.vmissue(f"buffer_load_dwordx2 {vr(QB2,2)}, v{t0}, s[{sWS}:{sWS+3}], s{s_t} offen offset:2304", "q")
    k.vmissue(f"buffer_load_dwordx2 {vr(MX,2)}, v{t2}, s[{sWS}:{sWS+3}], s{s_a} offen", "q")
    for i in range(2):
        dma(i, "stA")
    for i in range(2, 8):
        dma(i, "stB")
    k(f"s_mov_b32 s{s_vm}, 0x000fffff")
    k(f"s_mov_b32 s{s_vm+1}, 0x000fffff")
    s_fl = 37
    k(f"s_lshl_b32 s{s_fl}, s{s_w}, 2")
    k(f"s_mul_i32 s{s_t}, s{s_kh}, 81920")
    k(f"v_add_u32 v{v_k1}, s{s_t}, v{v_dma}")
    k(f"v_add_u32 v{v_k2}, s{s_t}, v{t0}")
    k(f"v_mul_u32_u24 v{v_v}, 20, v{v_half}")
    k(f"v_add_u32 v{v_v}, v{v_v}, v{v_q}")
    k(f"v_lshlrev_b32 v{v_v}, 4, v{v_v}")
    k(f"v_add_u32 v{v_v}, s{s_t}, v{v_v}")
    for b in range(2):
        k(f"v_mov_b32 v{KF+8*b+6}, 0x3f803f80")
        k(f"v_mov_b32 v{KF+8*b+7}, 0x00003f80")
    k(f"v_and_b32 v{t2}, 27, v{v_q}")
    k(f"v_cmp_eq_u32 vcc, 24, v{t2}")
    k(f"v_mov_b32 v{t3}, 0x3f803f80")
    k.nop(1)
    k(f"v_cndmask_b32 v{t3}, 0, v{t3}, vcc")
    for i in range(16):
        k(f"v_mov_b32 v{VF+i}, v{t3}")
    for i in range(32):
        k(f"v_mov_b32 v{OA+i}, 0")
    for i in range(8):
        k(f"v_mov_b32 v{PB+i}, 0")
    mA, mB = MX + 4, MX + 5
    k(f"v_mov_b32 v{mA}, 0")
    k(f"v_mov_b32 v{mB}, 0")
    k(f"v_mov_b32 v{QA2+3}, 0")
    k(f"v_mov_b32 v{QB2+3}, 0")
    k(f"v_cmp_eq_u32 vcc, 0, v{v_half}")
    k.vmwait("q")
    for Q2 in (QA2, QB2):
        k(f"v_cndmask_b32 v{Q2}, 0, v{Q2}, vcc")
        k(f"v_cndmask_b32 v{Q2+1}, 0, v{Q2+1}, vcc")
    chK = [(f"v_max_f32 v{v_km}, v{MX}, v{MX+1}", 0)]
    for sh in (8, 4, 2, 1):
        chK.append((f"v_max_f32_dpp v{v_km}, v{v_km}, v{v_km} row_ror:{sh} row_mask:0xf bank_mask:0xf", 2))
    chK += [(f"v_mov_b32 v{t0}, v{v_km}", 0), (f"v_permlane16_swap_b32 v{v_km}, v{t0}", 2), (f"v_max_f32 v{v_km}, v{v_km}, v{t0}", 1),
            (f"v_mov_b32 v{t0}, v{v_km}", 0), (f"v_permlane32_swap_b32 v{v_km}, v{t0}", 2), (f"v_max_f32 v{v_km}, v{v_km}, v{t0}", 1)]
    chs = [chK]
    for (Q1, Q2, m, tt) in ((QA1, QA2, mA, t1), (QB1, QB2, mB, t2)):
        c = [(f"v_dot2_f32_bf16 v{m}, v{r}, v{r}, v{m}", 0) for r in (Q1, Q1 + 1, Q1 + 2, Q1 + 3, Q2, Q2 + 1)]
        c += [(f"v_mov_b32 v{tt}, v{m}", 3), (f"v_permlane32_swap_b32 v{m}, v{tt}", 2), (f"v_add_f32 v{m}, v{m}, v{tt}", 1)]
        chs.append(c)
    interleave(k, chs)
    chs = []
    for (Q2, m) in ((QA2, mA), (QB2, mB)):
        chs.append([(f"v_mul_f32 v{m}, v{m}, v{v_km}", 0), (f"v_sqrt_f32 v{m}, v{m}", 0),
                    (f"v_mul_f32 v{m}, {hex(f2u(1.0 + 2**-6))}, v{m}", 1),
                    (f"v_lshrrev_b32 v{m}, 16, v{m}", 0), (f"v_add_u32 v{m}, 0x8001, v{m}", 0),
                    (f"v_cndmask_b32 v{Q2+2}, 0, v{m}, vcc", 0)])
    interleave(k, chs)

    def split_m(Q2, m):
        k(f"v_sub_f32 v{t0}, 0, v{m}")
        k(f"v_and_b32 v{t1}, 0xffff0000, v{t0}")
        k(f"v_sub_f32 v{t0}, v{t0}, v{t1}")
        k(f"v_and_b32 v{t2}, 0xffff0000, v{t0}")
        k(f"v_sub_f32 v{t0}, v{t0}, v{t2}")
        k(f"v_lshrrev_b32 v{t1}, 16, v{t1}")
        k(f"v_or_b32 v{t1}, v{t1}, v{t2}")
        k(f"v_lshrrev_b32 v{t0}, 16, v{t0}")
        k(f"v_cndmask_b32 v{Q2+2}, 0, v{t1}, vcc")
        k(f"v_cndmask_b32 v{Q2+3}, 0, v{t0}, vcc")

    BASE_SW = 24

    def toff(t):
        return (t - BASE_SW if t >= BASE_SW else t) * 2560
    adv = {"k": False, "v": False}

    def rdK(t):
        if t > 31 or ("nolds" in K2VAR and t > 1):
            return
        if t >= BASE_SW and not adv["k"]:
            adv["k"] = True
            k(f"v_add_u32 v{v_k1}, {BASE_SW*2560}, v{v_k1}")
            k(f"v_add_u32 v{v_k2}, {BASE_SW*2560}, v{v_k2}")
        buf = t & 1
        k(f"ds_read_b128 {vr(KF+8*buf,4)}, v{v_k1} offset:{toff(t)}")
        k(f"ds_read_b64 {vr(KF+8*buf+4,2)}, v{v_k2} offset:{toff(t)+2304}")

    def rdV(t):
        if t > 31 or ("nolds" in K2VAR and t > 1):
            return
        if t >= BASE_SW and not adv["v"]:
            adv["v"] = True
            k(f"v_add_u32 v{v_v}, {BASE_SW*2560}, v{v_v}")
        buf = t & 1
        if "noexec" not in K2VAR: k(f"s_mov_b64 exec, s[{s_vm}:{s_vm+1}]")
        k(f"ds_read_b128 {vr(VF+8*buf,4)}, v{v_v} offset:{toff(t)+1024}")
        k(f"ds_read_b128 {vr(VF+8*buf+4,4)}, v{v_v} offset:{toff(t)+1024+640}")
        if "noexec" not in K2VAR: k("s_mov_b64 exec, -1")

    def qk(S, Q1, Q2, buf):
        return [f"v_mfma_f32_32x32x16_bf16 {vr(S,16)}, {vr(KF+8*buf,4)}, {vr(Q1,4)}, 0",
                f"v_mfma_f32_32x32x16_bf16 {vr(S,16)}, {vr(KF+8*buf+4,4)}, {vr(Q2,4)}, {vr(S,16)}"]

    def pv(O, P, buf):
        return [f"v_mfma_f32_32x32x16_bf16 {vr(O,16)}, {vr(VF+8*buf,4)}, {vr(P,4)}, {vr(O,16)}",
                f"v_mfma_f32_32x32x16_bf16 {vr(O,16)}, {vr(VF+8*buf+4,4)}, {vr(P+4,4)}, {vr(O,16)}"]

    def phase(S, P, mf, pre=None):
        for gidx in range(4):
            if pre and gidx == 0:
                pre()
            if mf[gidx] and "nomfma" not in K2VAR:
                k(mf[gidx])
            for i in range(4):
                r = S + 4 * gidx + i
                k(f"v_exp_f32 v{r}, v{r}")
            if gidx > 0:
                g0 = gidx - 1
                k(f"v_cvt_pk_bf16_f32 v{P+2*g0}, v{S+4*g0}, v{S+4*g0+1}")
                k(f"v_cvt_pk_bf16_f32 v{P+2*g0+1}, v{S+4*g0+2}, v{S+4*g0+3}")
        k(f"v_cvt_pk_bf16_f32 v{P+6}, v{S+12}, v{S+13}")
        k(f"v_cvt_pk_bf16_f32 v{P+7}, v{S+14}, v{S+15}")

    k.stamp()
    k.vmwait("stA")
    k("s_barrier")
    k.stamp()
    rdK(0)
    rdV(0)
    rdK(1)
    k("s_waitcnt lgkmcnt(4)")
    for m in qk(SA, QA1, QA2, 0):
        k(m)
    k.nop(12)
    for t in range(32):
        b = t & 1
        prio = {0: 3, 1: 2, 2: 3, 7: 2, 9: 1, 10: 0, 11: 3, 25: 2, 29: 1, 31: 0}
        if t in prio:
            k(f"s_setprio {prio[t]}")
        mf = qk(SB, QB1, QB2, b) + pv(OB, PB, b ^ 1)
        phase(SA, PA, mf)

        def pre(t=t):
            k("s_waitcnt lgkmcnt(0)")
            if t == 1:
                k.vmwait("stB")
                k("s_barrier")
                k(f"v_mov_b32 v{t0}, 0")
                k(f"v_mov_b32 v{t1}, s{s_fl}")
                k(f"ds_write_b32 v{t1}, v{t0}")
            if t == 10:
                k("s_barrier")
            rdK(t + 2)
            rdV(t + 1)
        mf = (qk(SA, QA1, QA2, b ^ 1) if t < 31 else [None, None]) + pv(OA, PA, b)
        phase(SB, PB, mf, pre=pre)
    k.stamp()
    k.nop(2)
    for m in pv(OB, PB, 1):
        k(m)
    k(f"s_mul_i32 s{s_t}, s{s_kh}, 81920")
    k(f"s_and_b32 s{s_t2}, s{s_w}, 3")
    k(f"s_mul_i32 s{s_t2}, s{s_t2}, 3328")
    k(f"s_add_u32 s{s_t2}, s{s_t2}, 1024")
    k(f"s_add_u32 s{s_a}, s{s_t}, s{s_t2}")
    k(f"s_xor_b32 s{s_t}, s{s_kh}, 1")
    k(f"s_mul_i32 s{s_t}, s{s_t}, 81920")
    k(f"s_add_u32 s{s_b}, s{s_t}, s{s_t2}")
    k(f"v_add_u32 v{t0}, s{s_a}, v{v_dma}")
    k(f"v_add_u32 v{t1}, s{s_b}, v{v_dma}")
    k(f"v_lshlrev_b32 v{t2}, 2, v{v_l}")
    k(f"v_add_u32 v{t3}, s{s_b}, v{t2}")
    k(f"v_add_u32 v{t2}, s{s_a}, v{t2}")
    k(f"s_cmp_eq_u32 s{s_kh}, 0")
    k("s_cbranch_scc1 k2_send0")
    for i in range(3):
        k(f"ds_write_b128 v{t0}, {vr(OA+4*i,4)} offset:{i*1024}")
    k(f"ds_write_b32 v{t2}, v{OA+12} offset:3072")
    k(f"v_mov_b32 v{MX+6}, 1")
    k(f"v_mov_b32 v{MX+7}, s{s_fl}")
    k("s_waitcnt lgkmcnt(0)")
    k(f"ds_write_b32 v{MX+7}, v{MX+6}")
    for i in range(13):
        k(f"v_mov_b32 v{OA+i}, v{OB+i}")
    for i in range(8):
        k(f"v_mov_b32 v{QA1+i}, v{QB1+i}")
    k("s_branch k2_sent")
    k.label("k2_send0")
    k.nop(4)
    for i in range(3):
        k(f"ds_write_b128 v{t0}, {vr(OB+4*i,4)} offset:{i*1024}")
    k(f"ds_write_b32 v{t2}, v{OB+12} offset:3072")
    k(f"v_mov_b32 v{MX+6}, 1")
    k(f"v_mov_b32 v{MX+7}, s{s_fl}")
    k("s_waitcnt lgkmcnt(0)")
    k(f"ds_write_b32 v{MX+7}, v{MX+6}")
    k.label("k2_sent")
    v_a0 = MX
    k(f"s_lshl_b32 s{s_t}, s{s_tb}, 6")
    k(f"s_lshl_b32 s{s_t2}, s{s_kh}, 5")
    k(f"s_add_u32 s{s_t}, s{s_t}, s{s_t2}")
    k(f"v_add_u32 v{v_a0}, s{s_t}, v{v_q}")
    k(f"v_lshrrev_b32 v{v_a0+1}, 4, v{v_a0}")
    k(f"v_mul_u32_u24 v{v_a0+1}, {80*256}, v{v_a0+1}")
    k(f"v_and_b32 v{v_a0}, 15, v{v_a0}")
    k(f"v_lshl_add_u32 v{v_a0+1}, v{v_a0}, 4, v{v_a0+1}")
    k(f"s_mul_i32 s{s_t}, s{s_h}, 5")
    for i, dg in enumerate((0, 2, 4)):
        k(f"v_add_u32 v{v_a0}, s{s_t}, v{v_half}")
        k(f"v_add_u32 v{v_a0}, {dg}, v{v_a0}")
        k(f"v_lshrrev_b32 v{v_a0+2}, 1, v{v_a0}")
        k(f"v_lshl_add_u32 v{v_a0+2}, v{v_a0+2}, 8, v{v_a0+1}")
        k(f"v_and_b32 v{v_a0}, 1, v{v_a0}")
        k(f"v_lshl_add_u32 v{v_oa+i}, v{v_a0}, 3, v{v_a0+2}")
    k(f"v_cmp_eq_u32 vcc, 0, v{v_half}")
    k(f"v_mov_b32 v{v_a0}, 0x7ffffff8")
    k.nop(1)
    k(f"v_cndmask_b32 v{v_oa+2}, v{v_a0}, v{v_oa+2}, vcc")
    k(f"v_xor_b32 v{MX+7}, 16, v{MX+7}")
    k("s_setprio 0")
    k.label("k2_poll")
    k(f"ds_read_b32 v{MX+6}, v{MX+7}")
    k("s_waitcnt lgkmcnt(0)")
    k(f"v_readfirstlane_b32 s{s_t}, v{MX+6}")
    k.nop(1)
    k(f"s_cmp_eq_u32 s{s_t}, 1")
    k("s_cbranch_scc1 k2_polled")
    k("s_sleep 2")
    k("s_branch k2_poll")
    k.label("k2_polled")
    for i in range(3):
        k(f"ds_read_b128 {vr(OB+4*i,4)}, v{t1} offset:{i*1024}")
    k(f"ds_read_b32 v{OB+12}, v{t3} offset:3072")
    k("s_waitcnt lgkmcnt(0)")
    k(f"v_add_f32 v{OA+12}, v{OA+12}, v{OB+12}")
    for i in range(12):
        k(f"v_add_f32 v{OA+i}, v{OA+i}, v{OB+i}")
    k(f"v_cmp_nle_f32 vcc, {hex(f2u(2.0**-64))}, v{OA+12}")
    k(f"s_mov_b64 s[{s_a}:{s_a+1}], vcc")
    k(f"v_cmp_nge_f32 vcc, {hex(f2u(2.0**64))}, v{OA+12}")
    k.nop(2)
    k(f"s_or_b64 vcc, vcc, s[{s_a}:{s_a+1}]")
    if "no" not in K2VAR: k("s_cbranch_vccnz k2_fallback")
    k.label("k2_final")
    k(f"v_rcp_f32 v{t3}, v{OA+12}")
    k.nop(1)
    for i in range(12):
        k(f"v_mul_f32 v{OA+i}, v{OA+i}, v{t3}")
    for i in range(6):
        k(f"v_cvt_pk_bf16_f32 v{PA+i}, v{OA+2*i}, v{OA+2*i+1}")
    k(f"s_mov_b32 s{s_t}, {WS_O}")
    for i in range(3):
        k(f"buffer_store_dwordx2 {vr(PA+2*i,2)}, v{v_oa+i}, s[{sWS}:{sWS+3}], s{s_t} offen")
    k.stamp_flush(s_w)
    k.label("k2_end")
    k("s_endpgm")
    k.label("k2_fallback")
    k(f"v_mov_b32 v{QA2+2}, 0")
    k(f"v_mov_b32 v{QA2+3}, 0")
    k(f"v_mov_b32 v{mA}, 0xff800000")
    k(f"v_lshlrev_b32 v{v_k2}, 3, v{v_q}")
    k(f"v_mul_u32_u24 v{v_v}, 20, v{v_half}")
    k(f"v_add_u32 v{v_v}, v{v_v}, v{v_q}")
    k(f"v_lshlrev_b32 v{v_v}, 4, v{v_v}")
    k(f"s_mov_b32 s{s_cnt}, 0")
    k.label("k2_fb_max")
    k(f"buffer_load_dwordx4 {vr(KF,4)}, v{v_dma}, s[{sKVs}:{sKVs+3}], s{s_cnt} offen")
    k(f"buffer_load_dwordx2 {vr(KF+4,2)}, v{v_k2}, s[{sKVs}:{sKVs+3}], s{s_cnt} offen offset:2304")
    k("s_waitcnt vmcnt(0)")
    for m in qk(SA, QA1, QA2, 0):
        k(m)
    k.nop(16)
    for i in range(8):
        k(f"v_max3_f32 v{mA}, v{SA+2*i}, v{SA+2*i+1}, v{mA}")
    k(f"s_add_u32 s{s_cnt}, s{s_cnt}, 2560")
    k(f"s_cmp_lt_u32 s{s_cnt}, 163840")
    k("s_cbranch_scc1 k2_fb_max")
    k(f"v_mov_b32 v{t0}, v{mA}")
    k.nop(2)
    k(f"v_permlane32_swap_b32 v{mA}, v{t0}")
    k.nop(2)
    k(f"v_max_f32 v{mA}, v{mA}, v{t0}")
    k(f"v_cmp_eq_u32 vcc, 0, v{v_half}")
    split_m(QA2, mA)
    for i in range(16):
        k(f"v_mov_b32 v{OA+i}, 0")
    k(f"s_mov_b32 s{s_cnt}, 0")
    k.label("k2_fb_main")
    k(f"buffer_load_dwordx4 {vr(KF,4)}, v{v_dma}, s[{sKVs}:{sKVs+3}], s{s_cnt} offen")
    k(f"buffer_load_dwordx2 {vr(KF+4,2)}, v{v_k2}, s[{sKVs}:{sKVs+3}], s{s_cnt} offen offset:2304")
    k(f"s_mov_b64 exec, s[{s_vm}:{s_vm+1}]")
    k(f"buffer_load_dwordx4 {vr(VF,4)}, v{v_v}, s[{sKVs}:{sKVs+3}], s{s_cnt} offen offset:1024")
    k(f"buffer_load_dwordx4 {vr(VF+4,4)}, v{v_v}, s[{sKVs}:{sKVs+3}], s{s_cnt} offen offset:1664")
    k("s_mov_b64 exec, -1")
    k("s_waitcnt vmcnt(0)")
    for m in qk(SA, QA1, QA2, 0):
        k(m)
    k.nop(16)
    for i in range(16):
        k(f"v_exp_f32 v{SA+i}, v{SA+i}")
    k.nop(1)
    for i in range(8):
        k(f"v_cvt_pk_bf16_f32 v{PA+i}, v{SA+2*i}, v{SA+2*i+1}")
    k.nop(2)
    for m in pv(OA, PA, 0):
        k(m)
    k(f"s_add_u32 s{s_cnt}, s{s_cnt}, 2560")
    k(f"s_cmp_lt_u32 s{s_cnt}, 163840")
    k("s_cbranch_scc1 k2_fb_main")
    k.nop(16)
    k("s_branch k2_final")

    k.label("k2_helper")
    sW1, sW2, sPF, sB1, sWO, sXX = 24, 28, 44, 48, 60, 64
    s_u, s_src, s_cbk, s_p = 37, 58, 52, 53
    s_lo, s_hi = 32, 33
    s_b0, s_b1 = 38, 40
    BK = [32, 64, 96]
    TMP = [128, 136]
    CSE, CSO, ONE = 16, 112, 144
    v_src, v_dst, v_np, v_gg, v_ex = 8, 9, 10, 12, 13
    k("s_setprio 3")
    k(f"s_load_dwordx2 s[10:11], s[0:1], {KA['wo']}")
    k(f"s_load_dwordx2 s[14:15], s[0:1], {KA['x']}")
    k(f"s_mov_b32 s{s_lo}, 0x05040100")
    k(f"s_mov_b32 s{s_hi}, 0x07060302")
    for i in range(4):
        k(f"v_mov_b32 v{ONE+i}, 0x3f803f80")
    k("s_waitcnt lgkmcnt(0)")
    k.srd(sWS, 12, WS_SIZE)
    k.srd(sKVs, 12, 163840, WS_KV)
    k.srd(sW1, 4, 640 * 3072)
    k.srd(sW2, 8, 1536 * 1280)
    k.srd(sB1, 6, 3072)
    k.srd(sWO, 10, 640 * 1280)
    k.srd(sXX, 14, 2048 * 1280)

    def hdma(lo, hi):
        lab = k.newlabel("hd")
        k(f"s_mov_b32 s{s_cnt}, {32768 + lo*1024}")
        k.label(lab)
        k(f"s_mov_b32 m0, s{s_cnt}")
        k(f"s_add_u32 s{s_t}, s{s_cnt}, 81920")
        k(f"buffer_load_dwordx4 v{v_dma}, s[{sKVs}:{sKVs+3}], s{s_cnt} offen lds")
        k(f"s_mov_b32 m0, s{s_t}")
        k(f"s_add_u32 s{s_cnt}, s{s_cnt}, 1024")
        k(f"buffer_load_dwordx4 v{v_dma}, s[{sKVs}:{sKVs+3}], s{s_t} offen lds")
        k(f"s_cmp_lt_u32 s{s_cnt}, {32768 + hi*1024}")
        k(f"s_cbranch_scc1 {lab}")
    k.vm = []
    v_s1, v_s2, v_t32, v_t16, v_ex = 8, 9, 10, 12, 13
    v_xs, v_xd = 14, 15
    FR = 32
    XR = 64
    CS0, CS1 = 16, 112
    SRC = [52, 53, 58]
    DB = {0: [68, 69], 1: [70, 71, 72, 73], 2: [74, 75, 76, 77]}
    s_cb1, s_p1 = 78, 79
    k(f"v_lshrrev_b32 v{t0}, 3, v{v_l}")
    k(f"v_and_b32 v{t1}, 7, v{v_l}")
    k(f"v_mul_u32_u24 v{v_s1}, 3072, v{t0}")
    k(f"v_lshl_add_u32 v{v_s1}, v{t1}, 4, v{v_s1}")
    k(f"v_mul_u32_u24 v{v_s2}, 1280, v{t0}")
    k(f"v_lshl_add_u32 v{v_s2}, v{t1}, 4, v{v_s2}")
    k(f"v_and_b32 v{t0}, 15, v{v_l}")
    k(f"v_lshrrev_b32 v{t1}, 4, v{v_l}")
    k(f"v_mul_u32_u24 v{v_xs}, 1280, v{t0}")
    k(f"v_lshl_add_u32 v{v_xs}, v{t1}, 4, v{v_xs}")
    k(f"v_bfe_u32 v{t0}, v{v_l}, 2, 2")
    k(f"v_and_b32 v{t1}, 3, v{v_l}")
    k(f"v_lshl_add_u32 v{t2}, v{v_half}, 3, v{t0}")
    k(f"v_lshlrev_b32 v{v_t32}, 7, v{t2}")
    k(f"v_bfe_u32 v{t2}, v{v_l}, 4, 1")
    k(f"v_lshl_add_u32 v{v_t32}, v{t2}, 5, v{v_t32}")
    k(f"v_lshl_add_u32 v{v_t32}, v{t1}, 3, v{v_t32}")
    k(f"v_lshrrev_b32 v{t2}, 4, v{v_l}")
    k(f"v_lshl_add_u32 v{t2}, v{t2}, 3, v{t0}")
    k(f"v_lshlrev_b32 v{v_t16}, 7, v{t2}")
    k(f"v_lshl_add_u32 v{v_t16}, v{t1}, 3, v{v_t16}")
    k(f"v_add_u32 v{v_t32}, 16384, v{v_t32}")
    k(f"v_add_u32 v{v_t16}, {81920+16384}, v{v_t16}")
    for i in range(16):
        k(f"v_mov_b32 v{CS0+i}, 0")
        k(f"v_mov_b32 v{CS1+i}, 0")
    k("s_barrier")
    geo = [(240, 10, 3072, 32, 3, 40, 16, WS_W1), (240, 24, 1280, 16, 5, 48, 32, WS_W2), (100, 10, 1280, 16, 5, 20, 32, WS_WO)]
    for m, (nu, nrb, ld, MT, NT, S, KS, dst) in enumerate(geo):
        k(f"s_min_u32 s{s_u}, s2, {nu-1}")
        sdiv(k, s_a, s_b, s_u, nrb, s_t)
        if m == 0:
            k(f"s_mov_b32 s{s_cb1}, s{s_a}")
            k(f"s_mov_b32 s{s_p1}, s{s_b}")
        k(f"s_mul_i32 s{SRC[m]}, s{s_b}, {64*ld}")
        k(f"s_lshl_b32 s{s_t}, s{s_a}, 7")
        k(f"s_add_u32 s{SRC[m]}, s{SRC[m]}, s{s_t}")
        for j, sb in enumerate(DB[m]):
            k(f"s_mul_i32 s{s_c}, s{s_a}, {64//MT}")
            k(f"s_add_u32 s{s_c}, s{s_c}, {j}")
            sdiv(k, s_d, s_cnt, s_c, NT, s_t)
            k(f"s_mul_i32 s{s_d}, s{s_d}, {S}")
            k(f"s_mul_i32 s{s_t}, s{s_b}, {64//KS}")
            k(f"s_add_u32 s{s_d}, s{s_d}, s{s_t}")
            k(f"s_mul_i32 s{s_d}, s{s_d}, {NT}")
            k(f"s_add_u32 s{s_d}, s{s_d}, s{s_cnt}")
            k(f"s_lshl_b32 s{s_d}, s{s_d}, 10")
            k(f"s_add_u32 s{sb}, s{s_d}, {dst}")
        if m == 0:
            k("s_barrier")
    hdma(0, 24)
    k("s_waitcnt vmcnt(8)")
    hdma(24, 48)
    k("s_waitcnt vmcnt(30)")
    k(f"s_lshr_b32 s{s_a}, s2, 1")
    k(f"s_mul_i32 s{s_a}, s{s_a}, {16*1280}")
    k(f"s_and_b32 s{s_t}, s2, 1")
    k(f"s_mul_i32 s{s_t}, s{s_t}, 640")
    k(f"s_add_u32 s{s_a}, s{s_a}, s{s_t}")
    for i in range(10):
        k.vmissue(f"buffer_load_dwordx4 {vr(XR+4*i,4)}, v{v_xs}, s[{sXX}:{sXX+3}], s{s_a} offen offset:{i*64}", "X")
    k(f"v_lshlrev_b32 v{t0}, 1, v{v_q}")
    k(f"s_lshl_b32 s{s_t}, s{s_cb1}, 7")
    k.vmissue(f"buffer_load_ushort v{XR+40}, v{t0}, s[{sB1}:{sB1+3}], s{s_t} offen", "X")
    k.vmissue(f"buffer_load_ushort v{XR+41}, v{t0}, s[{sB1}:{sB1+3}], s{s_t} offen offset:64", "X")
    k(f"s_mul_i32 s{s_d}, s2, 10240")
    k(f"s_add_u32 s{s_d}, s{s_d}, {WS_XG}")
    k("s_waitcnt vmcnt(12)")
    k("s_barrier")

    def bdma(m, lds, tag):
        srd, vs, ld = ((sW1, v_s1, 3072), (sW2, v_s2, 1280), (sWO, v_s2, 1280))[m]
        for i in range(8):
            k(f"s_mov_b32 m0, {lds + i*1024}")
            k(f"s_add_u32 s{s_t2}, s{SRC[m]}, {i*8*ld}")
            k.vmissue(f"buffer_load_dwordx4 v{vs}, s[{srd}:{srd+3}], s{s_t2} offen lds", tag)

    def bproc(m, tag):
        k.vmwait(tag)
        nu, nrb, ld, MT, NT, S, KS, dst = geo[m]
        nts = 64 // MT
        for f in range(8):
            ks, tt = divmod(f, nts)
            for j in range(2):
                off = (ks * KS + 4 * j) * 128 + tt * MT * 2
                k(f"ds_read_b64_tr_b16 {vr(FR+4*f+2*j,2)}, v{v_t32 if MT == 32 else v_t16} offset:{off}")
            if f == 3:
                k("s_waitcnt lgkmcnt(0)")
        k("s_waitcnt lgkmcnt(0)")
        for f in range(8):
            ks, tt = divmod(f, nts)
            k(f"s_add_u32 s{s_t2}, s{DB[m][tt]}, {ks*NT*1024}")
            k.vmissue(f"buffer_store_dwordx4 {vr(FR+4*f,4)}, v{v_dma}, s[{sWS}:{sWS+3}], s{s_t2} offen {SC}", "st")
            if m == 0:
                CSr = (CS0, CS1)[tt]
                k(f"v_mfma_f32_32x32x16_bf16 {vr(CSr,16)}, {vr(ONE,4)}, {vr(FR+4*f,4)}, {vr(CSr,16)}")
    bdma(0, 16384, "A")
    bdma(1, 81920 + 16384, "B")
    k.vmwait("X")
    for i in range(10):
        k(f"s_add_u32 s{s_t2}, s{s_d}, {i*1024}")
        k.vmissue(f"buffer_store_dwordx4 {vr(XR+4*i,4)}, v{v_dma}, s[{sWS}:{sWS+3}], s{s_t2} offen {SC}", "st")
    bproc(0, "A")
    bdma(2, 16384, "C")
    bproc(1, "B")
    k(f"v_lshlrev_b32 v{v_ex}, 4, v{v_q}")
    k(f"s_lshl_b32 s{s_a}, s{s_cb1}, 12")
    k(f"s_add_u32 s{s_a}, s{s_a}, {WS_EX}")
    k(f"s_mul_i32 s{s_b}, s{s_p1}, 3")
    for tt, CSr in enumerate((CS0, CS1)):
        k(f"v_and_b32 v{t1}, 0xffff0000, v{CSr}")
        k(f"v_sub_f32 v{t0}, v{CSr}, v{t1}")
        k(f"v_and_b32 v{t2}, 0xffff0000, v{t0}")
        k(f"v_sub_f32 v{t0}, v{t0}, v{t2}")
        for i, reg in enumerate((t1, t2, t0)):
            k(f"s_add_u32 s{s_c}, s{s_b}, {i}")
            k(f"s_lshr_b32 s{s_t}, s{s_c}, 3")
            k(f"s_lshl_b32 s{s_t}, s{s_t}, 9")
            k(f"s_and_b32 s{s_c}, s{s_c}, 7")
            k(f"s_lshl_b32 s{s_c}, s{s_c}, 1")
            k(f"s_add_u32 s{s_c}, s{s_c}, s{s_t}")
            k(f"s_add_u32 s{s_c}, s{s_c}, s{s_a}")
            k(f"buffer_store_short_d16_hi v{reg}, v{v_ex}, s[{sWS}:{sWS+3}], s{s_c} offen offset:{2048*tt}")
        k(f"buffer_store_dword v{XR+40+tt}, v{v_ex}, s[{sWS}:{sWS+3}], s{s_a} offen offset:{2048*tt+1536+12}")
    k(f"v_subrev_u32 v{v_t16}, 81920, v{v_t16}")
    k.vm += ["st"] * 8
    bproc(2, "C")
    k("s_waitcnt vmcnt(0)")
    for ch in PFORDER:
        if ch in "HhOX":
            off, K_ = {"H": (WS_H1, 1536), "h": (WS_H, 640), "O": (WS_O, 640), "X": (WS_XG, 640)}[ch]
            slab = 256 * K_ * 2
            k(f"s_and_b32 s{s_a}, s2, 7")
            k(f"s_mul_i32 s{s_a}, s{s_a}, {slab}")
            k(f"s_add_u32 s14, s12, s{s_a}")
            k("s_addc_u32 s15, s13, 0")
            helper_prefetch(k, sPF, 14, off, slab, v_l, t0, t1, s_t, s_t2)
        elif ch == "w":
            k("s_waitcnt vmcnt(0)")
        else:
            off, nb = {"o": (WS_WO, 800 * 1024), "1": (WS_W1, 1920 * 1024), "2": (WS_W2, 1920 * 1024)}[ch]
            helper_prefetch(k, sPF, 12, off, nb, v_l, t0, t1, s_t, s_t2)
    k("s_endpgm")
    return k.text(NV), "k2_kernel", (256, 576, 163840)


def gen_g16(name, Kdim):
    k = Kern(name + "_kernel")
    NCH = Kdim // 128
    PD = PD16
    R, RX, D = PD + 2, PD + 1, 8
    sWS, sX2, sB, sO = 20, 24, 28, 44
    s_tb, s_cb, s_w, s_t, s_t2, s_off, s_xoff, s_l = 32, 33, 34, 35, 36, 37, 38, 39
    s_hoff, s_rmoff, s_tok, s_xg = 40, 41, 42, 43
    v_ow, v_or, OADR = 10, 16, 17
    v_l, v_idx, v_g = 1, 2, 3
    v_x = 4
    v_a2 = 5
    v_st = 6
    v_s1, v_s2 = 8, 9
    v_rm = 11
    t0, t1, t2, t3 = 12, 13, 14, 15
    RES = 20
    BIA = 30
    AF = 40
    ACC = 80
    XB = 100
    NV = XB + RX * 16
    WSW = WS_WO if name == "k3" else WS_W2
    helper = False
    k("s_cmp_ge_u32 s2, 256")
    k(f"s_cbranch_scc1 {name}_end")
    k.stamp_init()
    k(f"s_load_dwordx2 s[12:13], s[0:1], {KA['ws']}")
    if name == "k5":
        k(f"s_load_dwordx4 s[8:11], s[0:1], {KA['b2']}")
    wave_lane_setup(k, s_w, v_l)
    if helper:
        k(f"s_cmp_eq_u32 s{s_w}, 4")
        k(f"s_cbranch_scc1 {name}_helper")
    if name == "k5" and MAP5:
        b = MAP5
        k(f"s_bfe_u32 s{s_t}, s2, {hex(((3-b) << 16) | b)}")
        k(f"s_lshl_b32 s{s_tb}, s{s_t}, {2+b}")
        k(f"s_bfe_u32 s{s_t}, s2, {hex(((2+b) << 16) | 3)}")
        k(f"s_add_u32 s{s_tb}, s{s_tb}, s{s_t}")
        k(f"s_and_b32 s{s_t}, s2, {(1 << b) - 1}")
        k(f"s_lshl_b32 s{s_cb}, s{s_t}, {3-b}")
        k(f"s_lshr_b32 s{s_t}, s2, {5+b}")
        k(f"s_add_u32 s{s_cb}, s{s_cb}, s{s_t}")
    else:
        decode_tb_cb(k, s_tb, s_cb, s_t, s_t2)
    k(f"v_lshlrev_b32 v{v_x}, 4, v{v_l}")
    k(f"s_lshl_b32 s{s_t}, s{s_tb}, 2")
    k(f"s_add_u32 s{s_t}, s{s_t}, s{s_w}")
    k(f"s_mul_i32 s{s_xoff}, s{s_t}, {Kdim*32}")
    k(f"s_add_u32 s{s_xoff}, s{s_xoff}, {WS_O if name == 'k3' else WS_H1}")
    k(f"s_mul_i32 s{s_off}, s{s_cb}, {Kdim*160}")
    k(f"s_mul_i32 s{s_l}, s{s_w}, 5120")
    k(f"s_add_u32 s{s_off}, s{s_off}, s{s_l}")
    k(f"s_add_u32 s{s_off}, s{s_off}, {WSW}")
    k(f"v_and_b32 v{v_idx}, 15, v{v_l}")
    k(f"v_lshrrev_b32 v{v_g}, 4, v{v_l}")
    k(f"s_lshl_b32 s{s_t}, s{s_tb}, 6")
    k(f"s_lshl_b32 s{s_t2}, s{s_w}, 4")
    k(f"s_add_u32 s{s_tok}, s{s_t}, s{s_t2}")
    k(f"v_add_u32 v{t0}, s{s_tok}, v{v_idx}")
    v_h = t3
    k(f"v_lshrrev_b32 v{t1}, 5, v{t0}")
    k(f"v_mul_u32_u24 v{v_h}, {640*64}, v{t1}")
    k(f"v_and_b32 v{t1}, 31, v{t0}")
    k(f"v_lshl_add_u32 v{v_h}, v{t1}, 4, v{v_h}")
    k(f"v_lshrrev_b32 v{t1}, 1, v{v_g}")
    k(f"v_lshl_add_u32 v{v_h}, v{t1}, 9, v{v_h}")
    k(f"v_and_b32 v{t2}, 1, v{v_g}")
    k(f"v_lshl_add_u32 v{v_h}, v{t2}, 3, v{v_h}")
    k(f"v_lshlrev_b32 v{v_rm}, 4, v{v_idx}")
    k(f"v_lshl_add_u32 v{v_rm}, v{t1}, 8, v{v_rm}")
    k(f"v_lshl_add_u32 v{v_rm}, v{t2}, 3, v{v_rm}")
    k(f"s_mul_i32 s{s_xg}, s{s_tok}, 1280")
    k(f"s_mul_i32 s{s_t}, s{s_cb}, 2560")
    k(f"s_add_u32 s{s_xg}, s{s_xg}, s{s_t}")
    k(f"s_add_u32 s{s_xg}, s{s_xg}, {WS_XG}")
    k(f"s_mul_i32 s{s_hoff}, s{s_cb}, 5120")
    k(f"s_add_u32 s{s_hoff}, s{s_hoff}, {WS_H}")
    k(f"s_mul_i32 s{s_rmoff}, s{s_cb}, 160")
    k(f"v_add_u32 v{t2}, 4096, v{v_h}")
    k(f"v_lshlrev_b32 v{t1}, 3, v{v_g}")
    s_cc, s_cx, s_cw = 48, 49, 50
    if ROT:
        fa, fb = (3, 5) if NCH == 12 else (1, 2)
        k(f"s_and_b32 s{s_t}, s{s_tb}, 3")
        k(f"s_mul_i32 s{s_t}, s{s_t}, {fa}")
        k(f"s_mul_i32 s{s_t2}, s{s_cb}, {fb}")
        k(f"s_add_u32 s{s_t}, s{s_t}, s{s_t2}")
        sdiv(k, s_cx, s_cc, s_t, NCH, s_t2)
    else:
        k(f"s_mov_b32 s{s_cc}, 0")
    k("s_waitcnt lgkmcnt(0)")
    k.srd(sWS, 12, WS_SIZE)
    if name == "k5":
        k.srd(sB, 8, 1280)

    def chunk_loads(c):
        fs = []
        for i in range(4):
            def fx(i=i, c=c):
                if i == 0:
                    k(f"s_mul_i32 s{s_cx}, s{s_cc}, 4096")
                    k(f"s_mul_i32 s{s_cw}, s{s_cc}, 20480")
                    k(f"s_add_u32 s{s_cx}, s{s_cx}, s{s_xoff}")
                    k(f"s_add_u32 s{s_cw}, s{s_cw}, s{s_off}")
                    k(f"s_add_u32 s{s_cc}, s{s_cc}, 1")
                    k(f"s_cmp_eq_u32 s{s_cc}, {NCH}")
                    k(f"s_cselect_b32 s{s_cc}, 0, s{s_cc}")
                k.vmissue(f"buffer_load_dwordx4 {vr(XB+(c%RX)*16+4*i,4)}, v{v_x}, s[{sWS}:{sWS+3}], s{s_cx} offen offset:{i*1024}", f"c{c}")
            fs.append(fx)
        for i in range(5):
            def fw(i=i, c=c):
                k(f"s_add_u32 m0, s{s_l}, {(c%R)*20480 + i*1024}")
                k(f"s_add_u32 s{s_t2}, s{s_cw}, {i*1024}")
                k.vmissue(f"buffer_load_dwordx4 v{v_x}, s[{sWS}:{sWS+3}], s{s_t2} offen lds", f"c{c}")
            fs.append(fw)
        return fs
    for f in chunk_loads(0):
        f()
    for t in range(5):
        if name == "k3":
            k.vmissue(f"buffer_load_dwordx2 {vr(RES+2*t,2)}, v{v_rm}, s[{sWS}:{sWS+3}], s{s_xg} offen offset:{t*512}", "c0")
        else:
            if t < 4:
                k.vmissue(f"buffer_load_dwordx2 {vr(RES+2*t,2)}, v{v_h}, s[{sWS}:{sWS+3}], s{s_hoff} offen offset:{t*1024}", "c0")
            else:
                k.vmissue(f"buffer_load_dwordx2 {vr(RES+2*t,2)}, v{t2}, s[{sWS}:{sWS+3}], s{s_hoff} offen", "c0")
            k.vmissue(f"buffer_load_dwordx2 {vr(BIA+2*t,2)}, v{t1}, s[{sB}:{sB+3}], s{s_rmoff} offen offset:{t*32}", "c0")
    for c in range(1, PD):
        for f in chunk_loads(c):
            f()
    k(f"v_add_u32 v{v_a2}, {3*20480}, v{v_x}")
    k(f"v_lshlrev_b32 v{v_st}, 6, v{t0}")
    k(f"v_mov_b32 v{v_s1}, 0")
    k(f"v_mov_b32 v{v_s2}, 0")
    k(f"v_mov_b32 v7, 0x3f803f80")
    if name == "k5":
        k.srd(sO, 10, 2048 * 1280)
        k(f"s_mul_i32 s{s_t}, s{s_w}, 2560")
        k(f"s_add_u32 s{s_t}, s{s_t}, {R*20480}")
        k(f"v_mul_u32_u24 v{v_ow}, 160, v{v_idx}")
        k(f"v_add_u32 v{v_ow}, v{v_ow}, v{t1}")
        k(f"v_add_u32 v{v_ow}, s{s_t}, v{v_ow}")
        k(f"v_add_u32 v{v_or}, s{s_t}, v{v_x}")
        for i in range(3):
            k(f"v_add_u32 v{v_s1}, {i*64}, v{v_l}")
            k(f"v_mul_u32_u24 v{v_s2}, 6554, v{v_s1}")
            k(f"v_lshrrev_b32 v{v_s2}, 16, v{v_s2}")
            k(f"v_mul_u32_u24 v{v_st}, 10, v{v_s2}")
            k(f"v_sub_u32 v{v_st}, v{v_s1}, v{v_st}")
            k(f"v_add_u32 v{v_s2}, s{s_tok}, v{v_s2}")
            k(f"v_mul_u32_u24 v{v_s2}, 1280, v{v_s2}")
            k(f"v_lshl_add_u32 v{OADR+i}, v{v_st}, 4, v{v_s2}")
        k(f"v_cmp_gt_u32 vcc, 32, v{v_l}")
        k(f"v_mov_b32 v{v_s1}, 0x7ffffff0")
        k.nop(1)
        k(f"v_cndmask_b32 v{OADR+2}, v{v_s1}, v{OADR+2}, vcc")
    spr = Sprinkle()
    k.stamp()

    def read_fn(i, buf):
        c, r = divmod(i, 20)
        slot = c % R
        base, off = (v_x, slot * 20480) if slot < 3 else (v_a2, (slot - 3) * 20480)
        k(f"ds_read_b128 {vr(AF+4*buf,4)}, v{base} offset:{off + r*1024}")

    def mfma_fn(i, buf):
        c, r = divmod(i, 20)
        s, t = divmod(r, 5)
        X = XB + (c % RX) * 16 + 4 * s
        if i == 0:
            for tt in range(5):
                a = ACC + 4 * tt
                k(f"v_lshlrev_b32 v{a}, 16, v{RES+2*tt}")
                k(f"v_and_b32 v{a+1}, 0xffff0000, v{RES+2*tt}")
                k(f"v_lshlrev_b32 v{a+2}, 16, v{RES+2*tt+1}")
                k(f"v_and_b32 v{a+3}, 0xffff0000, v{RES+2*tt+1}")
                if name == "k5":
                    k(f"v_lshlrev_b32 v{RES+2*tt}, 16, v{BIA+2*tt}")
                    k(f"v_and_b32 v{BIA+2*tt}, 0xffff0000, v{BIA+2*tt}")
                    k(f"v_lshlrev_b32 v{RES+2*tt+1}, 16, v{BIA+2*tt+1}")
                    k(f"v_and_b32 v{BIA+2*tt+1}, 0xffff0000, v{BIA+2*tt+1}")
                    k(f"v_add_f32 v{a}, v{a}, v{RES+2*tt}")
                    k(f"v_add_f32 v{a+1}, v{a+1}, v{BIA+2*tt}")
                    k(f"v_add_f32 v{a+2}, v{a+2}, v{RES+2*tt+1}")
                    k(f"v_add_f32 v{a+3}, v{a+3}, v{BIA+2*tt+1}")
            k.nop(2)
        k(f"v_mfma_f32_16x16x32_bf16 {vr(ACC+4*t,4)}, {vr(AF+4*buf,4)}, {vr(X,4)}, {vr(ACC+4*t,4)}")

    def mk_sync(c):
        def f():
            k.vmwait(f"c{c}")
            k("s_barrier")
            if c in (0, 1, NCH - 1):
                k.stamp()
        return f
    sync_at = {20 * c: mk_sync(c) for c in range(NCH)}

    def side(i):
        c, r = divmod(i, 20)
        if r == 0 and c + PD < NCH:
            for f in chunk_loads(c + PD):
                spr.add(f)
        spr.emit(1)
    gemm_pipeline(k, 20 * NCH, D, lambda j: 1, read_fn, mfma_fn, sync_at, side)
    assert not spr.q
    k.stamp()
    k.nop(4)
    T = AF
    for t in range(5):
        a = ACC + 4 * t
        k(f"v_cvt_pk_bf16_f32 v{T+2*t}, v{a}, v{a+1}")
        k(f"v_cvt_pk_bf16_f32 v{T+1+2*t}, v{a+2}, v{a+3}")
        if name == "k3":
            if t < 4:
                k(f"buffer_store_dwordx2 {vr(T+2*t,2)}, v{v_h}, s[{sWS}:{sWS+3}], s{s_hoff} offen offset:{t*1024}")
            else:
                k(f"buffer_store_dwordx2 {vr(T+2*t,2)}, v{t2}, s[{sWS}:{sWS+3}], s{s_hoff} offen")
        else:
            k(f"ds_write_b64 v{v_ow}, {vr(T+2*t,2)} offset:{t*32}")
    if name == "k3":
        for i in range(10):
            k(f"v_dot2_f32_bf16 v{v_s1}, v{T+i}, v7, v{v_s1}")
            k(f"v_dot2_f32_bf16 v{v_s2}, v{T+i}, v{T+i}, v{v_s2}")
        chs = []
        for v, tt in ((v_s1, t0), (v_s2, t1)):
            chs.append([(f"v_mov_b32 v{tt}, v{v}", 3), (f"v_permlane16_swap_b32 v{v}, v{tt}", 2), (f"v_add_f32 v{v}, v{v}, v{tt}", 1),
                        (f"v_mov_b32 v{tt}, v{v}", 0), (f"v_permlane32_swap_b32 v{v}, v{tt}", 2), (f"v_add_f32 v{v}, v{v}, v{tt}", 1)])
        k.nop(3)
        interleave(k, chs)
        k(f"s_lshl_b32 s{s_t}, s{s_cb}, 3")
        k(f"s_add_u32 s{s_t}, s{s_t}, {WS_ST}")
        k(f"buffer_store_dwordx2 {vr(v_s1,2)}, v{v_st}, s[{sWS}:{sWS+3}], s{s_t} offen")
    else:
        k("s_waitcnt lgkmcnt(0)")
        for i in range(3):
            k(f"ds_read_b128 {vr(T+12+4*i,4)}, v{v_or} offset:{i*1024}")
        for i in range(3):
            k(f"s_waitcnt lgkmcnt({2-i})")
            k(f"buffer_store_dwordx4 {vr(T+12+4*i,4)}, v{OADR+i}, s[{sO}:{sO+3}], s{s_rmoff} offen")
    k.stamp_flush(s_w)
    k.label(f"{name}_end")
    k("s_endpgm")
    if helper:
        k.label(f"{name}_helper")
        slab = 256 * Kdim * 2
        k(f"s_and_b32 s{s_l}, s2, 7")
        k(f"s_mul_i32 s{s_l}, s{s_l}, {slab}")
        k("s_waitcnt lgkmcnt(0)")
        k(f"s_add_u32 s14, s12, s{s_l}")
        k("s_addc_u32 s15, s13, 0")
        helper_prefetch(k, 48, 14, WS_O if name == "k3" else WS_H1, slab, v_l, t0, t1, s_t, s_t2)
        k("s_barrier")
        if name == "k3":
            helper_prefetch(k, 52, 12, WS_W1, 1920 * 1024, v_l, t0, t1, s_t, s_t2)
        for c in range(NCH - 1):
            k("s_barrier")
        k("s_endpgm")
    return k.text(NV), name + "_kernel", (256, 256, R * 20480 + (10240 + 1024 if name == "k5" else 0))


def gen_k4():
    k = Kern("k4_kernel")
    CK = 4
    NCH = 40 // CK
    PD = PD32
    R, RX, D = PD + 2, PD + 1, 6
    CB = CK * 3 * 1024
    sWS = 20
    s_tb, s_cb, s_w, s_t, s_t2, s_off, s_xoff, s_l = 32, 33, 34, 35, 36, 37, 38, 39
    v_l, v_q, v_half = 1, 2, 3
    v_x = 4
    v_x2 = 5
    t0, t1, t2, t3 = 12, 13, 14, 15
    BX = 16
    ST = 20
    AF = 28
    E = 56
    BX2 = 68
    ACC = 80
    EXA = 128
    XB = 152
    NV = XB + RX * 16
    helper = False
    k("s_cmp_ge_u32 s2, 256")
    k("s_cbranch_scc1 k4_end")
    k.stamp_init()
    k(f"s_load_dwordx2 s[12:13], s[0:1], {KA['ws']}")
    wave_lane_setup(k, s_w, v_l)
    if helper:
        k(f"s_cmp_eq_u32 s{s_w}, 4")
        k("s_cbranch_scc1 k4_helper")
    if MAP4 == 0:
        k(f"s_and_b32 s{s_t}, s2, 7")
        k(f"s_lshl_b32 s{s_tb}, s{s_t}, 1")
        k(f"s_bfe_u32 s{s_t}, s2, 0x10003")
        k(f"s_add_u32 s{s_tb}, s{s_tb}, s{s_t}")
        k(f"s_lshr_b32 s{s_cb}, s2, 4")
    else:
        b = MAP4
        k(f"s_bfe_u32 s{s_t}, s2, {hex(((3-b) << 16) | b)}")
        k(f"s_lshl_b32 s{s_tb}, s{s_t}, {1+b}")
        k(f"s_bfe_u32 s{s_t}, s2, {hex(((1+b) << 16) | 3)}")
        k(f"s_add_u32 s{s_tb}, s{s_tb}, s{s_t}")
        k(f"s_and_b32 s{s_t}, s2, {(1 << b) - 1}")
        k(f"s_lshl_b32 s{s_cb}, s{s_t}, {4-b}")
        k(f"s_lshr_b32 s{s_t}, s2, {4+b}")
        k(f"s_add_u32 s{s_cb}, s{s_cb}, s{s_t}")
    k(f"v_lshlrev_b32 v{v_x}, 4, v{v_l}")
    k(f"s_lshl_b32 s{s_t}, s{s_tb}, 2")
    k(f"s_add_u32 s{s_t}, s{s_t}, s{s_w}")
    k(f"s_mul_i32 s{s_xoff}, s{s_t}, {640*64}")
    k(f"s_add_u32 s{s_xoff}, s{s_xoff}, {WS_H}")
    k(f"s_mul_i32 s{s_off}, s{s_cb}, {640*192}")
    k(f"s_mul_i32 s{s_l}, s{s_w}, {CB//4}")
    k(f"s_add_u32 s{s_off}, s{s_off}, s{s_l}")
    k(f"s_add_u32 s{s_off}, s{s_off}, {WS_W1}")
    s_cc, s_cx, s_cw = 48, 49, 50
    if ROT:
        k(f"s_and_b32 s{s_t}, s{s_tb}, 1")
        k(f"s_mul_i32 s{s_t}, s{s_t}, 5")
        k(f"s_mul_i32 s{s_t2}, s{s_cb}, 3")
        k(f"s_add_u32 s{s_t}, s{s_t}, s{s_t2}")
        sdiv(k, s_cx, s_cc, s_t, NCH, s_t2)
    else:
        k(f"s_mov_b32 s{s_cc}, 0")
    k("s_waitcnt lgkmcnt(0)")
    k.srd(sWS, 12, WS_SIZE)

    def chunk_loads(c):
        fs = []
        for i in range(CK):
            def fx(i=i, c=c):
                if i == 0:
                    k(f"s_mul_i32 s{s_cx}, s{s_cc}, {CK*1024}")
                    k(f"s_mul_i32 s{s_cw}, s{s_cc}, {CB}")
                    k(f"s_add_u32 s{s_cx}, s{s_cx}, s{s_xoff}")
                    k(f"s_add_u32 s{s_cw}, s{s_cw}, s{s_off}")
                    k(f"s_add_u32 s{s_cc}, s{s_cc}, 1")
                    k(f"s_cmp_eq_u32 s{s_cc}, {NCH}")
                    k(f"s_cselect_b32 s{s_cc}, 0, s{s_cc}")
                k.vmissue(f"buffer_load_dwordx4 {vr(XB+((c%RX)*CK+i)*4,4)}, v{v_x}, s[{sWS}:{sWS+3}], s{s_cx} offen offset:{i*1024}", f"c{c}")
            fs.append(fx)
        for i in range(CB // 4096):
            def fw(i=i, c=c):
                k(f"s_add_u32 m0, s{s_l}, {(c%R)*CB + i*1024}")
                k(f"s_add_u32 s{s_t2}, s{s_cw}, {i*1024}")
                k.vmissue(f"buffer_load_dwordx4 v{v_x}, s[{sWS}:{sWS+3}], s{s_t2} offen lds", f"c{c}")
            fs.append(fw)
        return fs
    for c in range(PD):
        for f in chunk_loads(c):
            f()
    k(f"v_and_b32 v{v_q}, 31, v{v_l}")
    k(f"v_lshrrev_b32 v{v_half}, 5, v{v_l}")
    k(f"v_add_u32 v{v_x2}, {5*CB}, v{v_x}")
    for i in range(48):
        k(f"v_mov_b32 v{ACC+i}, 0")
    k(f"s_lshl_b32 s{s_t}, s{s_tb}, 7")
    k(f"s_lshl_b32 s{s_t2}, s{s_w}, 5")
    k(f"s_add_u32 s{s_t}, s{s_t}, s{s_t2}")
    k(f"v_add_u32 v{t1}, s{s_t}, v{v_q}")
    k(f"v_lshlrev_b32 v{t3}, 6, v{t1}")
    k(f"v_lshl_add_u32 v{t3}, v{v_half}, 5, v{t3}")
    k(f"v_lshrrev_b32 v{t2}, 4, v{t1}")
    k(f"v_mul_u32_u24 v{t2}, {1536*32}, v{t2}")
    k(f"v_and_b32 v{t1}, 15, v{t1}")
    k(f"v_lshl_add_u32 v{t2}, v{t1}, 4, v{t2}")
    k(f"v_lshl_add_u32 v{t2}, v{v_half}, 8, v{t2}")
    s_so, s_ex, s_st = 40, 41, 42
    k(f"s_mul_i32 s{s_so}, s{s_cb}, {12*256}")
    k(f"s_add_u32 s{s_so}, s{s_so}, {WS_H1}")
    k(f"s_mul_i32 s{s_ex}, s{s_cb}, 6144")
    k(f"s_add_u32 s{s_ex}, s{s_ex}, {WS_EX}")
    k(f"s_mov_b32 s{s_st}, {WS_ST}")

    def epi_loads():
        fs = []
        for i in range(2):
            fs.append(lambda i=i: k.vmissue(f"buffer_load_dwordx4 {vr(ST+4*i,4)}, v{t3}, s[{sWS}:{sWS+3}], s{s_st} offen offset:{i*16}", "epi"))
        for t in range(6):
            def fe(t=t):
                k(f"s_add_u32 s{s_t2}, s{s_ex}, {t*1024}")
                k.vmissue(f"buffer_load_dwordx4 {vr(EXA+4*t,4)}, v{v_x}, s[{sWS}:{sWS+3}], s{s_t2} offen", "epi")
            fs.append(fe)
        return fs
    spr = Sprinkle()
    k.stamp()
    UPC = CK * 3
    v_mean, v_rstd, v_sum, v_sq = E, E + 1, E + 2, E + 3

    def stats_code():
        kk = Kern("tmp")
        kk(f"v_add_f32 v{v_sum}, v{ST}, v{ST+2}")
        kk(f"v_add_f32 v{v_sq}, v{ST+1}, v{ST+3}")
        kk(f"v_add_f32 v{ST+4}, v{ST+4}, v{ST+6}")
        kk(f"v_add_f32 v{ST+5}, v{ST+5}, v{ST+7}")
        kk(f"v_add_f32 v{v_sum}, v{v_sum}, v{ST+4}")
        kk(f"v_add_f32 v{v_sq}, v{v_sq}, v{ST+5}")
        xsum_halves(kk, v_sum, t0)
        xsum_halves(kk, v_sq, t0)
        ln_stats(kk, v_sum, v_sq, v_mean, v_rstd, t0, t1)
        kk(f"v_xor_b32 v{t0}, 0x80000000, v{v_mean}")
        kk(f"v_lshrrev_b32 v{BX}, 16, v{t0}")
        kk(f"v_or_b32 v{BX}, v{BX}, v{t0}")
        kk(f"v_cmp_eq_u32 vcc, 0, v{v_half}")
        for r_ in (BX + 1, BX + 2, BX + 3, BX2, BX2 + 1, BX2 + 2):
            kk(f"v_mov_b32 v{r_}, v{BX}")
        kk(f"v_lshrrev_b32 v{t0}, 16, v{t1}")
        kk(f"v_cndmask_b32 v{BX2+3}, v{t0}, v{BX}, vcc")
        kk(f"v_mul_f32 v{v_rstd}, v{v_rstd}, v{v_rstd}")
        kk(f"v_mov_b32 v{v_rstd+1}, v{v_rstd}")
        return [l.strip() for l in kk.L]

    def read_fn(i, buf):
        c, r = divmod(i, UPC)
        slot = c % R
        base, off = (v_x, slot * CB) if slot < 5 else (v_x2, (slot - 5) * CB)
        k(f"ds_read_b128 {vr(AF+4*buf,4)}, v{base} offset:{off + r*1024}")

    def mfma_fn(i, buf):
        c, r = divmod(i, UPC)
        s, t = divmod(r, 3)
        X = XB + ((c % RX) * CK + s) * 4
        k(f"v_mfma_f32_32x32x16_bf16 {vr(ACC+16*t,16)}, {vr(AF+4*buf,4)}, {vr(X,4)}, {vr(ACC+16*t,16)}")

    def mk_sync(c):
        def f():
            k.vmwait(f"c{c}")
            k("s_barrier")
            if c in (0, 1, NCH - 1):
                k.stamp()
        return f
    sync_at = {UPC * c: mk_sync(c) for c in range(NCH)}
    spr2 = Sprinkle()

    def side(i):
        c, r = divmod(i, UPC)
        if r == 0:
            if c + PD < NCH:
                for f in chunk_loads(c + PD):
                    spr.add(f)
            elif c + PD == NCH:
                for f in epi_loads():
                    spr.add(f)
            if c == NCH - 1:
                k.vmwait("epi")
                for l in stats_code():
                    spr2.add(lambda l=l: k(l))
        spr.emit(1)
        spr2.emit(4)
    gemm_pipeline(k, UPC * NCH, D, lambda j: 1, read_fn, mfma_fn, sync_at, side)
    assert not spr.q
    spr2.emit(1000)
    k.stamp()
    k.nop(2)
    for t in range(3):
        k(f"v_mfma_f32_32x32x16_bf16 {vr(ACC+16*t,16)}, {vr(EXA+8*t,4)}, {vr(BX,4)}, {vr(ACC+16*t,16)}")
        k(f"v_mfma_f32_32x32x16_bf16 {vr(ACC+16*t,16)}, {vr(EXA+8*t+4,4)}, {vr(BX2,4)}, {vr(ACC+16*t,16)}")
    k.nop(6)
    R2 = E + 4
    k(f"v_mov_b32 v{R2}, v{v_rstd}")
    k(f"v_mov_b32 v{R2+1}, v{v_rstd}")
    TM = XB
    for t in range(3):
        for qp in range(2):
            O4 = XB + 32 + (t * 2 + qp) * 4
            for qq in range(2):
                z = ACC + 16 * t + 8 * qp + 4 * qq
                m = TM + 4 * qq
                for r in range(4):
                    k(f"v_max_f32 v{m+r}, 0, v{z+r}")
                k(f"v_pk_mul_f32 {vr(z,2)}, {vr(z,2)}, {vr(R2,2)}")
                k(f"v_pk_mul_f32 {vr(z+2,2)}, {vr(z+2,2)}, {vr(R2,2)}")
                k(f"v_pk_mul_f32 {vr(z,2)}, {vr(z,2)}, {vr(m,2)}")
                k(f"v_pk_mul_f32 {vr(z+2,2)}, {vr(z+2,2)}, {vr(m+2,2)}")
                k(f"v_cvt_pk_bf16_f32 v{O4+2*qq}, v{z}, v{z+1}")
                k(f"v_cvt_pk_bf16_f32 v{O4+2*qq+1}, v{z+2}, v{z+3}")
            k.nop(2)
            k(f"v_permlane32_swap_b32 v{O4}, v{O4+2}")
            k(f"v_permlane32_swap_b32 v{O4+1}, v{O4+3}")
            k(f"buffer_store_dwordx4 {vr(O4,4)}, v{t2}, s[{sWS}:{sWS+3}], s{s_so} offen offset:{(4*t+2*qp)*256} {SC4}")
    k.stamp_flush(s_w)
    k.label("k4_end")
    k("s_endpgm")
    if helper:
        k.label("k4_helper")
        slab = 256 * 640 * 2
        k(f"s_and_b32 s{s_l}, s2, 7")
        k(f"s_mul_i32 s{s_l}, s{s_l}, {slab}")
        k("s_waitcnt lgkmcnt(0)")
        k(f"s_add_u32 s14, s12, s{s_l}")
        k("s_addc_u32 s15, s13, 0")
        helper_prefetch(k, 48, 14, WS_H, slab, v_l, t0, t1, s_t, s_t2)
        k("s_barrier")
        k("s_barrier")
        helper_prefetch(k, 52, 12, WS_W2, 1920 * 1024, v_l, t0, t1, s_t, s_t2)
        for c in range(NCH - 2):
            k("s_barrier")
        k("s_endpgm")
    return k.text(NV), "k4_kernel", (256, 320 if helper else 256, R * CB)


def gen_kp(order):
    k = Kern("kp_kernel")
    k("s_cmp_ge_u32 s2, 256")
    k("s_cbranch_scc1 kp_end")
    k(f"s_load_dwordx2 s[12:13], s[0:1], {KA['ws']}")
    k("v_and_b32 v1, 63, v0")
    k("s_waitcnt lgkmcnt(0)")
    for ch in order:
        off, nb = {"o": (WS_WO, 800 * 1024), "1": (WS_W1, 1920 * 1024), "2": (WS_W2, 1920 * 1024)}[ch]
        helper_prefetch(k, 48, 12, off, nb, 1, 4, 5, 35, 36)
        k("s_waitcnt vmcnt(0)")
    k.label("kp_end")
    k("s_endpgm")
    return k.text(16), "kp_kernel", (256, 64, 0)


def main(outpath):
    ks = [gen_k1(), gen_k2(), gen_g16("k3", 640), gen_k4(), gen_g16("k5", 1536)]
    if os.environ.get("EMPTY"):
        e = Kern("ke_kernel")
        e("s_endpgm")
        for _ in range(int(os.environ["EMPTY"])):
            pass
        ks.append((e.text(8), "ke_kernel", (256, 64, 0)))
    if os.environ.get("KP"):
        ks.insert(2, gen_kp(os.environ["KP"]))
    hdr = open("cdna_kernels/" + NAME + ".s.ref").read().split("\n")
    head = [l for l in hdr if l.startswith(";") and "@launch" not in l and "Override" not in l and "grid=ceil" not in l]
    s = "\n".join(head) + "\n"
    for (_, name, (g, b, lds)) in ks:
        for _rep in range(2 if name[:2] in os.environ.get("DUP", "") else 1):
            s += f"; @launch kernel={name} grid=({g},1,1) block=({b},1,1) lds={lds}\n"
    s += '.amdgcn_target "amdgcn-amd-amdhsa--gfx950"\n.text\n'
    for ((txt, kd), _, _) in ks:
        s += txt
    s += "text_end:\n"
    s += '.section .rodata,"a"\n'
    for ((txt, kd), _, _) in ks:
        s += kd
    open(outpath, "w").write(s)


if __name__ == "__main__":
    main(sys.argv[1] if len(sys.argv) > 1 else "cdna_kernels/" + NAME + ".s")
```

```python
import sys
sys.path.insert(0, "work")
from common import *

WS_WO = 0x1000000
WS_W1 = 0x1100000
WS_W2 = 0x1300000
WS_EX = 0x1500000
WS_ST = 0x1520000
WS_XG = 0x1600000
WS_CNT = 0x1900000
WS_SIZE = 0x1A00000
PD16 = int(os.environ.get("PD16", "2"))
PD32 = int(os.environ.get("PD32", "3"))
NOPF = int(os.environ.get("NOPF", "0"))
PFORDER = os.environ.get("PFORDER", "OXo1")
SC = os.environ.get("SC", "sc1")
SC4 = os.environ.get("SC4", "")
MAP4 = int(os.environ.get("MAP4", "1"))
MAP5 = int(os.environ.get("MAP5", "0"))
ROT = int(os.environ.get("ROT", "0"))
PFT = int(os.environ.get("PFT", "14"))


def gemm_pipeline(k, n, D, nreads, read_fn, mfma_fn, sync_at, side):
    nbuf = D + 1
    for i in range(min(D, n)):
        if i in sync_at:
            sync_at[i]()
        read_fn(i, i % nbuf)
    for i in range(n):
        cnt = sum(nreads(j) for j in range(i + 1, min(i + D, n)))
        assert cnt <= 15
        k(f"s_waitcnt lgkmcnt({cnt})")
        mfma_fn(i, i % nbuf)
        j = i + D
        if j < n:
            if j in sync_at:
                sync_at[j]()
            read_fn(j, j % nbuf)
        side(i)


def sdiv(k, q, r, x, d, tmp):
    m = (2 ** 32 + d - 1) // d
    k(f"s_mul_hi_u32 s{q}, s{x}, {hex(m)}")
    k(f"s_mul_i32 s{tmp}, s{q}, {d}")
    k(f"s_sub_u32 s{r}, s{x}, s{tmp}")


def decode_tb_cb(k, s_tb, s_cb, s_t, s_t2):
    k(f"s_and_b32 s{s_t}, s2, 7")
    k(f"s_lshr_b32 s{s_t2}, s2, 3")
    k(f"s_lshl_b32 s{s_tb}, s{s_t}, 2")
    k(f"s_and_b32 s{s_t}, s{s_t2}, 3")
    k(f"s_add_u32 s{s_tb}, s{s_tb}, s{s_t}")
    k(f"s_lshr_b32 s{s_cb}, s{s_t2}, 2")


def interleave(k, chains):
    pos = [0] * len(chains)
    last = [-100] * len(chains)
    n = 0
    while any(p < len(c) for p, c in zip(pos, chains)):
        did = False
        for i, c in enumerate(chains):
            if pos[i] < len(c) and n - last[i] - 1 >= c[pos[i]][1]:
                k(c[pos[i]][0])
                last[i] = n
                pos[i] += 1
                n += 1
                did = True
        if not did:
            k("s_nop 0")
            n += 1


def helper_prefetch(k, srd, base_pair, off, nbytes, v_l, v_pf, v_dum, s_t, s_t2):
    k.srd(srd, base_pair, nbytes, off)
    k(f"s_lshr_b32 s{s_t}, s2, 3")
    k(f"s_lshl_b32 s{s_t}, s{s_t}, 13")
    k(f"v_lshlrev_b32 v{v_pf}, 7, v{v_l}")
    per = 32 * 64 * 128
    for i in range((nbytes + per - 1) // per):
        k(f"s_add_u32 s{s_t2}, s{s_t}, {i*per}")
        k(f"buffer_load_dword v{v_dum}, v{v_pf}, s[{srd}:{srd+3}], s{s_t2} offen")


class Sprinkle:
    def __init__(self):
        self.q = []

    def add(self, f):
        self.q.append(f)

    def emit(self, n):
        for _ in range(n):
            if self.q:
                self.q.pop(0)()


def frag_src(k, s_src, s_f, NT, S, KS, ld, TN, MT, s_a, s_b, s_c, s_d, s_t):
    sdiv(k, s_b, s_c, s_f, NT, s_t)
    sdiv(k, s_a, s_d, s_b, S, s_t)
    k(f"s_mul_i32 s{s_src}, s{s_d}, {KS*ld}")
    k(f"s_mul_i32 s{s_t}, s{s_a}, {TN*2}")
    k(f"s_add_u32 s{s_src}, s{s_src}, s{s_t}")
    k(f"s_mul_i32 s{s_t}, s{s_c}, {MT*2}")
    k(f"s_add_u32 s{s_src}, s{s_src}, s{s_t}")


def gen_k1():
    k = Kern("k1_kernel")
    R, RXL, PD = 4, 3, 2
    LDS_X = R * 20480
    LDS_KV = LDS_X + RXL * 16384
    LDS_SCR = LDS_KV + 25600
    sX, sW, sKV, sWS = 16, 20, 24, 28
    s_tb, s_cb, s_w, s_t, s_t2, s_off, s_l = 32, 33, 34, 35, 36, 37, 41
    s_ones = 38
    s_qoff = 42
    s_xl = 43
    s_rot = 44
    v_l, v_idx, v_g = 1, 2, 3
    v_w = 5
    v_a = 10
    v_akv = 11
    t0, t1, t2, t3 = 12, 13, 14, 15
    v_sum, v_sq = 16, 18
    v_ones = 20
    XB = 24
    D = 5
    AF = 104
    VAR, VKR = 132, 136
    QAD = 140
    VXS, VXR = 145, 149
    ACC = 160
    CS = 188
    E = 216

    k("s_getpc_b64 s[48:49]")
    k.label("k1_pc")
    k("s_cmp_ge_u32 s2, 256")
    k("s_cbranch_scc1 k1_end")
    k(f"s_load_dwordx4 s[4:7], s[0:1], {KA['x']}")
    k(f"s_load_dwordx4 s[8:11], s[0:1], {KA['wk']}")
    k(f"s_load_dwordx2 s[12:13], s[0:1], {KA['ws']}")
    k("s_sub_u32 s48, s48, k1_pc-k1_kernel")
    k("s_subb_u32 s49, s49, 0")
    k("s_mov_b32 s50, text_end-k1_kernel")
    k("s_mov_b32 s51, 0x00020000")
    k(f"s_lshr_b32 s{s_t}, s2, 3")
    k(f"s_lshl_b32 s{s_t}, s{s_t}, 15")
    k(f"v_lshlrev_b32 v{t0}, 7, v0")
    k(f"buffer_load_dword v{E}, v{t0}, s[48:51], s{s_t} offen")
    k.stamp_init()
    wave_lane_setup(k, s_w, v_l)
    k(f"v_and_b32 v{v_idx}, 15, v{v_l}")
    k(f"v_lshrrev_b32 v{v_g}, 4, v{v_l}")
    decode_tb_cb(k, s_tb, s_cb, s_t, s_t2)
    k(f"s_lshl_b32 s{s_t}, s{s_tb}, 6")
    k(f"s_lshl_b32 s{s_t2}, s{s_w}, 4")
    k(f"s_add_u32 s{s_t}, s{s_t}, s{s_t2}")
    for j in range(4):
        k(f"v_add_u32 v{t0}, {4*j}, v{v_g}")
        k(f"v_xor_b32 v{t1}, v{v_idx}, v{t0}")
        k(f"v_add_u32 v{t0}, s{s_t}, v{t0}")
        k(f"v_mul_u32_u24 v{t0}, 1280, v{t0}")
        k(f"v_lshl_add_u32 v{VXS+j}, v{t1}, 4, v{t0}")
    k(f"s_lshl_b32 s{s_xl}, s{s_w}, 12")
    k(f"s_add_u32 s{s_xl}, s{s_xl}, {LDS_X}")
    k(f"s_mul_i32 s{s_off}, s{s_cb}, 160")
    k(f"s_mul_i32 s{s_t}, s{s_w}, {32*1280}")
    k(f"s_add_u32 s{s_off}, s{s_off}, s{s_t}")
    k(f"s_mul_i32 s{s_l}, s{s_w}, 5120")
    dma_offsets_160(k, v_w, v_l, 1280, t0, t1, t2)
    k("s_waitcnt lgkmcnt(0)")
    k.srd(sX, 4, 2048 * 1280)
    k.srd(sW, 6, 640 * 1280)

    def chunk_loads(c):
        fs = []
        for i in range(4):
            def fx(i=i, c=c):
                k(f"s_add_u32 m0, s{s_xl}, {(c%RXL)*16384 + i*1024}")
                k(f"s_mov_b32 s{s_t2}, {c*256}")
                k.vmissue(f"buffer_load_dwordx4 v{VXS+i}, s[{sX}:{sX+3}], s{s_t2} offen lds", f"c{c}")
            fs.append(fx)
        for i in range(5):
            def f(i=i, c=c):
                k(f"s_add_u32 m0, s{s_l}, {(c%R)*20480 + i*1024}")
                k(f"s_add_u32 s{s_t2}, s{s_off}, {c*128*1280}")
                k.vmissue(f"buffer_load_dwordx4 v{v_w+i}, s[{sW}:{sW+3}], s{s_t2} offen lds", f"c{c}")
            fs.append(f)
        return fs
    for f in chunk_loads(0):
        f()
    k.srd(sWS, 12, WS_SIZE)
    k.srd(52, 12, 4096, WS_CNT)
    k(f"s_lshl_b32 s{s_t}, s2, 7")
    k(f"v_mov_b32 v{t0}, 0")
    k.vmissue(f"buffer_store_dword v{t0}, v{t0}, s[52:55], s{s_t} offen", "c1")
    k(f"s_cmp_eq_u32 s{s_cb}, 0")
    k(f"s_cselect_b32 s{sKV}, s8, s10")
    k(f"s_cselect_b32 s{sKV+1}, s9, s11")
    k(f"s_mov_b32 s{sKV+2}, 25600")
    k(f"s_mov_b32 s{sKV+3}, 0x00020000")
    k(f"s_cmp_ge_u32 s{s_cb}, 2")
    k(f"s_cbranch_scc1 k1_nokvload")
    k(f"v_lshlrev_b32 v{t0}, 4, v{v_l}")
    for i in range(7):
        k(f"s_add_u32 s{s_t}, s{s_w}, {4*i}")
        k(f"s_min_u32 s{s_t}, s{s_t}, 24")
        k(f"s_lshl_b32 s{s_t}, s{s_t}, 10")
        k(f"s_add_u32 m0, s{s_t}, {LDS_KV}")
        k.nop(1)
        k(f"buffer_load_dwordx4 v{t0}, s[{sKV}:{sKV+3}], s{s_t} offen lds")
    k.label("k1_nokvload")
    K1PF = int(os.environ.get("K1PF", "0"))

    def sparse_pf(first_chunk):
        r0 = 128 * first_chunk
        k(f"s_lshr_b32 s{s_t}, s2, 3")
        k(f"s_lshl_b32 s{s_t}, s{s_t}, 2")
        k(f"s_add_u32 s{s_t}, s{s_t}, s{s_w}")
        k(f"s_lshl_b32 s{s_t}, s{s_t}, 13")
        k(f"s_add_u32 s{s_t}, s{s_t}, {r0*1280}")
        k(f"v_lshlrev_b32 v{t0}, 7, v{v_l}")
        k.vmissue(f"buffer_load_dword v{E+1}, v{t0}, s[{sW}:{sW+3}], s{s_t} offen", "c2")
        k(f"s_lshl_b32 s{s_t}, s{s_tb}, 6")
        k(f"s_lshl_b32 s{s_t2}, s{s_cb}, 3")
        k(f"s_add_u32 s{s_t}, s{s_t}, s{s_t2}")
        k(f"s_lshl_b32 s{s_t2}, s{s_w}, 1")
        k(f"s_add_u32 s{s_t}, s{s_t}, s{s_t2}")
        k(f"s_mul_i32 s{s_t}, s{s_t}, 1280")
        k(f"v_mul_u32_u24 v{t0}, 1280, v{v_g}")
        k(f"v_lshl_add_u32 v{t0}, v{v_idx}, 7, v{t0}")
        k(f"v_cmp_gt_u32 vcc, 10, v{v_idx}")
        k(f"v_cmp_gt_u32 s[52:53], 32, v{v_l}")
        k(f"v_mov_b32 v{t1}, 0x7fffff00")
        k("s_and_b64 vcc, vcc, s[52:53]")
        k.nop(1)
        k(f"v_cndmask_b32 v{t0}, v{t1}, v{t0}, vcc")
        k.vmissue(f"buffer_load_dword v{E+2}, v{t0}, s[{sX}:{sX+3}], s{s_t} offen", "c2")
    if K1PF == 2:
        sparse_pf(1)
    for f in chunk_loads(1):
        f()
    if K1PF == 1:
        sparse_pf(2)
    k(f"v_lshrrev_b32 v{t0}, 2, v{v_idx}")
    k(f"v_lshl_add_u32 v{t1}, v{v_g}, 2, v{t0}")
    k(f"v_mul_u32_u24 v{v_a}, 160, v{t1}")
    k(f"v_and_b32 v{t2}, 3, v{v_idx}")
    k(f"v_lshl_add_u32 v{v_a}, v{t2}, 3, v{v_a}")
    k(f"v_lshl_add_u32 v{t1}, v{v_g}, 3, v{t0}")
    k(f"v_mul_u32_u24 v{v_akv}, 40, v{t1}")
    k(f"v_lshl_add_u32 v{v_akv}, v{t2}, 3, v{v_akv}")
    k(f"v_add_u32 v{v_akv}, {LDS_KV}, v{v_akv}")
    k(f"v_lshlrev_b32 v{t3}, 8, v{v_idx}")
    k(f"v_add_u32 v{t3}, s{s_xl}, v{t3}")
    for i in range(4):
        k(f"s_add_u32 s{s_t}, s{s_w}, {i}")
        k(f"s_and_b32 s{s_rot}, s{s_t}, 3")
        k(f"s_mul_i32 s{s_t}, s{s_rot}, 5120")
        k(f"v_add_u32 v{VAR+i}, s{s_t}, v{v_a}")
        k(f"s_mul_i32 s{s_t}, s{s_rot}, 1280")
        k(f"v_add_u32 v{VKR+i}, s{s_t}, v{v_akv}")
        k(f"s_lshl_b32 s{s_t}, s{s_rot}, 2")
        k(f"v_add_u32 v{t0}, s{s_t}, v{v_g}")
        k(f"v_xor_b32 v{t0}, v{t0}, v{v_idx}")
        k(f"v_lshl_add_u32 v{VXR+i}, v{t0}, 4, v{t3}")
    k(f"s_and_b32 s{s_t}, s{s_w}, 1")
    k(f"s_lshl_b32 s{s_t}, s{s_t}, 4")
    k(f"v_add_u32 v{t3}, s{s_t}, v{v_idx}")
    for t in range(5):
        k(f"v_add_u32 v{t0}, {4*t}, v{v_g}")
        k(f"v_mul_u32_u24 v{t1}, 52, v{t0}")
        k(f"v_lshrrev_b32 v{t1}, 8, v{t1}")
        k(f"v_mul_u32_u24 v{t2}, 5, v{t1}")
        k(f"v_sub_u32 v{t0}, v{t0}, v{t2}")
        k(f"v_lshrrev_b32 v{t2}, 1, v{t0}")
        k(f"v_lshl_add_u32 v{t2}, v{t2}, 5, v{t3}")
        k(f"v_lshlrev_b32 v{t2}, 4, v{t2}")
        k(f"v_and_b32 v{QAD+t}, 1, v{t0}")
        k(f"v_lshl_add_u32 v{t2}, v{QAD+t}, 3, v{t2}")
        k(f"v_cmp_eq_u32 vcc, 4, v{t0}")
        k(f"v_lshlrev_b32 v{QAD+t}, 3, v{t3}")
        k(f"v_add_u32 v{QAD+t}, 1024, v{QAD+t}")
        k(f"v_cndmask_b32 v{t2}, v{t2}, v{QAD+t}, vcc")
        k(f"v_mul_u32_u24 v{t1}, {64*1280}, v{t1}")
        k(f"v_add_u32 v{QAD+t}, v{t1}, v{t2}")
    k(f"s_lshl_b32 s{s_qoff}, s{s_cb}, 8")
    k(f"s_lshl_b32 s{s_t}, s{s_tb}, 1")
    k(f"s_add_u32 s{s_qoff}, s{s_qoff}, s{s_t}")
    k(f"s_lshr_b32 s{s_t}, s{s_w}, 1")
    k(f"s_add_u32 s{s_qoff}, s{s_qoff}, s{s_t}")
    k(f"s_mul_i32 s{s_qoff}, s{s_qoff}, 1280")
    k(f"s_add_u32 s{s_qoff}, s{s_qoff}, {WS_Q}")
    k(f"s_mov_b32 s{s_ones}, 0x3f803f80")
    for i in range(4):
        k(f"v_mov_b32 v{v_ones+i}, s{s_ones}")
    for i in range(4):
        k(f"v_mov_b32 v{v_sum+i}, 0")
    for i in range(56):
        k(f"v_mov_b32 v{ACC+i}, 0")
    vm_snapshot = list(k.vm)
    k.stamp()

    def mainloop(mode):
        k.vm = list(vm_snapshot)
        nt = 5 if mode == 'q' else 7
        n = 20 * nt
        spr = Sprinkle()

        def read_fn(i, buf):
            s, t = divmod(i, nt)
            c, ii = divmod(s, 4)
            for j in range(2):
                if t < 5:
                    off = (c % R) * 20480 + j * 2560 + t * 32
                    base = VAR + ii
                else:
                    off = c * 5120 + j * 160 + (t - 5) * 32
                    base = VKR + ii
                k(f"ds_read_b64_tr_b16 {vr(AF+buf*4+2*j,2)}, v{base} offset:{off}")

        def mfma_fn(i, buf):
            s, t = divmod(i, nt)
            c, ii = divmod(s, 4)
            if ii == 0 and t == 0:
                for r in range(16):
                    X = XB + 16 * (c & 1) + r
                    k(f"v_dot2_f32_bf16 v{v_sum+(r&1)}, v{X}, v{v_ones}, v{v_sum+(r&1)}")
                    k(f"v_dot2_f32_bf16 v{v_sq+(r&1)}, v{X}, v{X}, v{v_sq+(r&1)}")
            X = XB + 16 * (c & 1) + 4 * ii
            A = AF + 4 * buf
            swap = (mode == 'v' and t >= 5)
            a, b = (vr(X, 4), vr(A, 4)) if swap else (vr(A, 4), vr(X, 4))
            k(f"v_mfma_f32_16x16x32_bf16 {vr(ACC+4*t,4)}, {a}, {b}, {vr(ACC+4*t,4)}")
            if ii == 0:
                k(f"v_mfma_f32_16x16x32_bf16 {vr(CS+4*t,4)}, {vr(v_ones,4)}, {vr(A,4)}, {vr(CS+4*t,4)}")

        def mk_sync(c):
            def f():
                k.vmwait(f"c{c}")
                for i in range(4):
                    k(f"ds_read_b128 {vr(XB+16*(c&1)+4*i,4)}, v{VXR+i} offset:{(c%RXL)*16384}")
                k("s_barrier")
                if mode == 'q' and c in (0, 1, 4):
                    k.stamp()
            return f
        sync_at = {4 * c * nt: mk_sync(c) for c in range(5)}

        def side(i):
            c, r = divmod(i, 4 * nt)
            if r == 0 and c + PD < 5:
                for g in chunk_loads(c + PD):
                    spr.add(g)
            spr.emit(1)
        gemm_pipeline(k, n, D, lambda j: 2, read_fn, mfma_fn, sync_at, side)
        assert not spr.q
    k(f"s_cmp_eq_u32 s{s_cb}, 0")
    k("s_cbranch_scc1 k1_loop_k")
    k(f"s_cmp_eq_u32 s{s_cb}, 1")
    k("s_cbranch_scc1 k1_loop_v")
    mainloop('q')
    k.label("k1_epi")
    k.stamp()
    k.vm = []
    v_mean, v_rstd = E, E + 1
    BX = E + 4
    LDS_EX = LDS_X
    k(f"s_lshl_b32 s{s_t}, s{s_w}, 8")
    k(f"s_add_u32 s{s_t}, s{s_t}, {LDS_EX}")
    k(f"v_lshlrev_b32 v{t3}, 4, v{v_idx}")
    k(f"v_add_u32 v{t3}, s{s_t}, v{t3}")
    k(f"v_lshlrev_b32 v{t2}, 4, v{v_l}")
    k(f"v_add_u32 v{t2}, {LDS_EX}, v{t2}")
    for t in range(7):
        c = CS + 4 * t
        k(f"v_and_b32 v{c+1}, 0xffff0000, v{c}")
        k(f"v_sub_f32 v{c}, v{c}, v{c+1}")
        k(f"v_and_b32 v{c+2}, 0xffff0000, v{c}")
        k(f"v_sub_f32 v{c+3}, v{c}, v{c+2}")
        k(f"v_lshrrev_b32 v{c}, 16, v{c+1}")
        k(f"v_or_b32 v{c}, v{c}, v{c+2}")
        k(f"v_lshrrev_b32 v{c+1}, 16, v{c+3}")
        k(f"v_mov_b32 v{c+2}, 0")
        k(f"v_mov_b32 v{c+3}, 0")
        k(f"ds_write_b128 v{t3}, {vr(c,4)} offset:{t*1024}")
    k(f"v_add_f32 v{v_sum}, v{v_sum}, v{v_sum+1}")
    k(f"v_add_f32 v{v_sq}, v{v_sq}, v{v_sq+1}")
    k("s_waitcnt lgkmcnt(0)")
    k("s_barrier")
    for t in range(7):
        k(f"ds_read_b128 {vr(XB+4*t,4)}, v{t2} offset:{t*1024}")
    chs = []
    for v, tt in ((v_sum, t0), (v_sq, t1)):
        chs.append([(f"v_mov_b32 v{tt}, v{v}", 0), (f"v_permlane16_swap_b32 v{v}, v{tt}", 2), (f"v_add_f32 v{v}, v{v}, v{tt}", 1),
                    (f"v_mov_b32 v{tt}, v{v}", 0), (f"v_permlane32_swap_b32 v{v}, v{tt}", 2), (f"v_add_f32 v{v}, v{v}, v{tt}", 1)])
    interleave(k, chs)
    ln_stats(k, v_sum, v_sq, v_mean, v_rstd, t0, t1)
    k(f"v_xor_b32 v{t0}, 0x80000000, v{v_mean}")
    k(f"v_lshrrev_b32 v{BX}, 16, v{t0}")
    k(f"v_or_b32 v{BX}, v{BX}, v{t0}")
    k(f"v_mov_b32 v{BX+1}, v{BX}")
    k(f"v_mov_b32 v{BX+2}, 0")
    k(f"v_mov_b32 v{BX+3}, 0")
    v_rs = E + 2
    k(f"v_mul_f32 v{v_rs}, {hex(f2u(QSCALE))}, v{v_rstd}")
    k(f"v_mov_b32 v{v_rs+1}, v{v_rs}")
    k("s_waitcnt lgkmcnt(0)")
    for t in range(5):
        k(f"v_mfma_f32_16x16x32_bf16 {vr(ACC+4*t,4)}, {vr(XB+4*t,4)}, {vr(BX,4)}, {vr(ACC+4*t,4)}")
    k.nop(4)
    O_ = E + 8
    for t in range(5):
        a = ACC + 4 * t
        k(f"v_pk_mul_f32 {vr(a,2)}, {vr(a,2)}, {vr(v_rs,2)}")
        k(f"v_pk_mul_f32 {vr(a+2,2)}, {vr(a+2,2)}, {vr(v_rs,2)}")
        k(f"v_cvt_pk_bf16_f32 v{O_+2*t}, v{a}, v{a+1}")
        k(f"v_cvt_pk_bf16_f32 v{O_+1+2*t}, v{a+2}, v{a+3}")
        k(f"buffer_store_dwordx2 {vr(O_+2*t,2)}, v{QAD+t}, s[{sWS}:{sWS+3}], s{s_qoff} offen")
    k.stamp_flush(s_w)
    k(f"s_cmp_lt_u32 s{s_cb}, 2")
    k("s_cbranch_scc1 k1_kv_epi")
    k.label("k1_end")
    k("s_endpgm")

    k.label("k1_kv_epi")
    s_base, s_u = 39, 40
    k(f"s_lshl_b32 s{s_t}, s{s_tb}, 1")
    k(f"s_lshr_b32 s{s_t2}, s{s_w}, 1")
    k(f"s_add_u32 s{s_t}, s{s_t}, s{s_t2}")
    k(f"s_mul_i32 s{s_base}, s{s_t}, 2560")
    k(f"s_add_u32 s{s_base}, s{s_base}, {WS_KV}")
    k(f"s_and_b32 s{s_u}, s{s_w}, 1")
    k(f"s_cmp_eq_u32 s{s_cb}, 1")
    k("s_cbranch_scc1 k1_epi_v")
    for t in range(5, 7):
        k(f"v_mfma_f32_16x16x32_bf16 {vr(ACC+4*t,4)}, {vr(XB+4*t,4)}, {vr(BX,4)}, {vr(ACC+4*t,4)}")
    P = E + 20
    k(f"v_cmp_eq_u32 vcc, 0, v{v_g}")
    k(f"s_lshl_b32 s{s_t}, s{s_u}, 4")
    k(f"v_add_u32 v{t1}, s{s_t}, v{v_idx}")
    k(f"v_lshrrev_b32 v{t2}, 1, v{v_g}")
    k(f"v_lshl_add_u32 v{t2}, v{t2}, 5, v{t1}")
    k(f"v_lshlrev_b32 v{t2}, 4, v{t2}")
    k(f"v_and_b32 v{t3}, 1, v{v_g}")
    k(f"v_lshl_add_u32 v{t2}, v{t3}, 3, v{t2}")
    k(f"v_lshlrev_b32 v{t0}, 3, v{t1}")
    k(f"v_add_u32 v{t0}, 2304, v{t0}")
    k(f"v_mov_b32 v{t1}, 0x7ffffff8")
    k(f"v_cndmask_b32 v{t1}, v{t1}, v{t0}, vcc")
    for r in range(8):
        k(f"v_mul_f32 v{ACC+20+r}, v{ACC+20+r}, v{v_rstd}")
    k(f"v_cvt_pk_bf16_f32 v{P}, v{ACC+20}, v{ACC+21}")
    k(f"v_cvt_pk_bf16_f32 v{P+1}, v{ACC+22}, v{ACC+23}")
    k(f"v_cvt_pk_bf16_f32 v{P+2}, v{ACC+24}, v{ACC+25}")
    k(f"v_cvt_pk_bf16_f32 v{P+3}, v{ACC+26}, v{ACC+27}")
    k(f"v_cndmask_b32 v{P+2}, 0, v{P+2}, vcc")
    k(f"v_cndmask_b32 v{P+3}, 0, v{P+3}, vcc")
    k(f"buffer_store_dwordx2 {vr(P,2)}, v{t2}, s[{sWS}:{sWS+3}], s{s_base} offen")
    k(f"buffer_store_dwordx2 {vr(P+2,2)}, v{t1}, s[{sWS}:{sWS+3}], s{s_base} offen")
    k(f"v_mov_b32 v{t3}, 0")
    for i in range(4):
        k(f"v_dot2_f32_bf16 v{t3}, v{P+i}, v{P+i}, v{t3}")
    k.nop(3)
    xsum_rows(k, t3, t0)
    for sh in (8, 4, 2, 1):
        k.nop(2)
        k(f"v_max_f32_dpp v{t3}, v{t3}, v{t3} row_ror:{sh} row_mask:0xf bank_mask:0xf")
    k(f"s_lshl_b32 s{s_t}, s{s_tb}, 2")
    k(f"s_add_u32 s{s_t}, s{s_t}, s{s_w}")
    k(f"s_lshl_b32 s{s_t}, s{s_t}, 2")
    k(f"s_add_u32 s{s_t}, s{s_t}, {WS_KMAX}")
    k(f"v_mov_b32 v{t2}, 0")
    k(f"buffer_store_dword v{t3}, v{t2}, s[{sWS}:{sWS+3}], s{s_t} offen")
    k("s_endpgm")
    k.label("k1_epi_v")
    for t in range(5, 7):
        k(f"v_mfma_f32_16x16x32_bf16 {vr(ACC+4*t,4)}, {vr(BX,4)}, {vr(XB+4*t,4)}, {vr(ACC+4*t,4)}")
    k(f"s_lshl_b32 s{s_t}, s{s_w}, 6")
    k(f"s_add_u32 s{s_t}, s{s_t}, {LDS_SCR}")
    k(f"v_lshlrev_b32 v{t2}, 2, v{v_idx}")
    k(f"v_add_u32 v{t2}, s{s_t}, v{t2}")
    k(f"ds_write_b32 v{t2}, v{v_rstd}")
    k(f"v_lshlrev_b32 v{t2}, 4, v{v_g}")
    k(f"v_add_u32 v{t2}, s{s_t}, v{t2}")
    k("s_waitcnt lgkmcnt(0)")
    R4 = XB + 32
    k(f"ds_read_b128 {vr(R4,4)}, v{t2}")
    k(f"v_and_b32 v{t1}, 1, v{v_g}")
    k(f"s_lshl_b32 s{s_t}, s{s_u}, 1")
    k(f"v_add_u32 v{t1}, s{s_t}, v{t1}")
    k(f"v_mul_u32_u24 v{t1}, 20, v{t1}")
    k(f"v_add_u32 v{t1}, v{t1}, v{v_idx}")
    k(f"v_lshlrev_b32 v{t1}, 4, v{t1}")
    k(f"v_lshrrev_b32 v{t2}, 1, v{v_g}")
    k(f"v_lshl_add_u32 v{t1}, v{t2}, 3, v{t1}")
    k(f"v_cmp_gt_u32 vcc, 4, v{v_idx}")
    k(f"v_mov_b32 v{t2}, 0x7ffffff8")
    k.nop(1)
    k(f"v_cndmask_b32 v{t0}, v{t2}, v{t1}, vcc")
    k("s_waitcnt lgkmcnt(0)")
    for t in range(5, 7):
        for r in range(4):
            a = ACC + 4 * t + r
            k(f"v_mul_f32 v{a}, v{a}, v{R4+r}")
        k(f"v_cvt_pk_bf16_f32 v{P+2*(t-5)}, v{ACC+4*t}, v{ACC+4*t+1}")
        k(f"v_cvt_pk_bf16_f32 v{P+2*(t-5)+1}, v{ACC+4*t+2}, v{ACC+4*t+3}")
    k(f"buffer_store_dwordx2 {vr(P,2)}, v{t1}, s[{sWS}:{sWS+3}], s{s_base} offen offset:1024")
    k(f"buffer_store_dwordx2 {vr(P+2,2)}, v{t0}, s[{sWS}:{sWS+3}], s{s_base} offen offset:{1024+256}")
    k("s_endpgm")

    k.label("k1_loop_k")
    mainloop('k')
    k("s_branch k1_epi")
    k.label("k1_loop_v")
    mainloop('v')
    k("s_branch k1_epi")

    return k.text(248), "k1_kernel", (256, 256, LDS_SCR + 512)


def gen_k2():
    k = Kern("k2_kernel")
    sWS, sKVs = 16, 20
    s_tb, s_hg, s_w, s_t, s_t2, s_kh, s_cnt, s_h, s_dma = 32, 33, 34, 35, 36, 38, 39, 40, 41
    s_vm = 42
    s_a, s_b, s_c, s_d = 54, 55, 56, 57
    v_l, v_q, v_half = 1, 2, 3
    t0, t1, t2, t3 = 4, 5, 6, 7
    v_k1, v_k2, v_v = 8, 9, 10
    v_dma = 11
    v_km = 12
    v_oa = 13
    QA1, QA2, QB1, QB2 = 16, 20, 24, 28
    SA, SB = 32, 48
    PA, PB = 64, 72
    OA, OB = 80, 96
    KF = 112
    VF = 128
    MX = 144
    NV = 152

    k("s_cmp_ge_u32 s2, 256")
    k("s_cbranch_scc1 k2_end")
    k.stamp_init()
    k(f"s_load_dwordx2 s[12:13], s[0:1], {KA['ws']}")
    k(f"s_load_dwordx4 s[4:7], s[0:1], {KA['w1']}")
    k(f"s_load_dwordx2 s[8:9], s[0:1], {KA['w2']}")
    wave_lane_setup(k, s_w, v_l)
    k(f"v_and_b32 v{v_q}, 31, v{v_l}")
    k(f"v_lshrrev_b32 v{v_half}, 5, v{v_l}")
    k(f"v_lshlrev_b32 v{v_dma}, 4, v{v_l}")
    k(f"s_cmp_ge_u32 s{s_w}, 8")
    k("s_cbranch_scc1 k2_helper")
    decode_tb_cb(k, s_tb, s_hg, s_t, s_t2)
    k(f"s_lshr_b32 s{s_kh}, s{s_w}, 2")
    k(f"s_and_b32 s{s_t}, s{s_w}, 3")
    k(f"s_lshl_b32 s{s_h}, s{s_hg}, 2")
    k(f"s_add_u32 s{s_h}, s{s_h}, s{s_t}")
    k(f"v_lshlrev_b32 v{t0}, 3, v{v_q}")
    k(f"v_lshlrev_b32 v{t2}, 3, v{v_l}")
    k(f"s_mul_i32 s{s_dma}, s{s_kh}, 81920")
    k(f"s_and_b32 s{s_t2}, s{s_w}, 3")
    k(f"s_lshl_b32 s{s_t2}, s{s_t2}, 10")
    k(f"s_add_u32 s{s_dma}, s{s_dma}, s{s_t2}")
    k(f"s_lshl_b32 s{s_t}, s{s_h}, 6")
    k(f"s_lshl_b32 s{s_t2}, s{s_tb}, 1")
    k(f"s_add_u32 s{s_t}, s{s_t}, s{s_t2}")
    k(f"s_mul_i32 s{s_t}, s{s_t}, 1280")
    k(f"s_add_u32 s{s_t}, s{s_t}, {WS_Q}")
    k(f"s_mov_b32 s{s_a}, {WS_KMAX}")
    k("s_waitcnt lgkmcnt(0)")
    k.srd(sWS, 12, WS_SIZE)
    k.srd(sKVs, 12, 163840, WS_KV)

    def dma(i, tag):
        k(f"s_add_u32 m0, s{s_dma}, {i*4096}")
        k(f"s_add_u32 s{s_b}, s{s_dma}, {i*4096}")
        k.vmissue(f"buffer_load_dwordx4 v{v_dma}, s[{sKVs}:{sKVs+3}], s{s_b} offen lds", tag)
    k.vmissue(f"buffer_load_dwordx4 {vr(QA1,4)}, v{v_dma}, s[{sWS}:{sWS+3}], s{s_t} offen", "q")
    k.vmissue(f"buffer_load_dwordx2 {vr(QA2,2)}, v{t0}, s[{sWS}:{sWS+3}], s{s_t} offen offset:1024", "q")
    k.vmissue(f"buffer_load_dwordx4 {vr(QB1,4)}, v{v_dma}, s[{sWS}:{sWS+3}], s{s_t} offen offset:1280", "q")
    k.vmissue(f"buffer_load_dwordx2 {vr(QB2,2)}, v{t0}, s[{sWS}:{sWS+3}], s{s_t} offen offset:2304", "q")
    k.vmissue(f"buffer_load_dwordx2 {vr(MX,2)}, v{t2}, s[{sWS}:{sWS+3}], s{s_a} offen", "q")
    for i in range(2):
        dma(i, "stA")
    for i in range(2, 8):
        dma(i, "stB")
    k(f"s_mov_b32 s{s_vm}, 0x000fffff")
    k(f"s_mov_b32 s{s_vm+1}, 0x000fffff")
    s_fl = 37
    k(f"s_lshl_b32 s{s_fl}, s{s_w}, 2")
    k(f"s_mul_i32 s{s_t}, s{s_kh}, 81920")
    k(f"v_add_u32 v{v_k1}, s{s_t}, v{v_dma}")
    k(f"v_add_u32 v{v_k2}, s{s_t}, v{t0}")
    k(f"v_mul_u32_u24 v{v_v}, 20, v{v_half}")
    k(f"v_add_u32 v{v_v}, v{v_v}, v{v_q}")
    k(f"v_lshlrev_b32 v{v_v}, 4, v{v_v}")
    k(f"v_add_u32 v{v_v}, s{s_t}, v{v_v}")
    for b in range(2):
        k(f"v_mov_b32 v{KF+8*b+6}, 0x3f803f80")
        k(f"v_mov_b32 v{KF+8*b+7}, 0x00003f80")
    k(f"v_and_b32 v{t2}, 27, v{v_q}")
    k(f"v_cmp_eq_u32 vcc, 24, v{t2}")
    k(f"v_mov_b32 v{t3}, 0x3f803f80")
    k.nop(1)
    k(f"v_cndmask_b32 v{t3}, 0, v{t3}, vcc")
    for i in range(16):
        k(f"v_mov_b32 v{VF+i}, v{t3}")
    for i in range(32):
        k(f"v_mov_b32 v{OA+i}, 0")
    for i in range(8):
        k(f"v_mov_b32 v{PB+i}, 0")
    mA, mB = MX + 4, MX + 5
    k(f"v_mov_b32 v{mA}, 0")
    k(f"v_mov_b32 v{mB}, 0")
    k(f"v_mov_b32 v{QA2+3}, 0")
    k(f"v_mov_b32 v{QB2+3}, 0")
    k(f"v_cmp_eq_u32 vcc, 0, v{v_half}")
    k.vmwait("q")
    for Q2 in (QA2, QB2):
        k(f"v_cndmask_b32 v{Q2}, 0, v{Q2}, vcc")
        k(f"v_cndmask_b32 v{Q2+1}, 0, v{Q2+1}, vcc")
    chK = [(f"v_max_f32 v{v_km}, v{MX}, v{MX+1}", 0)]
    for sh in (8, 4, 2, 1):
        chK.append((f"v_max_f32_dpp v{v_km}, v{v_km}, v{v_km} row_ror:{sh} row_mask:0xf bank_mask:0xf", 2))
    chK += [(f"v_mov_b32 v{t0}, v{v_km}", 0), (f"v_permlane16_swap_b32 v{v_km}, v{t0}", 2), (f"v_max_f32 v{v_km}, v{v_km}, v{t0}", 1),
            (f"v_mov_b32 v{t0}, v{v_km}", 0), (f"v_permlane32_swap_b32 v{v_km}, v{t0}", 2), (f"v_max_f32 v{v_km}, v{v_km}, v{t0}", 1)]
    chs = [chK]
    for (Q1, Q2, m, tt) in ((QA1, QA2, mA, t1), (QB1, QB2, mB, t2)):
        c = [(f"v_dot2_f32_bf16 v{m}, v{r}, v{r}, v{m}", 0) for r in (Q1, Q1 + 1, Q1 + 2, Q1 + 3, Q2, Q2 + 1)]
        c += [(f"v_mov_b32 v{tt}, v{m}", 3), (f"v_permlane32_swap_b32 v{m}, v{tt}", 2), (f"v_add_f32 v{m}, v{m}, v{tt}", 1)]
        chs.append(c)
    interleave(k, chs)
    chs = []
    for (Q2, m) in ((QA2, mA), (QB2, mB)):
        chs.append([(f"v_mul_f32 v{m}, v{m}, v{v_km}", 0), (f"v_sqrt_f32 v{m}, v{m}", 0),
                    (f"v_mul_f32 v{m}, {hex(f2u(1.0 + 2**-6))}, v{m}", 1),
                    (f"v_lshrrev_b32 v{m}, 16, v{m}", 0), (f"v_add_u32 v{m}, 0x8001, v{m}", 0),
                    (f"v_cndmask_b32 v{Q2+2}, 0, v{m}, vcc", 0)])
    interleave(k, chs)

    def split_m(Q2, m):
        k(f"v_sub_f32 v{t0}, 0, v{m}")
        k(f"v_and_b32 v{t1}, 0xffff0000, v{t0}")
        k(f"v_sub_f32 v{t0}, v{t0}, v{t1}")
        k(f"v_and_b32 v{t2}, 0xffff0000, v{t0}")
        k(f"v_sub_f32 v{t0}, v{t0}, v{t2}")
        k(f"v_lshrrev_b32 v{t1}, 16, v{t1}")
        k(f"v_or_b32 v{t1}, v{t1}, v{t2}")
        k(f"v_lshrrev_b32 v{t0}, 16, v{t0}")
        k(f"v_cndmask_b32 v{Q2+2}, 0, v{t1}, vcc")
        k(f"v_cndmask_b32 v{Q2+3}, 0, v{t0}, vcc")

    BASE_SW = 24

    def toff(t):
        return (t - BASE_SW if t >= BASE_SW else t) * 2560
    adv = {"k": False, "v": False}

    def rdK(t):
        if t > 31 or ("nolds" in K2VAR and t > 1):
            return
        if t >= BASE_SW and not adv["k"]:
            adv["k"] = True
            k(f"v_add_u32 v{v_k1}, {BASE_SW*2560}, v{v_k1}")
            k(f"v_add_u32 v{v_k2}, {BASE_SW*2560}, v{v_k2}")
        buf = t & 1
        k(f"ds_read_b128 {vr(KF+8*buf,4)}, v{v_k1} offset:{toff(t)}")
        k(f"ds_read_b64 {vr(KF+8*buf+4,2)}, v{v_k2} offset:{toff(t)+2304}")

    def rdV(t):
        if t > 31 or ("nolds" in K2VAR and t > 1):
            return
        if t >= BASE_SW and not adv["v"]:
            adv["v"] = True
            k(f"v_add_u32 v{v_v}, {BASE_SW*2560}, v{v_v}")
        buf = t & 1
        if "noexec" not in K2VAR: k(f"s_mov_b64 exec, s[{s_vm}:{s_vm+1}]")
        k(f"ds_read_b128 {vr(VF+8*buf,4)}, v{v_v} offset:{toff(t)+1024}")
        k(f"ds_read_b128 {vr(VF+8*buf+4,4)}, v{v_v} offset:{toff(t)+1024+640}")
        if "noexec" not in K2VAR: k("s_mov_b64 exec, -1")

    def qk(S, Q1, Q2, buf):
        return [f"v_mfma_f32_32x32x16_bf16 {vr(S,16)}, {vr(KF+8*buf,4)}, {vr(Q1,4)}, 0",
                f"v_mfma_f32_32x32x16_bf16 {vr(S,16)}, {vr(KF+8*buf+4,4)}, {vr(Q2,4)}, {vr(S,16)}"]

    def pv(O, P, buf):
        return [f"v_mfma_f32_32x32x16_bf16 {vr(O,16)}, {vr(VF+8*buf,4)}, {vr(P,4)}, {vr(O,16)}",
                f"v_mfma_f32_32x32x16_bf16 {vr(O,16)}, {vr(VF+8*buf+4,4)}, {vr(P+4,4)}, {vr(O,16)}"]

    def phase(S, P, mf, pre=None):
        for gidx in range(4):
            if pre and gidx == 0:
                pre()
            if mf[gidx] and "nomfma" not in K2VAR:
                k(mf[gidx])
            for i in range(4):
                r = S + 4 * gidx + i
                k(f"v_exp_f32 v{r}, v{r}")
            if gidx > 0:
                g0 = gidx - 1
                k(f"v_cvt_pk_bf16_f32 v{P+2*g0}, v{S+4*g0}, v{S+4*g0+1}")
                k(f"v_cvt_pk_bf16_f32 v{P+2*g0+1}, v{S+4*g0+2}, v{S+4*g0+3}")
        k(f"v_cvt_pk_bf16_f32 v{P+6}, v{S+12}, v{S+13}")
        k(f"v_cvt_pk_bf16_f32 v{P+7}, v{S+14}, v{S+15}")

    k.stamp()
    k.vmwait("stA")
    k("s_barrier")
    k.stamp()
    rdK(0)
    rdV(0)
    rdK(1)
    k("s_waitcnt lgkmcnt(4)")
    for m in qk(SA, QA1, QA2, 0):
        k(m)
    k.nop(12)
    for t in range(32):
        b = t & 1
        prio = {0: 3, 1: 2, 2: 3, 7: 2, 9: 1, 10: 0, 11: 3, 25: 2, 29: 1, 31: 0}
        if t in prio:
            k(f"s_setprio {prio[t]}")
        mf = qk(SB, QB1, QB2, b) + pv(OB, PB, b ^ 1)
        phase(SA, PA, mf)

        def pre(t=t):
            k("s_waitcnt lgkmcnt(0)")
            if t == 1:
                k.vmwait("stB")
                k("s_barrier")
                k(f"v_mov_b32 v{t0}, 0")
                k(f"v_mov_b32 v{t1}, s{s_fl}")
                k(f"ds_write_b32 v{t1}, v{t0}")
            if t == 10:
                k("s_barrier")
            rdK(t + 2)
            rdV(t + 1)
        mf = (qk(SA, QA1, QA2, b ^ 1) if t < 31 else [None, None]) + pv(OA, PA, b)
        phase(SB, PB, mf, pre=pre)
    k.stamp()
    k.nop(2)
    for m in pv(OB, PB, 1):
        k(m)
    k(f"s_mul_i32 s{s_t}, s{s_kh}, 81920")
    k(f"s_and_b32 s{s_t2}, s{s_w}, 3")
    k(f"s_mul_i32 s{s_t2}, s{s_t2}, 3328")
    k(f"s_add_u32 s{s_t2}, s{s_t2}, 1024")
    k(f"s_add_u32 s{s_a}, s{s_t}, s{s_t2}")
    k(f"s_xor_b32 s{s_t}, s{s_kh}, 1")
    k(f"s_mul_i32 s{s_t}, s{s_t}, 81920")
    k(f"s_add_u32 s{s_b}, s{s_t}, s{s_t2}")
    k(f"v_add_u32 v{t0}, s{s_a}, v{v_dma}")
    k(f"v_add_u32 v{t1}, s{s_b}, v{v_dma}")
    k(f"v_lshlrev_b32 v{t2}, 2, v{v_l}")
    k(f"v_add_u32 v{t3}, s{s_b}, v{t2}")
    k(f"v_add_u32 v{t2}, s{s_a}, v{t2}")
    k(f"s_cmp_eq_u32 s{s_kh}, 0")
    k("s_cbranch_scc1 k2_send0")
    for i in range(3):
        k(f"ds_write_b128 v{t0}, {vr(OA+4*i,4)} offset:{i*1024}")
    k(f"ds_write_b32 v{t2}, v{OA+12} offset:3072")
    k(f"v_mov_b32 v{MX+6}, 1")
    k(f"v_mov_b32 v{MX+7}, s{s_fl}")
    k("s_waitcnt lgkmcnt(0)")
    k(f"ds_write_b32 v{MX+7}, v{MX+6}")
    for i in range(13):
        k(f"v_mov_b32 v{OA+i}, v{OB+i}")
    for i in range(8):
        k(f"v_mov_b32 v{QA1+i}, v{QB1+i}")
    k("s_branch k2_sent")
    k.label("k2_send0")
    k.nop(4)
    for i in range(3):
        k(f"ds_write_b128 v{t0}, {vr(OB+4*i,4)} offset:{i*1024}")
    k(f"ds_write_b32 v{t2}, v{OB+12} offset:3072")
    k(f"v_mov_b32 v{MX+6}, 1")
    k(f"v_mov_b32 v{MX+7}, s{s_fl}")
    k("s_waitcnt lgkmcnt(0)")
    k(f"ds_write_b32 v{MX+7}, v{MX+6}")
    k.label("k2_sent")
    v_a0 = MX
    k(f"s_lshl_b32 s{s_t}, s{s_tb}, 6")
    k(f"s_lshl_b32 s{s_t2}, s{s_kh}, 5")
    k(f"s_add_u32 s{s_t}, s{s_t}, s{s_t2}")
    k(f"v_add_u32 v{v_a0}, s{s_t}, v{v_q}")
    k(f"v_lshrrev_b32 v{v_a0+1}, 4, v{v_a0}")
    k(f"v_mul_u32_u24 v{v_a0+1}, {80*256}, v{v_a0+1}")
    k(f"v_and_b32 v{v_a0}, 15, v{v_a0}")
    k(f"v_lshl_add_u32 v{v_a0+1}, v{v_a0}, 4, v{v_a0+1}")
    k(f"s_mul_i32 s{s_t}, s{s_h}, 5")
    for i, dg in enumerate((0, 2, 4)):
        k(f"v_add_u32 v{v_a0}, s{s_t}, v{v_half}")
        k(f"v_add_u32 v{v_a0}, {dg}, v{v_a0}")
        k(f"v_lshrrev_b32 v{v_a0+2}, 1, v{v_a0}")
        k(f"v_lshl_add_u32 v{v_a0+2}, v{v_a0+2}, 8, v{v_a0+1}")
        k(f"v_and_b32 v{v_a0}, 1, v{v_a0}")
        k(f"v_lshl_add_u32 v{v_oa+i}, v{v_a0}, 3, v{v_a0+2}")
    k(f"v_cmp_eq_u32 vcc, 0, v{v_half}")
    k(f"v_mov_b32 v{v_a0}, 0x7ffffff8")
    k.nop(1)
    k(f"v_cndmask_b32 v{v_oa+2}, v{v_a0}, v{v_oa+2}, vcc")
    k(f"v_xor_b32 v{MX+7}, 16, v{MX+7}")
    k("s_setprio 0")
    k.label("k2_poll")
    k(f"ds_read_b32 v{MX+6}, v{MX+7}")
    k("s_waitcnt lgkmcnt(0)")
    k(f"v_readfirstlane_b32 s{s_t}, v{MX+6}")
    k.nop(1)
    k(f"s_cmp_eq_u32 s{s_t}, 1")
    k("s_cbranch_scc1 k2_polled")
    k("s_sleep 2")
    k("s_branch k2_poll")
    k.label("k2_polled")
    for i in range(3):
        k(f"ds_read_b128 {vr(OB+4*i,4)}, v{t1} offset:{i*1024}")
    k(f"ds_read_b32 v{OB+12}, v{t3} offset:3072")
    k("s_waitcnt lgkmcnt(0)")
    k(f"v_add_f32 v{OA+12}, v{OA+12}, v{OB+12}")
    for i in range(12):
        k(f"v_add_f32 v{OA+i}, v{OA+i}, v{OB+i}")
    k(f"v_cmp_nle_f32 vcc, {hex(f2u(2.0**-64))}, v{OA+12}")
    k(f"s_mov_b64 s[{s_a}:{s_a+1}], vcc")
    k(f"v_cmp_nge_f32 vcc, {hex(f2u(2.0**64))}, v{OA+12}")
    k.nop(2)
    k(f"s_or_b64 vcc, vcc, s[{s_a}:{s_a+1}]")
    if "no" not in K2VAR: k("s_cbranch_vccnz k2_fallback")
    k.label("k2_final")
    k(f"v_rcp_f32 v{t3}, v{OA+12}")
    k.nop(1)
    for i in range(12):
        k(f"v_mul_f32 v{OA+i}, v{OA+i}, v{t3}")
    for i in range(6):
        k(f"v_cvt_pk_bf16_f32 v{PA+i}, v{OA+2*i}, v{OA+2*i+1}")
    k(f"s_mov_b32 s{s_t}, {WS_O}")
    for i in range(3):
        k(f"buffer_store_dwordx2 {vr(PA+2*i,2)}, v{v_oa+i}, s[{sWS}:{sWS+3}], s{s_t} offen")
    k.stamp_flush(s_w)
    k.label("k2_end")
    k("s_endpgm")
    k.label("k2_fallback")
    k(f"v_mov_b32 v{QA2+2}, 0")
    k(f"v_mov_b32 v{QA2+3}, 0")
    k(f"v_mov_b32 v{mA}, 0xff800000")
    k(f"v_lshlrev_b32 v{v_k2}, 3, v{v_q}")
    k(f"v_mul_u32_u24 v{v_v}, 20, v{v_half}")
    k(f"v_add_u32 v{v_v}, v{v_v}, v{v_q}")
    k(f"v_lshlrev_b32 v{v_v}, 4, v{v_v}")
    k(f"s_mov_b32 s{s_cnt}, 0")
    k.label("k2_fb_max")
    k(f"buffer_load_dwordx4 {vr(KF,4)}, v{v_dma}, s[{sKVs}:{sKVs+3}], s{s_cnt} offen")
    k(f"buffer_load_dwordx2 {vr(KF+4,2)}, v{v_k2}, s[{sKVs}:{sKVs+3}], s{s_cnt} offen offset:2304")
    k("s_waitcnt vmcnt(0)")
    for m in qk(SA, QA1, QA2, 0):
        k(m)
    k.nop(16)
    for i in range(8):
        k(f"v_max3_f32 v{mA}, v{SA+2*i}, v{SA+2*i+1}, v{mA}")
    k(f"s_add_u32 s{s_cnt}, s{s_cnt}, 2560")
    k(f"s_cmp_lt_u32 s{s_cnt}, 163840")
    k("s_cbranch_scc1 k2_fb_max")
    k(f"v_mov_b32 v{t0}, v{mA}")
    k.nop(2)
    k(f"v_permlane32_swap_b32 v{mA}, v{t0}")
    k.nop(2)
    k(f"v_max_f32 v{mA}, v{mA}, v{t0}")
    k(f"v_cmp_eq_u32 vcc, 0, v{v_half}")
    split_m(QA2, mA)
    for i in range(16):
        k(f"v_mov_b32 v{OA+i}, 0")
    k(f"s_mov_b32 s{s_cnt}, 0")
    k.label("k2_fb_main")
    k(f"buffer_load_dwordx4 {vr(KF,4)}, v{v_dma}, s[{sKVs}:{sKVs+3}], s{s_cnt} offen")
    k(f"buffer_load_dwordx2 {vr(KF+4,2)}, v{v_k2}, s[{sKVs}:{sKVs+3}], s{s_cnt} offen offset:2304")
    k(f"s_mov_b64 exec, s[{s_vm}:{s_vm+1}]")
    k(f"buffer_load_dwordx4 {vr(VF,4)}, v{v_v}, s[{sKVs}:{sKVs+3}], s{s_cnt} offen offset:1024")
    k(f"buffer_load_dwordx4 {vr(VF+4,4)}, v{v_v}, s[{sKVs}:{sKVs+3}], s{s_cnt} offen offset:1664")
    k("s_mov_b64 exec, -1")
    k("s_waitcnt vmcnt(0)")
    for m in qk(SA, QA1, QA2, 0):
        k(m)
    k.nop(16)
    for i in range(16):
        k(f"v_exp_f32 v{SA+i}, v{SA+i}")
    k.nop(1)
    for i in range(8):
        k(f"v_cvt_pk_bf16_f32 v{PA+i}, v{SA+2*i}, v{SA+2*i+1}")
    k.nop(2)
    for m in pv(OA, PA, 0):
        k(m)
    k(f"s_add_u32 s{s_cnt}, s{s_cnt}, 2560")
    k(f"s_cmp_lt_u32 s{s_cnt}, 163840")
    k("s_cbranch_scc1 k2_fb_main")
    k.nop(16)
    k("s_branch k2_final")

    k.label("k2_helper")
    sW1, sW2, sPF, sB1, sWO, sXX = 24, 28, 44, 48, 60, 64
    s_u, s_src, s_cbk, s_p = 37, 58, 52, 53
    s_lo, s_hi = 32, 33
    s_b0, s_b1 = 38, 40
    BK = [32, 64, 96]
    TMP = [128, 136]
    CSE, CSO, ONE = 16, 112, 144
    v_src, v_dst, v_np, v_gg, v_ex = 8, 9, 10, 12, 13
    k("s_setprio 3")
    k(f"s_load_dwordx2 s[10:11], s[0:1], {KA['wo']}")
    k(f"s_load_dwordx2 s[14:15], s[0:1], {KA['x']}")
    k(f"s_mov_b32 s{s_lo}, 0x05040100")
    k(f"s_mov_b32 s{s_hi}, 0x07060302")
    for i in range(4):
        k(f"v_mov_b32 v{ONE+i}, 0x3f803f80")
    k("s_waitcnt lgkmcnt(0)")
    k.srd(sWS, 12, WS_SIZE)
    k.srd(sKVs, 12, 163840, WS_KV)
    k.srd(sW1, 4, 640 * 3072)
    k.srd(sW2, 8, 1536 * 1280)
    k.srd(sB1, 6, 3072)
    k.srd(sWO, 10, 640 * 1280)
    k.srd(sXX, 14, 2048 * 1280)

    def hdma(lo, hi):
        lab = k.newlabel("hd")
        k(f"s_mov_b32 s{s_cnt}, {32768 + lo*1024}")
        k.label(lab)
        k(f"s_mov_b32 m0, s{s_cnt}")
        k(f"s_add_u32 s{s_t}, s{s_cnt}, 81920")
        k(f"buffer_load_dwordx4 v{v_dma}, s[{sKVs}:{sKVs+3}], s{s_cnt} offen lds")
        k(f"s_mov_b32 m0, s{s_t}")
        k(f"s_add_u32 s{s_cnt}, s{s_cnt}, 1024")
        k(f"buffer_load_dwordx4 v{v_dma}, s[{sKVs}:{sKVs+3}], s{s_t} offen lds")
        k(f"s_cmp_lt_u32 s{s_cnt}, {32768 + hi*1024}")
        k(f"s_cbranch_scc1 {lab}")
    k.vm = []
    v_s1, v_s2, v_t32, v_t16, v_ex = 8, 9, 10, 12, 13
    v_xs, v_xd = 14, 15
    FR = 32
    XR = 64
    CS0, CS1 = 16, 112
    SRC = [52, 53, 58]
    DB = {0: [68, 69], 1: [70, 71, 72, 73], 2: [74, 75, 76, 77]}
    s_cb1, s_p1 = 78, 79
    k(f"v_lshrrev_b32 v{t0}, 3, v{v_l}")
    k(f"v_and_b32 v{t1}, 7, v{v_l}")
    k(f"v_mul_u32_u24 v{v_s1}, 3072, v{t0}")
    k(f"v_lshl_add_u32 v{v_s1}, v{t1}, 4, v{v_s1}")
    k(f"v_mul_u32_u24 v{v_s2}, 1280, v{t0}")
    k(f"v_lshl_add_u32 v{v_s2}, v{t1}, 4, v{v_s2}")
    k(f"v_and_b32 v{t0}, 15, v{v_l}")
    k(f"v_lshrrev_b32 v{t1}, 4, v{v_l}")
    k(f"v_mul_u32_u24 v{v_xs}, 1280, v{t0}")
    k(f"v_lshl_add_u32 v{v_xs}, v{t1}, 4, v{v_xs}")
    k(f"v_bfe_u32 v{t0}, v{v_l}, 2, 2")
    k(f"v_and_b32 v{t1}, 3, v{v_l}")
    k(f"v_lshl_add_u32 v{t2}, v{v_half}, 3, v{t0}")
    k(f"v_lshlrev_b32 v{v_t32}, 7, v{t2}")
    k(f"v_bfe_u32 v{t2}, v{v_l}, 4, 1")
    k(f"v_lshl_add_u32 v{v_t32}, v{t2}, 5, v{v_t32}")
    k(f"v_lshl_add_u32 v{v_t32}, v{t1}, 3, v{v_t32}")
    k(f"v_lshrrev_b32 v{t2}, 4, v{v_l}")
    k(f"v_lshl_add_u32 v{t2}, v{t2}, 3, v{t0}")
    k(f"v_lshlrev_b32 v{v_t16}, 7, v{t2}")
    k(f"v_lshl_add_u32 v{v_t16}, v{t1}, 3, v{v_t16}")
    k(f"v_add_u32 v{v_t32}, 16384, v{v_t32}")
    k(f"v_add_u32 v{v_t16}, {81920+16384}, v{v_t16}")
    for i in range(16):
        k(f"v_mov_b32 v{CS0+i}, 0")
        k(f"v_mov_b32 v{CS1+i}, 0")
    k("s_barrier")
    geo = [(240, 10, 3072, 32, 3, 40, 16, WS_W1), (240, 24, 1280, 16, 5, 48, 32, WS_W2), (100, 10, 1280, 16, 5, 20, 32, WS_WO)]
    for m, (nu, nrb, ld, MT, NT, S, KS, dst) in enumerate(geo):
        k(f"s_min_u32 s{s_u}, s2, {nu-1}")
        sdiv(k, s_a, s_b, s_u, nrb, s_t)
        if m == 0:
            k(f"s_mov_b32 s{s_cb1}, s{s_a}")
            k(f"s_mov_b32 s{s_p1}, s{s_b}")
        k(f"s_mul_i32 s{SRC[m]}, s{s_b}, {64*ld}")
        k(f"s_lshl_b32 s{s_t}, s{s_a}, 7")
        k(f"s_add_u32 s{SRC[m]}, s{SRC[m]}, s{s_t}")
        for j, sb in enumerate(DB[m]):
            k(f"s_mul_i32 s{s_c}, s{s_a}, {64//MT}")
            k(f"s_add_u32 s{s_c}, s{s_c}, {j}")
            sdiv(k, s_d, s_cnt, s_c, NT, s_t)
            k(f"s_mul_i32 s{s_d}, s{s_d}, {S}")
            k(f"s_mul_i32 s{s_t}, s{s_b}, {64//KS}")
            k(f"s_add_u32 s{s_d}, s{s_d}, s{s_t}")
            k(f"s_mul_i32 s{s_d}, s{s_d}, {NT}")
            k(f"s_add_u32 s{s_d}, s{s_d}, s{s_cnt}")
            k(f"s_lshl_b32 s{s_d}, s{s_d}, 10")
            k(f"s_add_u32 s{sb}, s{s_d}, {dst}")
        if m == 0:
            k("s_barrier")
    hdma(0, 24)
    k("s_waitcnt vmcnt(8)")
    hdma(24, 48)
    k("s_waitcnt vmcnt(30)")
    k(f"s_lshr_b32 s{s_a}, s2, 1")
    k(f"s_mul_i32 s{s_a}, s{s_a}, {16*1280}")
    k(f"s_and_b32 s{s_t}, s2, 1")
    k(f"s_mul_i32 s{s_t}, s{s_t}, 640")
    k(f"s_add_u32 s{s_a}, s{s_a}, s{s_t}")
    for i in range(10):
        k.vmissue(f"buffer_load_dwordx4 {vr(XR+4*i,4)}, v{v_xs}, s[{sXX}:{sXX+3}], s{s_a} offen offset:{i*64}", "X")
    k(f"v_lshlrev_b32 v{t0}, 1, v{v_q}")
    k(f"s_lshl_b32 s{s_t}, s{s_cb1}, 7")
    k.vmissue(f"buffer_load_ushort v{XR+40}, v{t0}, s[{sB1}:{sB1+3}], s{s_t} offen", "X")
    k.vmissue(f"buffer_load_ushort v{XR+41}, v{t0}, s[{sB1}:{sB1+3}], s{s_t} offen offset:64", "X")
    k(f"s_mul_i32 s{s_d}, s2, 10240")
    k(f"s_add_u32 s{s_d}, s{s_d}, {WS_XG}")
    k("s_waitcnt vmcnt(12)")
    k("s_barrier")

    def bdma(m, lds, tag):
        srd, vs, ld = ((sW1, v_s1, 3072), (sW2, v_s2, 1280), (sWO, v_s2, 1280))[m]
        for i in range(8):
            k(f"s_mov_b32 m0, {lds + i*1024}")
            k(f"s_add_u32 s{s_t2}, s{SRC[m]}, {i*8*ld}")
            k.vmissue(f"buffer_load_dwordx4 v{vs}, s[{srd}:{srd+3}], s{s_t2} offen lds", tag)

    def bproc(m, tag):
        k.vmwait(tag)
        nu, nrb, ld, MT, NT, S, KS, dst = geo[m]
        nts = 64 // MT
        for f in range(8):
            ks, tt = divmod(f, nts)
            for j in range(2):
                off = (ks * KS + 4 * j) * 128 + tt * MT * 2
                k(f"ds_read_b64_tr_b16 {vr(FR+4*f+2*j,2)}, v{v_t32 if MT == 32 else v_t16} offset:{off}")
            if f == 3:
                k("s_waitcnt lgkmcnt(0)")
        k("s_waitcnt lgkmcnt(0)")
        for f in range(8):
            ks, tt = divmod(f, nts)
            k(f"s_add_u32 s{s_t2}, s{DB[m][tt]}, {ks*NT*1024}")
            k.vmissue(f"buffer_store_dwordx4 {vr(FR+4*f,4)}, v{v_dma}, s[{sWS}:{sWS+3}], s{s_t2} offen {SC}", "st")
            if m == 0:
                CSr = (CS0, CS1)[tt]
                k(f"v_mfma_f32_32x32x16_bf16 {vr(CSr,16)}, {vr(ONE,4)}, {vr(FR+4*f,4)}, {vr(CSr,16)}")
    bdma(0, 16384, "A")
    bdma(1, 81920 + 16384, "B")
    k.vmwait("X")
    for i in range(10):
        k(f"s_add_u32 s{s_t2}, s{s_d}, {i*1024}")
        k.vmissue(f"buffer_store_dwordx4 {vr(XR+4*i,4)}, v{v_dma}, s[{sWS}:{sWS+3}], s{s_t2} offen {SC}", "st")
    bproc(0, "A")
    bdma(2, 16384, "C")
    bproc(1, "B")
    k(f"v_lshlrev_b32 v{v_ex}, 4, v{v_q}")
    k(f"s_lshl_b32 s{s_a}, s{s_cb1}, 12")
    k(f"s_add_u32 s{s_a}, s{s_a}, {WS_EX}")
    k(f"s_mul_i32 s{s_b}, s{s_p1}, 3")
    for tt, CSr in enumerate((CS0, CS1)):
        k(f"v_and_b32 v{t1}, 0xffff0000, v{CSr}")
        k(f"v_sub_f32 v{t0}, v{CSr}, v{t1}")
        k(f"v_and_b32 v{t2}, 0xffff0000, v{t0}")
        k(f"v_sub_f32 v{t0}, v{t0}, v{t2}")
        for i, reg in enumerate((t1, t2, t0)):
            k(f"s_add_u32 s{s_c}, s{s_b}, {i}")
            k(f"s_lshr_b32 s{s_t}, s{s_c}, 3")
            k(f"s_lshl_b32 s{s_t}, s{s_t}, 9")
            k(f"s_and_b32 s{s_c}, s{s_c}, 7")
            k(f"s_lshl_b32 s{s_c}, s{s_c}, 1")
            k(f"s_add_u32 s{s_c}, s{s_c}, s{s_t}")
            k(f"s_add_u32 s{s_c}, s{s_c}, s{s_a}")
            k(f"buffer_store_short_d16_hi v{reg}, v{v_ex}, s[{sWS}:{sWS+3}], s{s_c} offen offset:{2048*tt}")
        k(f"buffer_store_dword v{XR+40+tt}, v{v_ex}, s[{sWS}:{sWS+3}], s{s_a} offen offset:{2048*tt+1536+12}")
    k(f"v_subrev_u32 v{v_t16}, 81920, v{v_t16}")
    k.vm += ["st"] * 8
    bproc(2, "C")
    k("s_waitcnt vmcnt(0)")
    for ch in PFORDER:
        if ch in "HhOX":
            off, K_ = {"H": (WS_H1, 1536), "h": (WS_H, 640), "O": (WS_O, 640), "X": (WS_XG, 640)}[ch]
            slab = 256 * K_ * 2
            k(f"s_and_b32 s{s_a}, s2, 7")
            k(f"s_mul_i32 s{s_a}, s{s_a}, {slab}")
            k(f"s_add_u32 s14, s12, s{s_a}")
            k("s_addc_u32 s15, s13, 0")
            helper_prefetch(k, sPF, 14, off, slab, v_l, t0, t1, s_t, s_t2)
        elif ch == "w":
            k("s_waitcnt vmcnt(0)")
        else:
            off, nb = {"o": (WS_WO, 800 * 1024), "1": (WS_W1, 1920 * 1024), "2": (WS_W2, 1920 * 1024)}[ch]
            helper_prefetch(k, sPF, 12, off, nb, v_l, t0, t1, s_t, s_t2)
    k("s_endpgm")
    return k.text(NV), "k2_kernel", (256, 576, 163840)


def gen_g16(name, Kdim):
    k = Kern(name + "_kernel")
    NCH = Kdim // 128
    PD = PD16
    R, RX, D = PD + 2, PD + 1, 8
    sWS, sX2, sB, sO = 20, 24, 28, 44
    s_tb, s_cb, s_w, s_t, s_t2, s_off, s_xoff, s_l = 32, 33, 34, 35, 36, 37, 38, 39
    s_hoff, s_rmoff, s_tok, s_xg = 40, 41, 42, 43
    v_ow, v_or, OADR = 10, 16, 17
    v_l, v_idx, v_g = 1, 2, 3
    v_x = 4
    v_a2 = 5
    v_st = 6
    v_s1, v_s2 = 8, 9
    v_rm = 11
    t0, t1, t2, t3 = 12, 13, 14, 15
    RES = 20
    BIA = 30
    AF = 40
    ACC = 80
    XB = 100
    NV = XB + RX * 16
    WSW = WS_WO if name == "k3" else WS_W2
    helper = False
    k("s_cmp_ge_u32 s2, 256")
    k(f"s_cbranch_scc1 {name}_end")
    k.stamp_init()
    k(f"s_load_dwordx2 s[12:13], s[0:1], {KA['ws']}")
    if name == "k5":
        k(f"s_load_dwordx4 s[8:11], s[0:1], {KA['b2']}")
    wave_lane_setup(k, s_w, v_l)
    if helper:
        k(f"s_cmp_eq_u32 s{s_w}, 4")
        k(f"s_cbranch_scc1 {name}_helper")
    if name == "k5" and MAP5:
        b = MAP5
        k(f"s_bfe_u32 s{s_t}, s2, {hex(((3-b) << 16) | b)}")
        k(f"s_lshl_b32 s{s_tb}, s{s_t}, {2+b}")
        k(f"s_bfe_u32 s{s_t}, s2, {hex(((2+b) << 16) | 3)}")
        k(f"s_add_u32 s{s_tb}, s{s_tb}, s{s_t}")
        k(f"s_and_b32 s{s_t}, s2, {(1 << b) - 1}")
        k(f"s_lshl_b32 s{s_cb}, s{s_t}, {3-b}")
        k(f"s_lshr_b32 s{s_t}, s2, {5+b}")
        k(f"s_add_u32 s{s_cb}, s{s_cb}, s{s_t}")
    else:
        decode_tb_cb(k, s_tb, s_cb, s_t, s_t2)
    k(f"v_lshlrev_b32 v{v_x}, 4, v{v_l}")
    k(f"s_lshl_b32 s{s_t}, s{s_tb}, 2")
    k(f"s_add_u32 s{s_t}, s{s_t}, s{s_w}")
    k(f"s_mul_i32 s{s_xoff}, s{s_t}, {Kdim*32}")
    k(f"s_add_u32 s{s_xoff}, s{s_xoff}, {WS_O if name == 'k3' else WS_H1}")
    k(f"s_mul_i32 s{s_off}, s{s_cb}, {Kdim*160}")
    k(f"s_mul_i32 s{s_l}, s{s_w}, 5120")
    k(f"s_add_u32 s{s_off}, s{s_off}, s{s_l}")
    k(f"s_add_u32 s{s_off}, s{s_off}, {WSW}")
    k(f"v_and_b32 v{v_idx}, 15, v{v_l}")
    k(f"v_lshrrev_b32 v{v_g}, 4, v{v_l}")
    k(f"s_lshl_b32 s{s_t}, s{s_tb}, 6")
    k(f"s_lshl_b32 s{s_t2}, s{s_w}, 4")
    k(f"s_add_u32 s{s_tok}, s{s_t}, s{s_t2}")
    k(f"v_add_u32 v{t0}, s{s_tok}, v{v_idx}")
    v_h = t3
    k(f"v_lshrrev_b32 v{t1}, 5, v{t0}")
    k(f"v_mul_u32_u24 v{v_h}, {640*64}, v{t1}")
    k(f"v_and_b32 v{t1}, 31, v{t0}")
    k(f"v_lshl_add_u32 v{v_h}, v{t1}, 4, v{v_h}")
    k(f"v_lshrrev_b32 v{t1}, 1, v{v_g}")
    k(f"v_lshl_add_u32 v{v_h}, v{t1}, 9, v{v_h}")
    k(f"v_and_b32 v{t2}, 1, v{v_g}")
    k(f"v_lshl_add_u32 v{v_h}, v{t2}, 3, v{v_h}")
    k(f"v_lshlrev_b32 v{v_rm}, 4, v{v_idx}")
    k(f"v_lshl_add_u32 v{v_rm}, v{t1}, 8, v{v_rm}")
    k(f"v_lshl_add_u32 v{v_rm}, v{t2}, 3, v{v_rm}")
    k(f"s_mul_i32 s{s_xg}, s{s_tok}, 1280")
    k(f"s_mul_i32 s{s_t}, s{s_cb}, 2560")
    k(f"s_add_u32 s{s_xg}, s{s_xg}, s{s_t}")
    k(f"s_add_u32 s{s_xg}, s{s_xg}, {WS_XG}")
    k(f"s_mul_i32 s{s_hoff}, s{s_cb}, 5120")
    k(f"s_add_u32 s{s_hoff}, s{s_hoff}, {WS_H}")
    k(f"s_mul_i32 s{s_rmoff}, s{s_cb}, 160")
    k(f"v_add_u32 v{t2}, 4096, v{v_h}")
    k(f"v_lshlrev_b32 v{t1}, 3, v{v_g}")
    s_cc, s_cx, s_cw = 48, 49, 50
    if ROT:
        fa, fb = (3, 5) if NCH == 12 else (1, 2)
        k(f"s_and_b32 s{s_t}, s{s_tb}, 3")
        k(f"s_mul_i32 s{s_t}, s{s_t}, {fa}")
        k(f"s_mul_i32 s{s_t2}, s{s_cb}, {fb}")
        k(f"s_add_u32 s{s_t}, s{s_t}, s{s_t2}")
        sdiv(k, s_cx, s_cc, s_t, NCH, s_t2)
    else:
        k(f"s_mov_b32 s{s_cc}, 0")
    k("s_waitcnt lgkmcnt(0)")
    k.srd(sWS, 12, WS_SIZE)
    if name == "k5":
        k.srd(sB, 8, 1280)

    def chunk_loads(c):
        fs = []
        for i in range(4):
            def fx(i=i, c=c):
                if i == 0:
                    k(f"s_mul_i32 s{s_cx}, s{s_cc}, 4096")
                    k(f"s_mul_i32 s{s_cw}, s{s_cc}, 20480")
                    k(f"s_add_u32 s{s_cx}, s{s_cx}, s{s_xoff}")
                    k(f"s_add_u32 s{s_cw}, s{s_cw}, s{s_off}")
                    k(f"s_add_u32 s{s_cc}, s{s_cc}, 1")
                    k(f"s_cmp_eq_u32 s{s_cc}, {NCH}")
                    k(f"s_cselect_b32 s{s_cc}, 0, s{s_cc}")
                k.vmissue(f"buffer_load_dwordx4 {vr(XB+(c%RX)*16+4*i,4)}, v{v_x}, s[{sWS}:{sWS+3}], s{s_cx} offen offset:{i*1024}", f"c{c}")
            fs.append(fx)
        for i in range(5):
            def fw(i=i, c=c):
                k(f"s_add_u32 m0, s{s_l}, {(c%R)*20480 + i*1024}")
                k(f"s_add_u32 s{s_t2}, s{s_cw}, {i*1024}")
                k.vmissue(f"buffer_load_dwordx4 v{v_x}, s[{sWS}:{sWS+3}], s{s_t2} offen lds", f"c{c}")
            fs.append(fw)
        return fs
    for f in chunk_loads(0):
        f()
    for t in range(5):
        if name == "k3":
            k.vmissue(f"buffer_load_dwordx2 {vr(RES+2*t,2)}, v{v_rm}, s[{sWS}:{sWS+3}], s{s_xg} offen offset:{t*512}", "c0")
        else:
            if t < 4:
                k.vmissue(f"buffer_load_dwordx2 {vr(RES+2*t,2)}, v{v_h}, s[{sWS}:{sWS+3}], s{s_hoff} offen offset:{t*1024}", "c0")
            else:
                k.vmissue(f"buffer_load_dwordx2 {vr(RES+2*t,2)}, v{t2}, s[{sWS}:{sWS+3}], s{s_hoff} offen", "c0")
            k.vmissue(f"buffer_load_dwordx2 {vr(BIA+2*t,2)}, v{t1}, s[{sB}:{sB+3}], s{s_rmoff} offen offset:{t*32}", "c0")
    for c in range(1, PD):
        for f in chunk_loads(c):
            f()
    k(f"v_add_u32 v{v_a2}, {3*20480}, v{v_x}")
    k(f"v_lshlrev_b32 v{v_st}, 6, v{t0}")
    k(f"v_mov_b32 v{v_s1}, 0")
    k(f"v_mov_b32 v{v_s2}, 0")
    k(f"v_mov_b32 v7, 0x3f803f80")
    if name == "k5":
        k.srd(sO, 10, 2048 * 1280)
        k(f"s_mul_i32 s{s_t}, s{s_w}, 2560")
        k(f"s_add_u32 s{s_t}, s{s_t}, {R*20480}")
        k(f"v_mul_u32_u24 v{v_ow}, 160, v{v_idx}")
        k(f"v_add_u32 v{v_ow}, v{v_ow}, v{t1}")
        k(f"v_add_u32 v{v_ow}, s{s_t}, v{v_ow}")
        k(f"v_add_u32 v{v_or}, s{s_t}, v{v_x}")
        for i in range(3):
            k(f"v_add_u32 v{v_s1}, {i*64}, v{v_l}")
            k(f"v_mul_u32_u24 v{v_s2}, 6554, v{v_s1}")
            k(f"v_lshrrev_b32 v{v_s2}, 16, v{v_s2}")
            k(f"v_mul_u32_u24 v{v_st}, 10, v{v_s2}")
            k(f"v_sub_u32 v{v_st}, v{v_s1}, v{v_st}")
            k(f"v_add_u32 v{v_s2}, s{s_tok}, v{v_s2}")
            k(f"v_mul_u32_u24 v{v_s2}, 1280, v{v_s2}")
            k(f"v_lshl_add_u32 v{OADR+i}, v{v_st}, 4, v{v_s2}")
        k(f"v_cmp_gt_u32 vcc, 32, v{v_l}")
        k(f"v_mov_b32 v{v_s1}, 0x7ffffff0")
        k.nop(1)
        k(f"v_cndmask_b32 v{OADR+2}, v{v_s1}, v{OADR+2}, vcc")
    spr = Sprinkle()
    k.stamp()

    def read_fn(i, buf):
        c, r = divmod(i, 20)
        slot = c % R
        base, off = (v_x, slot * 20480) if slot < 3 else (v_a2, (slot - 3) * 20480)
        k(f"ds_read_b128 {vr(AF+4*buf,4)}, v{base} offset:{off + r*1024}")

    def mfma_fn(i, buf):
        c, r = divmod(i, 20)
        s, t = divmod(r, 5)
        X = XB + (c % RX) * 16 + 4 * s
        if i == 0:
            for tt in range(5):
                a = ACC + 4 * tt
                k(f"v_lshlrev_b32 v{a}, 16, v{RES+2*tt}")
                k(f"v_and_b32 v{a+1}, 0xffff0000, v{RES+2*tt}")
                k(f"v_lshlrev_b32 v{a+2}, 16, v{RES+2*tt+1}")
                k(f"v_and_b32 v{a+3}, 0xffff0000, v{RES+2*tt+1}")
                if name == "k5":
                    k(f"v_lshlrev_b32 v{RES+2*tt}, 16, v{BIA+2*tt}")
                    k(f"v_and_b32 v{BIA+2*tt}, 0xffff0000, v{BIA+2*tt}")
                    k(f"v_lshlrev_b32 v{RES+2*tt+1}, 16, v{BIA+2*tt+1}")
                    k(f"v_and_b32 v{BIA+2*tt+1}, 0xffff0000, v{BIA+2*tt+1}")
                    k(f"v_add_f32 v{a}, v{a}, v{RES+2*tt}")
                    k(f"v_add_f32 v{a+1}, v{a+1}, v{BIA+2*tt}")
                    k(f"v_add_f32 v{a+2}, v{a+2}, v{RES+2*tt+1}")
                    k(f"v_add_f32 v{a+3}, v{a+3}, v{BIA+2*tt+1}")
            k.nop(2)
        k(f"v_mfma_f32_16x16x32_bf16 {vr(ACC+4*t,4)}, {vr(AF+4*buf,4)}, {vr(X,4)}, {vr(ACC+4*t,4)}")

    def mk_sync(c):
        def f():
            k.vmwait(f"c{c}")
            k("s_barrier")
            if c in (0, 1, NCH - 1):
                k.stamp()
        return f
    sync_at = {20 * c: mk_sync(c) for c in range(NCH)}

    def side(i):
        c, r = divmod(i, 20)
        if r == 0 and c + PD < NCH:
            for f in chunk_loads(c + PD):
                spr.add(f)
        spr.emit(1)
    gemm_pipeline(k, 20 * NCH, D, lambda j: 1, read_fn, mfma_fn, sync_at, side)
    assert not spr.q
    k.stamp()
    k.nop(4)
    T = AF
    for t in range(5):
        a = ACC + 4 * t
        k(f"v_cvt_pk_bf16_f32 v{T+2*t}, v{a}, v{a+1}")
        k(f"v_cvt_pk_bf16_f32 v{T+1+2*t}, v{a+2}, v{a+3}")
        if name == "k3":
            if t < 4:
                k(f"buffer_store_dwordx2 {vr(T+2*t,2)}, v{v_h}, s[{sWS}:{sWS+3}], s{s_hoff} offen offset:{t*1024}")
            else:
                k(f"buffer_store_dwordx2 {vr(T+2*t,2)}, v{t2}, s[{sWS}:{sWS+3}], s{s_hoff} offen")
        else:
            k(f"ds_write_b64 v{v_ow}, {vr(T+2*t,2)} offset:{t*32}")
    if name == "k3":
        for i in range(10):
            k(f"v_dot2_f32_bf16 v{v_s1}, v{T+i}, v7, v{v_s1}")
            k(f"v_dot2_f32_bf16 v{v_s2}, v{T+i}, v{T+i}, v{v_s2}")
        chs = []
        for v, tt in ((v_s1, t0), (v_s2, t1)):
            chs.append([(f"v_mov_b32 v{tt}, v{v}", 3), (f"v_permlane16_swap_b32 v{v}, v{tt}", 2), (f"v_add_f32 v{v}, v{v}, v{tt}", 1),
                        (f"v_mov_b32 v{tt}, v{v}", 0), (f"v_permlane32_swap_b32 v{v}, v{tt}", 2), (f"v_add_f32 v{v}, v{v}, v{tt}", 1)])
        k.nop(3)
        interleave(k, chs)
        k(f"s_lshl_b32 s{s_t}, s{s_cb}, 3")
        k(f"s_add_u32 s{s_t}, s{s_t}, {WS_ST}")
        k(f"buffer_store_dwordx2 {vr(v_s1,2)}, v{v_st}, s[{sWS}:{sWS+3}], s{s_t} offen")
    else:
        k("s_waitcnt lgkmcnt(0)")
        for i in range(3):
            k(f"ds_read_b128 {vr(T+12+4*i,4)}, v{v_or} offset:{i*1024}")
        for i in range(3):
            k(f"s_waitcnt lgkmcnt({2-i})")
            k(f"buffer_store_dwordx4 {vr(T+12+4*i,4)}, v{OADR+i}, s[{sO}:{sO+3}], s{s_rmoff} offen")
    k.stamp_flush(s_w)
    k.label(f"{name}_end")
    k("s_endpgm")
    if helper:
        k.label(f"{name}_helper")
        slab = 256 * Kdim * 2
        k(f"s_and_b32 s{s_l}, s2, 7")
        k(f"s_mul_i32 s{s_l}, s{s_l}, {slab}")
        k("s_waitcnt lgkmcnt(0)")
        k(f"s_add_u32 s14, s12, s{s_l}")
        k("s_addc_u32 s15, s13, 0")
        helper_prefetch(k, 48, 14, WS_O if name == "k3" else WS_H1, slab, v_l, t0, t1, s_t, s_t2)
        k("s_barrier")
        if name == "k3":
            helper_prefetch(k, 52, 12, WS_W1, 1920 * 1024, v_l, t0, t1, s_t, s_t2)
        for c in range(NCH - 1):
            k("s_barrier")
        k("s_endpgm")
    return k.text(NV), name + "_kernel", (256, 256, R * 20480 + (10240 + 1024 if name == "k5" else 0))


def gen_k4():
    k = Kern("k4_kernel")
    CK = 4
    NCH = 40 // CK
    PD = PD32
    R, RX, D = PD + 2, PD + 1, 6
    CB = CK * 3 * 1024
    sWS = 20
    s_tb, s_cb, s_w, s_t, s_t2, s_off, s_xoff, s_l = 32, 33, 34, 35, 36, 37, 38, 39
    v_l, v_q, v_half = 1, 2, 3
    v_x = 4
    v_x2 = 5
    t0, t1, t2, t3 = 12, 13, 14, 15
    BX = 16
    ST = 20
    AF = 28
    E = 56
    BX2 = 68
    ACC = 80
    EXA = 128
    XB = 152
    NV = XB + RX * 16
    helper = False
    k("s_cmp_ge_u32 s2, 256")
    k("s_cbranch_scc1 k4_end")
    k.stamp_init()
    k(f"s_load_dwordx2 s[12:13], s[0:1], {KA['ws']}")
    wave_lane_setup(k, s_w, v_l)
    if helper:
        k(f"s_cmp_eq_u32 s{s_w}, 4")
        k("s_cbranch_scc1 k4_helper")
    if MAP4 == 0:
        k(f"s_and_b32 s{s_t}, s2, 7")
        k(f"s_lshl_b32 s{s_tb}, s{s_t}, 1")
        k(f"s_bfe_u32 s{s_t}, s2, 0x10003")
        k(f"s_add_u32 s{s_tb}, s{s_tb}, s{s_t}")
        k(f"s_lshr_b32 s{s_cb}, s2, 4")
    else:
        b = MAP4
        k(f"s_bfe_u32 s{s_t}, s2, {hex(((3-b) << 16) | b)}")
        k(f"s_lshl_b32 s{s_tb}, s{s_t}, {1+b}")
        k(f"s_bfe_u32 s{s_t}, s2, {hex(((1+b) << 16) | 3)}")
        k(f"s_add_u32 s{s_tb}, s{s_tb}, s{s_t}")
        k(f"s_and_b32 s{s_t}, s2, {(1 << b) - 1}")
        k(f"s_lshl_b32 s{s_cb}, s{s_t}, {4-b}")
        k(f"s_lshr_b32 s{s_t}, s2, {4+b}")
        k(f"s_add_u32 s{s_cb}, s{s_cb}, s{s_t}")
    k(f"v_lshlrev_b32 v{v_x}, 4, v{v_l}")
    k(f"s_lshl_b32 s{s_t}, s{s_tb}, 2")
    k(f"s_add_u32 s{s_t}, s{s_t}, s{s_w}")
    k(f"s_mul_i32 s{s_xoff}, s{s_t}, {640*64}")
    k(f"s_add_u32 s{s_xoff}, s{s_xoff}, {WS_H}")
    k(f"s_mul_i32 s{s_off}, s{s_cb}, {640*192}")
    k(f"s_mul_i32 s{s_l}, s{s_w}, {CB//4}")
    k(f"s_add_u32 s{s_off}, s{s_off}, s{s_l}")
    k(f"s_add_u32 s{s_off}, s{s_off}, {WS_W1}")
    s_cc, s_cx, s_cw = 48, 49, 50
    if ROT:
        k(f"s_and_b32 s{s_t}, s{s_tb}, 1")
        k(f"s_mul_i32 s{s_t}, s{s_t}, 5")
        k(f"s_mul_i32 s{s_t2}, s{s_cb}, 3")
        k(f"s_add_u32 s{s_t}, s{s_t}, s{s_t2}")
        sdiv(k, s_cx, s_cc, s_t, NCH, s_t2)
    else:
        k(f"s_mov_b32 s{s_cc}, 0")
    k("s_waitcnt lgkmcnt(0)")
    k.srd(sWS, 12, WS_SIZE)

    def chunk_loads(c):
        fs = []
        for i in range(CK):
            def fx(i=i, c=c):
                if i == 0:
                    k(f"s_mul_i32 s{s_cx}, s{s_cc}, {CK*1024}")
                    k(f"s_mul_i32 s{s_cw}, s{s_cc}, {CB}")
                    k(f"s_add_u32 s{s_cx}, s{s_cx}, s{s_xoff}")
                    k(f"s_add_u32 s{s_cw}, s{s_cw}, s{s_off}")
                    k(f"s_add_u32 s{s_cc}, s{s_cc}, 1")
                    k(f"s_cmp_eq_u32 s{s_cc}, {NCH}")
                    k(f"s_cselect_b32 s{s_cc}, 0, s{s_cc}")
                k.vmissue(f"buffer_load_dwordx4 {vr(XB+((c%RX)*CK+i)*4,4)}, v{v_x}, s[{sWS}:{sWS+3}], s{s_cx} offen offset:{i*1024}", f"c{c}")
            fs.append(fx)
        for i in range(CB // 4096):
            def fw(i=i, c=c):
                k(f"s_add_u32 m0, s{s_l}, {(c%R)*CB + i*1024}")
                k(f"s_add_u32 s{s_t2}, s{s_cw}, {i*1024}")
                k.vmissue(f"buffer_load_dwordx4 v{v_x}, s[{sWS}:{sWS+3}], s{s_t2} offen lds", f"c{c}")
            fs.append(fw)
        return fs
    for c in range(PD):
        for f in chunk_loads(c):
            f()
    k(f"v_and_b32 v{v_q}, 31, v{v_l}")
    k(f"v_lshrrev_b32 v{v_half}, 5, v{v_l}")
    k(f"v_add_u32 v{v_x2}, {5*CB}, v{v_x}")
    for i in range(48):
        k(f"v_mov_b32 v{ACC+i}, 0")
    k(f"s_lshl_b32 s{s_t}, s{s_tb}, 7")
    k(f"s_lshl_b32 s{s_t2}, s{s_w}, 5")
    k(f"s_add_u32 s{s_t}, s{s_t}, s{s_t2}")
    k(f"v_add_u32 v{t1}, s{s_t}, v{v_q}")
    k(f"v_lshlrev_b32 v{t3}, 6, v{t1}")
    k(f"v_lshl_add_u32 v{t3}, v{v_half}, 5, v{t3}")
    k(f"v_lshrrev_b32 v{t2}, 4, v{t1}")
    k(f"v_mul_u32_u24 v{t2}, {1536*32}, v{t2}")
    k(f"v_and_b32 v{t1}, 15, v{t1}")
    k(f"v_lshl_add_u32 v{t2}, v{t1}, 4, v{t2}")
    k(f"v_lshl_add_u32 v{t2}, v{v_half}, 8, v{t2}")
    s_so, s_ex, s_st = 40, 41, 42
    k(f"s_mul_i32 s{s_so}, s{s_cb}, {12*256}")
    k(f"s_add_u32 s{s_so}, s{s_so}, {WS_H1}")
    k(f"s_mul_i32 s{s_ex}, s{s_cb}, 6144")
    k(f"s_add_u32 s{s_ex}, s{s_ex}, {WS_EX}")
    k(f"s_mov_b32 s{s_st}, {WS_ST}")

    def epi_loads():
        fs = []
        for i in range(2):
            fs.append(lambda i=i: k.vmissue(f"buffer_load_dwordx4 {vr(ST+4*i,4)}, v{t3}, s[{sWS}:{sWS+3}], s{s_st} offen offset:{i*16}", "epi"))
        for t in range(6):
            def fe(t=t):
                k(f"s_add_u32 s{s_t2}, s{s_ex}, {t*1024}")
                k.vmissue(f"buffer_load_dwordx4 {vr(EXA+4*t,4)}, v{v_x}, s[{sWS}:{sWS+3}], s{s_t2} offen", "epi")
            fs.append(fe)
        return fs
    spr = Sprinkle()
    k.stamp()
    UPC = CK * 3
    v_mean, v_rstd, v_sum, v_sq = E, E + 1, E + 2, E + 3

    def stats_code():
        kk = Kern("tmp")
        kk(f"v_add_f32 v{v_sum}, v{ST}, v{ST+2}")
        kk(f"v_add_f32 v{v_sq}, v{ST+1}, v{ST+3}")
        kk(f"v_add_f32 v{ST+4}, v{ST+4}, v{ST+6}")
        kk(f"v_add_f32 v{ST+5}, v{ST+5}, v{ST+7}")
        kk(f"v_add_f32 v{v_sum}, v{v_sum}, v{ST+4}")
        kk(f"v_add_f32 v{v_sq}, v{v_sq}, v{ST+5}")
        xsum_halves(kk, v_sum, t0)
        xsum_halves(kk, v_sq, t0)
        ln_stats(kk, v_sum, v_sq, v_mean, v_rstd, t0, t1)
        kk(f"v_xor_b32 v{t0}, 0x80000000, v{v_mean}")
        kk(f"v_lshrrev_b32 v{BX}, 16, v{t0}")
        kk(f"v_or_b32 v{BX}, v{BX}, v{t0}")
        kk(f"v_cmp_eq_u32 vcc, 0, v{v_half}")
        for r_ in (BX + 1, BX + 2, BX + 3, BX2, BX2 + 1, BX2 + 2):
            kk(f"v_mov_b32 v{r_}, v{BX}")
        kk(f"v_lshrrev_b32 v{t0}, 16, v{t1}")
        kk(f"v_cndmask_b32 v{BX2+3}, v{t0}, v{BX}, vcc")
        kk(f"v_mul_f32 v{v_rstd}, v{v_rstd}, v{v_rstd}")
        kk(f"v_mov_b32 v{v_rstd+1}, v{v_rstd}")
        return [l.strip() for l in kk.L]

    def read_fn(i, buf):
        c, r = divmod(i, UPC)
        slot = c % R
        base, off = (v_x, slot * CB) if slot < 5 else (v_x2, (slot - 5) * CB)
        k(f"ds_read_b128 {vr(AF+4*buf,4)}, v{base} offset:{off + r*1024}")

    def mfma_fn(i, buf):
        c, r = divmod(i, UPC)
        s, t = divmod(r, 3)
        X = XB + ((c % RX) * CK + s) * 4
        k(f"v_mfma_f32_32x32x16_bf16 {vr(ACC+16*t,16)}, {vr(AF+4*buf,4)}, {vr(X,4)}, {vr(ACC+16*t,16)}")

    def mk_sync(c):
        def f():
            k.vmwait(f"c{c}")
            k("s_barrier")
            if c in (0, 1, NCH - 1):
                k.stamp()
        return f
    sync_at = {UPC * c: mk_sync(c) for c in range(NCH)}
    spr2 = Sprinkle()

    def side(i):
        c, r = divmod(i, UPC)
        if r == 0:
            if c + PD < NCH:
                for f in chunk_loads(c + PD):
                    spr.add(f)
            elif c + PD == NCH:
                for f in epi_loads():
                    spr.add(f)
            if c == NCH - 1:
                k.vmwait("epi")
                for l in stats_code():
                    spr2.add(lambda l=l: k(l))
        spr.emit(1)
        spr2.emit(4)
    gemm_pipeline(k, UPC * NCH, D, lambda j: 1, read_fn, mfma_fn, sync_at, side)
    assert not spr.q
    spr2.emit(1000)
    k.stamp()
    k.nop(2)
    for t in range(3):
        k(f"v_mfma_f32_32x32x16_bf16 {vr(ACC+16*t,16)}, {vr(EXA+8*t,4)}, {vr(BX,4)}, {vr(ACC+16*t,16)}")
        k(f"v_mfma_f32_32x32x16_bf16 {vr(ACC+16*t,16)}, {vr(EXA+8*t+4,4)}, {vr(BX2,4)}, {vr(ACC+16*t,16)}")
    k.nop(6)
    R2 = E + 4
    k(f"v_mov_b32 v{R2}, v{v_rstd}")
    k(f"v_mov_b32 v{R2+1}, v{v_rstd}")
    TM = XB
    for t in range(3):
        for qp in range(2):
            O4 = XB + 32 + (t * 2 + qp) * 4
            for qq in range(2):
                z = ACC + 16 * t + 8 * qp + 4 * qq
                m = TM + 4 * qq
                for r in range(4):
                    k(f"v_max_f32 v{m+r}, 0, v{z+r}")
                k(f"v_pk_mul_f32 {vr(z,2)}, {vr(z,2)}, {vr(R2,2)}")
                k(f"v_pk_mul_f32 {vr(z+2,2)}, {vr(z+2,2)}, {vr(R2,2)}")
                k(f"v_pk_mul_f32 {vr(z,2)}, {vr(z,2)}, {vr(m,2)}")
                k(f"v_pk_mul_f32 {vr(z+2,2)}, {vr(z+2,2)}, {vr(m+2,2)}")
                k(f"v_cvt_pk_bf16_f32 v{O4+2*qq}, v{z}, v{z+1}")
                k(f"v_cvt_pk_bf16_f32 v{O4+2*qq+1}, v{z+2}, v{z+3}")
            k.nop(2)
            k(f"v_permlane32_swap_b32 v{O4}, v{O4+2}")
            k(f"v_permlane32_swap_b32 v{O4+1}, v{O4+3}")
            k(f"buffer_store_dwordx4 {vr(O4,4)}, v{t2}, s[{sWS}:{sWS+3}], s{s_so} offen offset:{(4*t+2*qp)*256} {SC4}")
    k.stamp_flush(s_w)
    k.label("k4_end")
    k("s_endpgm")
    if helper:
        k.label("k4_helper")
        slab = 256 * 640 * 2
        k(f"s_and_b32 s{s_l}, s2, 7")
        k(f"s_mul_i32 s{s_l}, s{s_l}, {slab}")
        k("s_waitcnt lgkmcnt(0)")
        k(f"s_add_u32 s14, s12, s{s_l}")
        k("s_addc_u32 s15, s13, 0")
        helper_prefetch(k, 48, 14, WS_H, slab, v_l, t0, t1, s_t, s_t2)
        k("s_barrier")
        k("s_barrier")
        helper_prefetch(k, 52, 12, WS_W2, 1920 * 1024, v_l, t0, t1, s_t, s_t2)
        for c in range(NCH - 2):
            k("s_barrier")
        k("s_endpgm")
    return k.text(NV), "k4_kernel", (256, 320 if helper else 256, R * CB)


def gen_mlp():
    k = Kern("k3_kernel")
    sWS, sB, sO = 20, 28, 44
    s_g, s_i, s_w, s_t, s_t2 = 32, 33, 34, 35, 36
    s_tb, s_cb, s_tok = 37, 38, 39
    s_xa, s_wa, s_l5 = 40, 41, 42
    s_xb, s_wb, s_l3 = 48, 49, 50
    s_xc, s_wc = 51, 52
    s_hoff, s_rmoff, s_xg, s_cnt, s_spin = 53, 54, 55, 56, 57
    s_so, s_ex, s_st = 58, 59, 43
    v_l, v_idx, v_g, v_x = 1, 2, 3, 4
    v_q, v_half = 5, 6
    v_one = 7
    t0, t1, t2, t3 = 8, 9, 10, 11
    v_h, v_h4, v_xg, v_st = 12, 13, 14, 15
    v_s1, v_s2 = 16, 17
    v_hi1, v_hi2 = 18, 19
    HP = 20
    OADR, v_ow, v_or, v_b8 = 30, 33, 34, 35
    v_h1a, v_sta = 36, 37
    E = 38
    BX, BX2 = 48, 52
    AF = 56
    ACC = 116
    EXA = 164
    XB = 188
    NV = 252
    D16 = int(os.environ.get("D16", "14"))
    D32 = int(os.environ.get("D32", "6"))
    RES, BIA, ST = EXA, EXA + 10, E + 2

    def lds_addr(off):
        if off < 61440:
            return v_x, off
        if off < 122880:
            return v_hi1, off - 61440
        return v_hi2, off - 122880

    k("s_cmp_ge_u32 s2, 256")
    k("s_cbranch_scc1 k3_end")
    k.stamp_init()
    k(f"s_load_dwordx2 s[12:13], s[0:1], {KA['ws']}")
    k(f"s_load_dwordx4 s[8:11], s[0:1], {KA['b2']}")
    wave_lane_setup(k, s_w, v_l)
    k(f"s_and_b32 s{s_t}, s2, 7")
    k(f"s_lshl_b32 s{s_g}, s{s_t}, 1")
    k(f"s_bfe_u32 s{s_t}, s2, 0x10003")
    k(f"s_add_u32 s{s_g}, s{s_g}, s{s_t}")
    k(f"s_lshr_b32 s{s_i}, s2, 4")
    k(f"s_lshl_b32 s{s_tb}, s{s_g}, 1")
    k(f"s_and_b32 s{s_t}, s{s_i}, 1")
    k(f"s_add_u32 s{s_tb}, s{s_tb}, s{s_t}")
    k(f"s_lshr_b32 s{s_cb}, s{s_i}, 1")
    k(f"v_lshlrev_b32 v{v_x}, 4, v{v_l}")
    k(f"v_and_b32 v{v_idx}, 15, v{v_l}")
    k(f"v_lshrrev_b32 v{v_g}, 4, v{v_l}")
    k(f"s_lshl_b32 s{s_t}, s{s_tb}, 6")
    k(f"s_lshl_b32 s{s_t2}, s{s_w}, 4")
    k(f"s_add_u32 s{s_tok}, s{s_t}, s{s_t2}")
    k(f"s_mul_i32 s{s_xa}, s{s_tok}, 1280")
    k(f"s_mul_i32 s{s_t}, s{s_cb}, 2560")
    k(f"s_add_u32 s{s_xg}, s{s_xa}, s{s_t}")
    k(f"s_add_u32 s{s_xg}, s{s_xg}, {WS_XG}")
    k(f"s_add_u32 s{s_xa}, s{s_xa}, {WS_O}")
    k(f"s_mul_i32 s{s_l5}, s{s_w}, 5120")
    k(f"s_mul_i32 s{s_wa}, s{s_cb}, {640*160}")
    k(f"s_add_u32 s{s_wa}, s{s_wa}, s{s_l5}")
    k(f"s_add_u32 s{s_wa}, s{s_wa}, {WS_WO}")
    k(f"v_lshrrev_b32 v{t1}, 1, v{v_g}")
    k(f"v_and_b32 v{t2}, 1, v{v_g}")
    k(f"v_lshlrev_b32 v{v_xg}, 4, v{v_idx}")
    k(f"v_lshl_add_u32 v{v_xg}, v{t1}, 8, v{v_xg}")
    k(f"v_lshl_add_u32 v{v_xg}, v{t2}, 3, v{v_xg}")
    k("s_waitcnt lgkmcnt(0)")
    k.srd(sWS, 12, WS_SIZE)

    def xload16(c, i, sx, RX, tag, pol):
        k(f"s_add_u32 s{s_t2}, s{sx}, {c*4096}")
        k.vmissue(f"buffer_load_dwordx4 {vr(XB+(c%RX)*16+4*i,4)}, v{v_x}, s[{sWS}:{sWS+3}], s{s_t2} offen offset:{i*1024} {pol}", tag)

    def wload16(c, i, sw, R, tag):
        k(f"s_add_u32 m0, s{s_l5}, {((c + (3 if R == 7 else 0))%R)*20480 + i*1024}")
        k(f"s_add_u32 s{s_t2}, s{sw}, {c*20480 + i*1024}")
        k.vmissue(f"buffer_load_dwordx4 v{v_x}, s[{sWS}:{sWS+3}], s{s_t2} offen lds", tag)

    W1LOC = [81920 + c * 12288 for c in range(6)] + [c * 12288 for c in range(4)]

    def w1load(c, i):
        k(f"s_add_u32 m0, s{s_l3}, {W1LOC[c] + i*1024}")
        k(f"s_add_u32 s{s_t2}, s{s_wb}, {c*12288 + i*1024}")
        k.vmissue(f"buffer_load_dwordx4 v{v_x}, s[{sWS}:{sWS+3}], s{s_t2} offen lds", "w1a" if c < 6 else "w1b")

    RA, RXA, PDA = 4, 3, 2
    for i in range(4):
        xload16(0, i, s_xa, RXA, "c0", "")
    for i in range(5):
        wload16(0, i, s_wa, RA, "c0")
    for t in range(5):
        k.vmissue(f"buffer_load_dwordx2 {vr(RES+2*t,2)}, v{v_xg}, s[{sWS}:{sWS+3}], s{s_xg} offen offset:{t*512}", "c0")
    for i in range(4):
        xload16(1, i, s_xa, RXA, "c1", "")
    for i in range(5):
        wload16(1, i, s_wa, RA, "c1")
    k.srd(sB, 8, 1280)
    k.srd(sO, 10, 2048 * 1280)
    k(f"v_and_b32 v{v_q}, 31, v{v_l}")
    k(f"v_lshrrev_b32 v{v_half}, 5, v{v_l}")
    k(f"v_add_u32 v{v_hi1}, 61440, v{v_x}")
    k(f"v_add_u32 v{v_hi2}, 122880, v{v_x}")
    k(f"v_mov_b32 v{v_one}, 0x3f803f80")
    k(f"v_mov_b32 v{v_s1}, 0")
    k(f"v_mov_b32 v{v_s2}, 0")
    k(f"v_add_u32 v{t0}, s{s_tok}, v{v_idx}")
    k(f"v_lshrrev_b32 v{t3}, 5, v{t0}")
    k(f"v_mul_u32_u24 v{v_h}, {640*64}, v{t3}")
    k(f"v_and_b32 v{t3}, 31, v{t0}")
    k(f"v_lshl_add_u32 v{v_h}, v{t3}, 4, v{v_h}")
    k(f"v_lshl_add_u32 v{v_h}, v{t1}, 9, v{v_h}")
    k(f"v_add_u32 v{v_h4}, 4096, v{v_h}")
    k(f"v_lshl_add_u32 v{v_h}, v{t2}, 10, v{v_h}")
    k(f"v_cmp_eq_u32 vcc, 0, v{t2}")
    k(f"v_mov_b32 v{t3}, 0x7ffffff0")
    k(f"v_lshlrev_b32 v{v_st}, 3, v{t0}")
    k(f"v_cndmask_b32 v{v_h4}, v{t3}, v{v_h4}, vcc")
    k(f"v_cmp_eq_u32 vcc, 0, v{v_g}")
    k(f"v_lshlrev_b32 v{v_b8}, 3, v{v_g}")
    k.nop(1)
    k(f"v_cndmask_b32 v{v_st}, v{t3}, v{v_st}, vcc")
    k(f"s_mul_i32 s{s_hoff}, s{s_cb}, 5120")
    k(f"s_add_u32 s{s_hoff}, s{s_hoff}, {WS_H}")
    k(f"s_mul_i32 s{s_rmoff}, s{s_cb}, 160")
    k(f"s_lshl_b32 s{s_cnt}, s{s_g}, 8")
    k(f"s_add_u32 s{s_cnt}, s{s_cnt}, {WS_CNT}")
    k(f"s_lshl_b32 s{s_t}, s{s_g}, 2")
    k(f"s_add_u32 s{s_t}, s{s_t}, s{s_w}")
    k(f"s_mul_i32 s{s_xb}, s{s_t}, {640*64}")
    k(f"s_add_u32 s{s_xb}, s{s_xb}, {WS_H}")
    k(f"s_mul_i32 s{s_l3}, s{s_w}, 3072")
    k(f"s_mul_i32 s{s_wb}, s{s_i}, {640*192}")
    k(f"s_add_u32 s{s_wb}, s{s_wb}, s{s_l3}")
    k(f"s_add_u32 s{s_wb}, s{s_wb}, {WS_W1}")
    k(f"s_mul_i32 s{s_so}, s{s_i}, {12*256}")
    k(f"s_add_u32 s{s_so}, s{s_so}, {WS_H1}")
    k(f"s_mul_i32 s{s_ex}, s{s_i}, 6144")
    k(f"s_add_u32 s{s_ex}, s{s_ex}, {WS_EX}")
    k(f"s_mov_b32 s{s_st}, {WS_ST}")
    k(f"s_lshl_b32 s{s_t}, s{s_t}, 5")
    k(f"v_add_u32 v{t0}, s{s_t}, v{v_q}")
    k(f"v_lshlrev_b32 v{v_sta}, 3, v{t0}")
    k(f"v_lshl_add_u32 v{v_sta}, v{v_half}, 16, v{v_sta}")
    k(f"v_lshrrev_b32 v{t3}, 4, v{t0}")
    k(f"v_mul_u32_u24 v{v_h1a}, {1536*32}, v{t3}")
    k(f"v_and_b32 v{t3}, 15, v{t0}")
    k(f"v_lshl_add_u32 v{v_h1a}, v{t3}, 4, v{v_h1a}")
    k(f"v_lshl_add_u32 v{v_h1a}, v{v_half}, 8, v{v_h1a}")
    k(f"s_mul_i32 s{s_xc}, s{s_tok}, 3072")
    k(f"s_add_u32 s{s_xc}, s{s_xc}, {WS_H1}")
    k(f"s_mul_i32 s{s_wc}, s{s_cb}, {1536*160}")
    k(f"s_add_u32 s{s_wc}, s{s_wc}, s{s_l5}")
    k(f"s_add_u32 s{s_wc}, s{s_wc}, {WS_W2}")
    LDS_OUT = 143360
    k(f"s_mul_i32 s{s_t}, s{s_w}, 2560")
    k(f"s_add_u32 s{s_t}, s{s_t}, {LDS_OUT}")
    k(f"v_mul_u32_u24 v{v_ow}, 160, v{v_idx}")
    k(f"v_add_u32 v{v_ow}, v{v_ow}, v{v_b8}")
    k(f"v_add_u32 v{v_ow}, s{s_t}, v{v_ow}")
    k(f"v_add_u32 v{v_or}, s{s_t}, v{v_x}")
    for i in range(3):
        k(f"v_add_u32 v{t0}, {i*64}, v{v_l}")
        k(f"v_mul_u32_u24 v{t1}, 6554, v{t0}")
        k(f"v_lshrrev_b32 v{t1}, 16, v{t1}")
        k(f"v_mul_u32_u24 v{t2}, 10, v{t1}")
        k(f"v_sub_u32 v{t2}, v{t0}, v{t2}")
        k(f"v_add_u32 v{t1}, s{s_tok}, v{t1}")
        k(f"v_mul_u32_u24 v{t1}, 1280, v{t1}")
        k(f"v_lshl_add_u32 v{OADR+i}, v{t2}, 4, v{t1}")
    k(f"v_cmp_gt_u32 vcc, 32, v{v_l}")
    k(f"v_mov_b32 v{t0}, 0x7ffffff0")
    k.nop(1)
    k(f"v_cndmask_b32 v{OADR+2}, v{t0}, v{OADR+2}, vcc")

    def phase16(NCH, R, RX, side, init, pre=""):
        def read_fn(i, buf):
            c, r = divmod(i, 20)
            b, off = lds_addr(((c + (3 if R == 7 else 0)) % R) * 20480 + r * 1024)
            k(f"ds_read_b128 {vr(AF+4*buf,4)}, v{b} offset:{off}")

        def mfma_fn(i, buf):
            c, r = divmod(i, 20)
            s_, t = divmod(r, 5)
            X = XB + (c % RX) * 16 + 4 * s_
            if i == 0:
                init()
                k.nop(2)
            k(f"v_mfma_f32_16x16x32_bf16 {vr(ACC+4*t,4)}, {vr(AF+4*buf,4)}, {vr(X,4)}, {vr(ACC+4*t,4)}")

        def mk_sync(c):
            def f():
                k.vmwait(f"{pre}c{c}")
                k("s_barrier")
                if pre and c in (0, 1, 4, 7, 10):
                    k.stamp()
            return f
        gemm_pipeline(k, 20 * NCH, D16, lambda j: 1, read_fn, mfma_fn, {20 * c: mk_sync(c) for c in range(NCH)}, side)

    spr = Sprinkle()

    def sideA(i):
        c, r = divmod(i, 20)
        if r == 0:
            if c + PDA < 5:
                for j in range(4):
                    spr.add(lambda j=j, c=c: xload16(c + PDA, j, s_xa, RXA, f"c{c+PDA}", ""))
                for j in range(5):
                    spr.add(lambda j=j, c=c: wload16(c + PDA, j, s_wa, RA, f"c{c+PDA}"))
        spr.emit(1)

    def initA():
        for tt in range(5):
            a = ACC + 4 * tt
            k(f"v_lshlrev_b32 v{a}, 16, v{RES+2*tt}")
            k(f"v_and_b32 v{a+1}, 0xffff0000, v{RES+2*tt}")
            k(f"v_lshlrev_b32 v{a+2}, 16, v{RES+2*tt+1}")
            k(f"v_and_b32 v{a+3}, 0xffff0000, v{RES+2*tt+1}")
    phase16(5, RA, RXA, sideA, initA)
    assert not spr.q
    k.stamp()
    k.nop(4)
    T = AF
    for t in range(5):
        a = ACC + 4 * t
        k(f"v_cvt_pk_bf16_f32 v{HP+2*t}, v{a}, v{a+1}")
        k(f"v_cvt_pk_bf16_f32 v{HP+1+2*t}, v{a+2}, v{a+3}")
    for i in range(10):
        k(f"v_mov_b32 v{T+i}, v{HP+i}")
    k(f"v_mov_b32 v{T+10}, v{HP+8}")
    k(f"v_mov_b32 v{T+11}, v{HP+9}")
    for p in range(3):
        k(f"v_permlane16_swap_b32 v{T+4*p}, v{T+4*p+2}")
        k(f"v_permlane16_swap_b32 v{T+4*p+1}, v{T+4*p+3}")
        if p < 2:
            k.vmissue(f"buffer_store_dwordx4 {vr(T+4*p,4)}, v{v_h}, s[{sWS}:{sWS+3}], s{s_hoff} offen offset:{p*2048} sc1", "st")
        else:
            k.vmissue(f"buffer_store_dwordx4 {vr(T+4*p,4)}, v{v_h4}, s[{sWS}:{sWS+3}], s{s_hoff} offen sc1", "st")
    for i in range(10):
        k(f"v_dot2_f32_bf16 v{v_s1}, v{HP+i}, v{v_one}, v{v_s1}")
        k(f"v_dot2_f32_bf16 v{v_s2}, v{HP+i}, v{HP+i}, v{v_s2}")
    chs = []
    for v, tt in ((v_s1, t0), (v_s2, t1)):
        chs.append([(f"v_mov_b32 v{tt}, v{v}", 3), (f"v_permlane16_swap_b32 v{v}, v{tt}", 2), (f"v_add_f32 v{v}, v{v}, v{tt}", 1),
                    (f"v_mov_b32 v{tt}, v{v}", 0), (f"v_permlane32_swap_b32 v{v}, v{tt}", 2), (f"v_add_f32 v{v}, v{v}, v{tt}", 1)])
    k.nop(3)
    interleave(k, chs)
    k(f"s_lshl_b32 s{s_t}, s{s_cb}, 14")
    k(f"s_add_u32 s{s_t}, s{s_t}, {WS_ST}")
    k.vmissue(f"buffer_store_dwordx2 {vr(v_s1,2)}, v{v_st}, s[{sWS}:{sWS+3}], s{s_t} offen sc1", "st")

    def group_sync(n, pre0, preload, need):
        pre0()
        k.vmwait("st")
        k("s_barrier")
        k.stamp()
        lab = k.newlabel("na")
        k(f"v_mov_b32 v{t0}, 0")
        k(f"v_mov_b32 v{t1}, 1")
        k(f"s_cmp_lg_u32 s{s_w}, 0")
        k(f"s_cbranch_scc1 {lab}")
        k("s_mov_b64 exec, 1")
        k(f"buffer_atomic_add v{t1}, v{t0}, s[{sWS}:{sWS+3}], s{s_cnt} offen offset:{128*n}")
        k("s_mov_b64 exec, -1")
        k.label(lab)
        preload()
        lab2 = k.newlabel("np")
        lp = k.newlabel("poll")
        k(f"s_cmp_lg_u32 s{s_w}, 0")
        k(f"s_cbranch_scc1 {lab2}")
        k(f"s_mov_b32 s{s_spin}, 0x40000")
        k.label(lp)
        k(f"buffer_load_dword v{t1}, v{t0}, s[{sWS}:{sWS+3}], s{s_cnt} offen offset:{128*n} sc1")
        k("s_waitcnt vmcnt(0)")
        k(f"v_readfirstlane_b32 s{s_t}, v{t1}")
        k(f"s_sub_u32 s{s_spin}, s{s_spin}, 1")
        k(f"s_cmp_eq_u32 s{s_spin}, 0")
        k(f"s_cbranch_scc1 {lab2}")
        k(f"s_cmp_lt_u32 s{s_t}, 16")
        k(f"s_cbranch_scc1 {lp}")
        k.label(lab2)
        if need:
            k.vmwait(need)
        k("s_barrier")

    def pre1a():
        for cc in range(6):
            for j in range(3):
                w1load(cc, j)

    def pre1():
        for cc in range(6, 10):
            for j in range(3):
                w1load(cc, j)
        for t in range(6):
            k(f"s_add_u32 s{s_t2}, s{s_ex}, {t*1024}")
            k.vmissue(f"buffer_load_dwordx4 {vr(EXA+4*t,4)}, v{v_x}, s[{sWS}:{sWS+3}], s{s_t2} offen", "w1b")
    group_sync(0, pre1a, pre1, "w1a")
    k.stamp()
    RC, RXC, PDX = 7, 4, 3

    NXB = 16

    def xb_load(sx):
        k(f"s_add_u32 s{s_t2}, s{s_xb}, {sx*1024}")
        k.vmissue(f"buffer_load_dwordx4 {vr(XB+4*(sx%NXB),4)}, v{v_x}, s[{sWS}:{sWS+3}], s{s_t2} offen sc1", f"x{sx}")
    for sx in range(4):
        xb_load(sx)
    for j in range(4):
        k(f"s_add_u32 s{s_t2}, s{s_st}, {j*16384}")
        k.vmissue(f"buffer_load_dwordx2 {vr(ST+2*j,2)}, v{v_sta}, s[{sWS}:{sWS+3}], s{s_t2} offen sc1", "stt")
    for sx in range(4, NXB - 1):
        xb_load(sx)
    v_mean, v_rstd = E, E + 1

    def stats_code():
        kk = Kern("tmp")
        kk(f"v_add_f32 v{v_s1}, v{ST}, v{ST+2}")
        kk(f"v_add_f32 v{v_s2}, v{ST+1}, v{ST+3}")
        kk(f"v_add_f32 v{ST+4}, v{ST+4}, v{ST+6}")
        kk(f"v_add_f32 v{ST+5}, v{ST+5}, v{ST+7}")
        kk(f"v_add_f32 v{v_s1}, v{v_s1}, v{ST+4}")
        kk(f"v_add_f32 v{v_s2}, v{v_s2}, v{ST+5}")
        xsum_halves(kk, v_s1, t0)
        xsum_halves(kk, v_s2, t0)
        ln_stats(kk, v_s1, v_s2, v_mean, v_rstd, t0, t1)
        kk(f"v_xor_b32 v{t0}, 0x80000000, v{v_mean}")
        kk(f"v_lshrrev_b32 v{BX}, 16, v{t0}")
        kk(f"v_or_b32 v{BX}, v{BX}, v{t0}")
        kk(f"v_cmp_eq_u32 vcc, 0, v{v_half}")
        for r_ in (BX + 1, BX + 2, BX + 3, BX2, BX2 + 1, BX2 + 2):
            kk(f"v_mov_b32 v{r_}, v{BX}")
        kk(f"v_lshrrev_b32 v{t0}, 16, v{t1}")
        kk(f"v_cndmask_b32 v{BX2+3}, v{t0}, v{BX}, vcc")
        kk(f"v_mul_f32 v{v_mean}, v{v_rstd}, v{v_rstd}")
        kk(f"v_mov_b32 v{v_rstd}, v{v_mean}")
        return [l.strip() for l in kk.L]
    spr2 = Sprinkle()

    def b_read(i, buf):
        sx, t = divmod(i, 3)
        c, r = divmod(sx, 4)
        b, off = lds_addr(W1LOC[c] + (r * 3 + t) * 1024)
        k(f"ds_read_b128 {vr(AF+4*buf,4)}, v{b} offset:{off}")

    def b_mfma(i, buf):
        sx, t = divmod(i, 3)
        if t == 0:
            k.vmwait(f"x{sx}")
        c0 = "0" if sx == 0 else vr(ACC + 16 * t, 16)
        k(f"v_mfma_f32_32x32x16_bf16 {vr(ACC+16*t,16)}, {vr(AF+4*buf,4)}, {vr(XB+4*(sx%NXB),4)}, {c0}")

    def b_side(i):
        sx, t = divmod(i, 3)
        if t == 0 and sx + NXB - 1 < 40:
            xb_load(sx + NXB - 1)
        if i == 30:
            for l in stats_code():
                spr2.add(lambda l=l: k(l))
        spr2.emit(2)
        if i == 6:
            for j in range(5):
                spr.add(lambda j=j: wload16(0, j, s_wc, RC, "Cc0"))
        if i == 73:
            k("s_barrier")
            for c in range(1, 4):
                for j in range(5):
                    spr.add(lambda j=j, c=c: wload16(c, j, s_wc, RC, f"Cc{c}"))
        if t != 0:
            spr.emit(1)

    def mid_sync():
        k.vmwait("w1b")
        k("s_barrier")
    gemm_pipeline(k, 120, D32, lambda j: 1, b_read, b_mfma, {72: mid_sync}, b_side)
    assert not spr.q
    assert not spr2.q
    k.stamp()
    for t in range(3):
        k(f"v_mfma_f32_32x32x16_bf16 {vr(ACC+16*t,16)}, {vr(EXA+8*t,4)}, {vr(BX,4)}, {vr(ACC+16*t,16)}")
        k(f"v_mfma_f32_32x32x16_bf16 {vr(ACC+16*t,16)}, {vr(EXA+8*t+4,4)}, {vr(BX2,4)}, {vr(ACC+16*t,16)}")
    k.nop(8)
    TM = XB
    for t in range(3):
        for qp in range(2):
            O4 = XB + 32 + (t * 2 + qp) * 4
            for qq in range(2):
                z = ACC + 16 * t + 8 * qp + 4 * qq
                m = TM + 4 * qq
                for r in range(4):
                    k(f"v_max_f32 v{m+r}, 0, v{z+r}")
                k(f"v_pk_mul_f32 {vr(z,2)}, {vr(z,2)}, {vr(E,2)}")
                k(f"v_pk_mul_f32 {vr(z+2,2)}, {vr(z+2,2)}, {vr(E,2)}")
                k(f"v_pk_mul_f32 {vr(z,2)}, {vr(z,2)}, {vr(m,2)}")
                k(f"v_pk_mul_f32 {vr(z+2,2)}, {vr(z+2,2)}, {vr(m+2,2)}")
                k(f"v_cvt_pk_bf16_f32 v{O4+2*qq}, v{z}, v{z+1}")
                k(f"v_cvt_pk_bf16_f32 v{O4+2*qq+1}, v{z+2}, v{z+3}")
            k.nop(2)
            k(f"v_permlane32_swap_b32 v{O4}, v{O4+2}")
            k(f"v_permlane32_swap_b32 v{O4+1}, v{O4+3}")
            k.vmissue(f"buffer_store_dwordx4 {vr(O4,4)}, v{v_h1a}, s[{sWS}:{sWS+3}], s{s_so} offen offset:{(4*t+2*qp)*256} sc1", "st")

    def pre2():
        for t in range(5):
            k.vmissue(f"buffer_load_dwordx2 {vr(BIA+2*t,2)}, v{v_b8}, s[{sB}:{sB+3}], s{s_rmoff} offen offset:{t*32}", "Cc0")
        for c in range(4, RC):
            for j in range(5):
                wload16(c, j, s_wc, RC, f"Cc{c}")
    group_sync(1, lambda: None, pre2, None)
    k.stamp()

    for c in range(PDX):
        for j in range(4):
            xload16(c, j, s_xc, RXC, f"Cc{c}", "sc1")

    def sideC(i):
        c, r = divmod(i, 20)
        if r == 0:
            if c + PDX < 12:
                for j in range(4):
                    spr.add(lambda j=j, c=c: xload16(c + PDX, j, s_xc, RXC, f"Cc{c+PDX}", "sc1"))
            cw = c - 2 + RC
            if c >= 2 and cw < 12:
                for j in range(5):
                    spr.add(lambda j=j, cw=cw: wload16(cw, j, s_wc, RC, f"Cc{cw}"))
        spr.emit(1)

    def initC():
        for tt in range(5):
            a = ACC + 4 * tt
            k(f"v_lshlrev_b32 v{a}, 16, v{HP+2*tt}")
            k(f"v_and_b32 v{a+1}, 0xffff0000, v{HP+2*tt}")
            k(f"v_lshlrev_b32 v{a+2}, 16, v{HP+2*tt+1}")
            k(f"v_and_b32 v{a+3}, 0xffff0000, v{HP+2*tt+1}")
            k(f"v_lshlrev_b32 v{t0}, 16, v{BIA+2*tt}")
            k(f"v_and_b32 v{t1}, 0xffff0000, v{BIA+2*tt}")
            k(f"v_lshlrev_b32 v{t2}, 16, v{BIA+2*tt+1}")
            k(f"v_and_b32 v{t3}, 0xffff0000, v{BIA+2*tt+1}")
            k(f"v_add_f32 v{a}, v{a}, v{t0}")
            k(f"v_add_f32 v{a+1}, v{a+1}, v{t1}")
            k(f"v_add_f32 v{a+2}, v{a+2}, v{t2}")
            k(f"v_add_f32 v{a+3}, v{a+3}, v{t3}")
    phase16(12, RC, RXC, sideC, initC, pre="C")
    assert not spr.q
    k.stamp()
    k.nop(4)
    for t in range(5):
        a = ACC + 4 * t
        k(f"v_cvt_pk_bf16_f32 v{T+2*t}, v{a}, v{a+1}")
        k(f"v_cvt_pk_bf16_f32 v{T+1+2*t}, v{a+2}, v{a+3}")
        k(f"ds_write_b64 v{v_ow}, {vr(T+2*t,2)} offset:{t*32}")
    k("s_waitcnt lgkmcnt(0)")
    for i in range(3):
        k(f"ds_read_b128 {vr(T+12+4*i,4)}, v{v_or} offset:{i*1024}")
    for i in range(3):
        k(f"s_waitcnt lgkmcnt({2-i})")
        k(f"buffer_store_dwordx4 {vr(T+12+4*i,4)}, v{OADR+i}, s[{sO}:{sO+3}], s{s_rmoff} offen")
    k.stamp_flush(s_w)
    k.label("k3_end")
    k("s_endpgm")
    return k.text(NV), "k3_kernel", (256, 256, 155648)


def gen_kp(order):
    k = Kern("kp_kernel")
    k("s_cmp_ge_u32 s2, 256")
    k("s_cbranch_scc1 kp_end")
    k(f"s_load_dwordx2 s[12:13], s[0:1], {KA['ws']}")
    k("v_and_b32 v1, 63, v0")
    k("s_waitcnt lgkmcnt(0)")
    for ch in order:
        off, nb = {"o": (WS_WO, 800 * 1024), "1": (WS_W1, 1920 * 1024), "2": (WS_W2, 1920 * 1024)}[ch]
        helper_prefetch(k, 48, 12, off, nb, 1, 4, 5, 35, 36)
        k("s_waitcnt vmcnt(0)")
    k.label("kp_end")
    k("s_endpgm")
    return k.text(16), "kp_kernel", (256, 64, 0)


def main(outpath):
    ks = [gen_k1(), gen_k2(), gen_mlp()]
    if os.environ.get("EMPTY"):
        e = Kern("ke_kernel")
        e("s_endpgm")
        for _ in range(int(os.environ["EMPTY"])):
            pass
        ks.append((e.text(8), "ke_kernel", (256, 64, 0)))
    if os.environ.get("KP"):
        ks.insert(2, gen_kp(os.environ["KP"]))
    hdr = open("cdna_kernels/" + NAME + ".s.ref").read().split("\n")
    head = [l for l in hdr if l.startswith(";") and "@launch" not in l and "Override" not in l and "grid=ceil" not in l]
    s = "\n".join(head) + "\n"
    for (_, name, (g, b, lds)) in ks:
        for _rep in range(2 if name[:2] in os.environ.get("DUP", "") else 1):
            s += f"; @launch kernel={name} grid=({g},1,1) block=({b},1,1) lds={lds}\n"
    s += '.amdgcn_target "amdgcn-amd-amdhsa--gfx950"\n.text\n'
    for ((txt, kd), _, _) in ks:
        s += txt
    s += "text_end:\n"
    s += '.section .rodata,"a"\n'
    for ((txt, kd), _, _) in ks:
        s += kd
    open(outpath, "w").write(s)


if __name__ == "__main__":
    main(sys.argv[1] if len(sys.argv) > 1 else "cdna_kernels/" + NAME + ".s")
```

```python
import sys
sys.path.insert(0, "work")
from common import *

WS_WO = 0x1000000
WS_W1 = 0x1100000
WS_W2 = 0x1300000
WS_EX = 0x1500000
WS_ST = 0x1520000
WS_XG = 0x1600000
WS_CNT = 0x1900000
WS_SIZE = 0x1A00000
PD16 = int(os.environ.get("PD16", "2"))
PD32 = int(os.environ.get("PD32", "3"))
NOPF = int(os.environ.get("NOPF", "0"))
PFORDER = os.environ.get("PFORDER", "OXo1")
SC = os.environ.get("SC", "sc1")
SC4 = os.environ.get("SC4", "")
MAP4 = int(os.environ.get("MAP4", "1"))
MAP5 = int(os.environ.get("MAP5", "0"))
ROT = int(os.environ.get("ROT", "0"))
PFT = int(os.environ.get("PFT", "14"))


def gemm_pipeline(k, n, D, nreads, read_fn, mfma_fn, sync_at, side):
    nbuf = D + 1
    for i in range(min(D, n)):
        if i in sync_at:
            sync_at[i]()
        read_fn(i, i % nbuf)
    for i in range(n):
        cnt = sum(nreads(j) for j in range(i + 1, min(i + D, n)))
        assert cnt <= 15
        k(f"s_waitcnt lgkmcnt({cnt})")
        mfma_fn(i, i % nbuf)
        j = i + D
        if j < n:
            if j in sync_at:
                sync_at[j]()
            read_fn(j, j % nbuf)
        side(i)


def sdiv(k, q, r, x, d, tmp):
    m = (2 ** 32 + d - 1) // d
    k(f"s_mul_hi_u32 s{q}, s{x}, {hex(m)}")
    k(f"s_mul_i32 s{tmp}, s{q}, {d}")
    k(f"s_sub_u32 s{r}, s{x}, s{tmp}")


def decode_tb_cb(k, s_tb, s_cb, s_t, s_t2):
    k(f"s_and_b32 s{s_t}, s2, 7")
    k(f"s_lshr_b32 s{s_t2}, s2, 3")
    k(f"s_lshl_b32 s{s_tb}, s{s_t}, 2")
    k(f"s_and_b32 s{s_t}, s{s_t2}, 3")
    k(f"s_add_u32 s{s_tb}, s{s_tb}, s{s_t}")
    k(f"s_lshr_b32 s{s_cb}, s{s_t2}, 2")


def interleave(k, chains):
    pos = [0] * len(chains)
    last = [-100] * len(chains)
    n = 0
    while any(p < len(c) for p, c in zip(pos, chains)):
        did = False
        for i, c in enumerate(chains):
            if pos[i] < len(c) and n - last[i] - 1 >= c[pos[i]][1]:
                k(c[pos[i]][0])
                last[i] = n
                pos[i] += 1
                n += 1
                did = True
        if not did:
            k("s_nop 0")
            n += 1


def helper_prefetch(k, srd, base_pair, off, nbytes, v_l, v_pf, v_dum, s_t, s_t2):
    k.srd(srd, base_pair, nbytes, off)
    k(f"s_lshr_b32 s{s_t}, s2, 3")
    k(f"s_lshl_b32 s{s_t}, s{s_t}, 13")
    k(f"v_lshlrev_b32 v{v_pf}, 7, v{v_l}")
    per = 32 * 64 * 128
    for i in range((nbytes + per - 1) // per):
        k(f"s_add_u32 s{s_t2}, s{s_t}, {i*per}")
        k(f"buffer_load_dword v{v_dum}, v{v_pf}, s[{srd}:{srd+3}], s{s_t2} offen")


class Sprinkle:
    def __init__(self):
        self.q = []

    def add(self, f):
        self.q.append(f)

    def emit(self, n):
        for _ in range(n):
            if self.q:
                self.q.pop(0)()


def frag_src(k, s_src, s_f, NT, S, KS, ld, TN, MT, s_a, s_b, s_c, s_d, s_t):
    sdiv(k, s_b, s_c, s_f, NT, s_t)
    sdiv(k, s_a, s_d, s_b, S, s_t)
    k(f"s_mul_i32 s{s_src}, s{s_d}, {KS*ld}")
    k(f"s_mul_i32 s{s_t}, s{s_a}, {TN*2}")
    k(f"s_add_u32 s{s_src}, s{s_src}, s{s_t}")
    k(f"s_mul_i32 s{s_t}, s{s_c}, {MT*2}")
    k(f"s_add_u32 s{s_src}, s{s_src}, s{s_t}")


def gen_k1():
    k = Kern("k1_kernel")
    R, RXL, PD = 4, 3, 2
    LDS_X = R * 20480
    LDS_KV = LDS_X + RXL * 16384
    LDS_SCR = LDS_KV + 25600
    sX, sW, sKV, sWS = 16, 20, 24, 28
    s_tb, s_cb, s_w, s_t, s_t2, s_off, s_l = 32, 33, 34, 35, 36, 37, 41
    s_ones = 38
    s_qoff = 42
    s_xl = 43
    s_rot = 44
    v_l, v_idx, v_g = 1, 2, 3
    v_w = 5
    v_a = 10
    v_akv = 11
    t0, t1, t2, t3 = 12, 13, 14, 15
    v_sum, v_sq = 16, 18
    v_ones = 20
    XB = 24
    D = 5
    AF = 104
    VAR, VKR = 132, 136
    QAD = 140
    VXS, VXR = 145, 149
    ACC = 160
    CS = 188
    E = 216

    k("s_getpc_b64 s[48:49]")
    k.label("k1_pc")
    k("s_cmp_ge_u32 s2, 256")
    k("s_cbranch_scc1 k1_end")
    k(f"s_load_dwordx4 s[4:7], s[0:1], {KA['x']}")
    k(f"s_load_dwordx4 s[8:11], s[0:1], {KA['wk']}")
    k(f"s_load_dwordx2 s[12:13], s[0:1], {KA['ws']}")
    k("s_sub_u32 s48, s48, k1_pc-k1_kernel")
    k("s_subb_u32 s49, s49, 0")
    k("s_mov_b32 s50, text_end-k1_kernel")
    k("s_mov_b32 s51, 0x00020000")
    k(f"s_lshr_b32 s{s_t}, s2, 3")
    k(f"s_lshl_b32 s{s_t}, s{s_t}, 15")
    k(f"v_lshlrev_b32 v{t0}, 7, v0")
    k(f"buffer_load_dword v{E}, v{t0}, s[48:51], s{s_t} offen")
    k.stamp_init()
    wave_lane_setup(k, s_w, v_l)
    k(f"v_and_b32 v{v_idx}, 15, v{v_l}")
    k(f"v_lshrrev_b32 v{v_g}, 4, v{v_l}")
    decode_tb_cb(k, s_tb, s_cb, s_t, s_t2)
    k(f"s_lshl_b32 s{s_t}, s{s_tb}, 6")
    k(f"s_lshl_b32 s{s_t2}, s{s_w}, 4")
    k(f"s_add_u32 s{s_t}, s{s_t}, s{s_t2}")
    for j in range(4):
        k(f"v_add_u32 v{t0}, {4*j}, v{v_g}")
        k(f"v_xor_b32 v{t1}, v{v_idx}, v{t0}")
        k(f"v_add_u32 v{t0}, s{s_t}, v{t0}")
        k(f"v_mul_u32_u24 v{t0}, 1280, v{t0}")
        k(f"v_lshl_add_u32 v{VXS+j}, v{t1}, 4, v{t0}")
    k(f"s_lshl_b32 s{s_xl}, s{s_w}, 12")
    k(f"s_add_u32 s{s_xl}, s{s_xl}, {LDS_X}")
    k(f"s_mul_i32 s{s_off}, s{s_cb}, 160")
    k(f"s_mul_i32 s{s_t}, s{s_w}, {32*1280}")
    k(f"s_add_u32 s{s_off}, s{s_off}, s{s_t}")
    k(f"s_mul_i32 s{s_l}, s{s_w}, 5120")
    dma_offsets_160(k, v_w, v_l, 1280, t0, t1, t2)
    k("s_waitcnt lgkmcnt(0)")
    k.srd(sX, 4, 2048 * 1280)
    k.srd(sW, 6, 640 * 1280)

    ROT1 = int(os.environ.get("ROT1", "1"))
    s_r1, s_cx1, s_cw1, s_u1 = 56, 57, 58, 59

    def chunk_loads(c):
        fs = []
        for i in range(4):
            def fx(i=i, c=c):
                if i == 0:
                    k(f"s_sub_u32 s{s_cx1}, s{s_r1}, {5 - c}")
                    k(f"s_cselect_b32 s{s_u1}, 5, 0")
                    k(f"s_add_u32 s{s_cx1}, s{s_cx1}, s{s_u1}")
                    k(f"s_mul_i32 s{s_cw1}, s{s_cx1}, {128*1280}")
                    k(f"s_add_u32 s{s_cw1}, s{s_cw1}, s{s_off}")
                    k(f"s_lshl_b32 s{s_cx1}, s{s_cx1}, 8")
                k(f"s_add_u32 m0, s{s_xl}, {(c%RXL)*16384 + i*1024}")
                k.nop(1)
                k.vmissue(f"buffer_load_dwordx4 v{VXS+i}, s[{sX}:{sX+3}], s{s_cx1} offen lds", f"c{c}")
            fs.append(fx)
        for i in range(5):
            def f(i=i, c=c):
                k(f"s_add_u32 m0, s{s_l}, {(c%R)*20480 + i*1024}")
                k.nop(1)
                k.vmissue(f"buffer_load_dwordx4 v{v_w+i}, s[{sW}:{sW+3}], s{s_cw1} offen lds", f"c{c}")
            fs.append(f)
        return fs
    if ROT1:
        k(f"s_and_b32 s{s_t}, s{s_tb}, 3")
        k(f"s_lshl_b32 s{s_t2}, s{s_cb}, 1")
        k(f"s_add_u32 s{s_t}, s{s_t}, s{s_t2}")
        sdiv(k, s_cx1, s_r1, s_t, 5, s_t2)
    else:
        k(f"s_mov_b32 s{s_r1}, 0")
    for f in chunk_loads(0):
        f()
    k.srd(sWS, 12, WS_SIZE)
    k.srd(52, 12, 4096, WS_CNT)
    k(f"s_lshl_b32 s{s_t}, s2, 7")
    k(f"v_mov_b32 v{t0}, 0")
    k.vmissue(f"buffer_store_dword v{t0}, v{t0}, s[52:55], s{s_t} offen", "c1")
    k(f"s_cmp_eq_u32 s{s_cb}, 0")
    k(f"s_cselect_b32 s{sKV}, s8, s10")
    k(f"s_cselect_b32 s{sKV+1}, s9, s11")
    k(f"s_mov_b32 s{sKV+2}, 25600")
    k(f"s_mov_b32 s{sKV+3}, 0x00020000")
    k(f"s_cmp_ge_u32 s{s_cb}, 2")
    k(f"s_cbranch_scc1 k1_nokvload")
    k(f"v_lshlrev_b32 v{t0}, 4, v{v_l}")
    for i in range(7):
        k(f"s_add_u32 s{s_t}, s{s_w}, {4*i}")
        k(f"s_min_u32 s{s_t}, s{s_t}, 24")
        k(f"s_lshl_b32 s{s_t}, s{s_t}, 10")
        k(f"s_add_u32 m0, s{s_t}, {LDS_KV}")
        k(f"s_mul_i32 s{s_t2}, s{s_r1}, 5120")
        k(f"s_add_u32 s{s_t}, s{s_t}, s{s_t2}")
        k(f"s_sub_u32 s{s_t2}, s{s_t}, 25600")
        k(f"s_cselect_b32 s{s_t}, s{s_t}, s{s_t2}")
        k(f"buffer_load_dwordx4 v{t0}, s[{sKV}:{sKV+3}], s{s_t} offen lds")
    k.label("k1_nokvload")
    K1PF = int(os.environ.get("K1PF", "0"))

    def sparse_pf(first_chunk):
        r0 = 128 * first_chunk
        k(f"s_lshr_b32 s{s_t}, s2, 3")
        k(f"s_lshl_b32 s{s_t}, s{s_t}, 2")
        k(f"s_add_u32 s{s_t}, s{s_t}, s{s_w}")
        k(f"s_lshl_b32 s{s_t}, s{s_t}, 13")
        k(f"s_add_u32 s{s_t}, s{s_t}, {r0*1280}")
        k(f"v_lshlrev_b32 v{t0}, 7, v{v_l}")
        k.vmissue(f"buffer_load_dword v{E+1}, v{t0}, s[{sW}:{sW+3}], s{s_t} offen", "c2")
        k(f"s_lshl_b32 s{s_t}, s{s_tb}, 6")
        k(f"s_lshl_b32 s{s_t2}, s{s_cb}, 3")
        k(f"s_add_u32 s{s_t}, s{s_t}, s{s_t2}")
        k(f"s_lshl_b32 s{s_t2}, s{s_w}, 1")
        k(f"s_add_u32 s{s_t}, s{s_t}, s{s_t2}")
        k(f"s_mul_i32 s{s_t}, s{s_t}, 1280")
        k(f"v_mul_u32_u24 v{t0}, 1280, v{v_g}")
        k(f"v_lshl_add_u32 v{t0}, v{v_idx}, 7, v{t0}")
        k(f"v_cmp_gt_u32 vcc, 10, v{v_idx}")
        k(f"v_cmp_gt_u32 s[52:53], 32, v{v_l}")
        k(f"v_mov_b32 v{t1}, 0x7fffff00")
        k("s_and_b64 vcc, vcc, s[52:53]")
        k.nop(1)
        k(f"v_cndmask_b32 v{t0}, v{t1}, v{t0}, vcc")
        k.vmissue(f"buffer_load_dword v{E+2}, v{t0}, s[{sX}:{sX+3}], s{s_t} offen", "c2")
    if K1PF == 2:
        sparse_pf(1)
    for f in chunk_loads(1):
        f()
    if K1PF == 1:
        sparse_pf(2)
    k(f"v_lshrrev_b32 v{t0}, 2, v{v_idx}")
    k(f"v_lshl_add_u32 v{t1}, v{v_g}, 2, v{t0}")
    k(f"v_mul_u32_u24 v{v_a}, 160, v{t1}")
    k(f"v_and_b32 v{t2}, 3, v{v_idx}")
    k(f"v_lshl_add_u32 v{v_a}, v{t2}, 3, v{v_a}")
    k(f"v_lshl_add_u32 v{t1}, v{v_g}, 3, v{t0}")
    k(f"v_mul_u32_u24 v{v_akv}, 40, v{t1}")
    k(f"v_lshl_add_u32 v{v_akv}, v{t2}, 3, v{v_akv}")
    k(f"v_add_u32 v{v_akv}, {LDS_KV}, v{v_akv}")
    k(f"v_lshlrev_b32 v{t3}, 8, v{v_idx}")
    k(f"v_add_u32 v{t3}, s{s_xl}, v{t3}")
    for i in range(4):
        k(f"s_add_u32 s{s_t}, s{s_w}, {i}")
        k(f"s_and_b32 s{s_rot}, s{s_t}, 3")
        k(f"s_mul_i32 s{s_t}, s{s_rot}, 5120")
        k(f"v_add_u32 v{VAR+i}, s{s_t}, v{v_a}")
        k(f"s_mul_i32 s{s_t}, s{s_rot}, 1280")
        k(f"v_add_u32 v{VKR+i}, s{s_t}, v{v_akv}")
        k(f"s_lshl_b32 s{s_t}, s{s_rot}, 2")
        k(f"v_add_u32 v{t0}, s{s_t}, v{v_g}")
        k(f"v_xor_b32 v{t0}, v{t0}, v{v_idx}")
        k(f"v_lshl_add_u32 v{VXR+i}, v{t0}, 4, v{t3}")
    k(f"s_and_b32 s{s_t}, s{s_w}, 1")
    k(f"s_lshl_b32 s{s_t}, s{s_t}, 4")
    k(f"v_add_u32 v{t3}, s{s_t}, v{v_idx}")
    for t in range(5):
        k(f"v_add_u32 v{t0}, {4*t}, v{v_g}")
        k(f"v_mul_u32_u24 v{t1}, 52, v{t0}")
        k(f"v_lshrrev_b32 v{t1}, 8, v{t1}")
        k(f"v_mul_u32_u24 v{t2}, 5, v{t1}")
        k(f"v_sub_u32 v{t0}, v{t0}, v{t2}")
        k(f"v_lshrrev_b32 v{t2}, 1, v{t0}")
        k(f"v_lshl_add_u32 v{t2}, v{t2}, 5, v{t3}")
        k(f"v_lshlrev_b32 v{t2}, 4, v{t2}")
        k(f"v_and_b32 v{QAD+t}, 1, v{t0}")
        k(f"v_lshl_add_u32 v{t2}, v{QAD+t}, 3, v{t2}")
        k(f"v_cmp_eq_u32 vcc, 4, v{t0}")
        k(f"v_lshlrev_b32 v{QAD+t}, 3, v{t3}")
        k(f"v_add_u32 v{QAD+t}, 1024, v{QAD+t}")
        k(f"v_cndmask_b32 v{t2}, v{t2}, v{QAD+t}, vcc")
        k(f"v_mul_u32_u24 v{t1}, {64*1280}, v{t1}")
        k(f"v_add_u32 v{QAD+t}, v{t1}, v{t2}")
    k(f"s_lshl_b32 s{s_qoff}, s{s_cb}, 8")
    k(f"s_lshl_b32 s{s_t}, s{s_tb}, 1")
    k(f"s_add_u32 s{s_qoff}, s{s_qoff}, s{s_t}")
    k(f"s_lshr_b32 s{s_t}, s{s_w}, 1")
    k(f"s_add_u32 s{s_qoff}, s{s_qoff}, s{s_t}")
    k(f"s_mul_i32 s{s_qoff}, s{s_qoff}, 1280")
    k(f"s_add_u32 s{s_qoff}, s{s_qoff}, {WS_Q}")
    k(f"s_mov_b32 s{s_ones}, 0x3f803f80")
    for i in range(4):
        k(f"v_mov_b32 v{v_ones+i}, s{s_ones}")
    for i in range(4):
        k(f"v_mov_b32 v{v_sum+i}, 0")
    for i in range(56):
        k(f"v_mov_b32 v{ACC+i}, 0")
    vm_snapshot = list(k.vm)
    k.stamp()

    def mainloop(mode):
        k.vm = list(vm_snapshot)
        nt = 5 if mode == 'q' else 7
        n = 20 * nt
        spr = Sprinkle()

        def read_fn(i, buf):
            s, t = divmod(i, nt)
            c, ii = divmod(s, 4)
            for j in range(2):
                if t < 5:
                    off = (c % R) * 20480 + j * 2560 + t * 32
                    base = VAR + ii
                else:
                    off = c * 5120 + j * 160 + (t - 5) * 32
                    base = VKR + ii
                k(f"ds_read_b64_tr_b16 {vr(AF+buf*4+2*j,2)}, v{base} offset:{off}")

        def mfma_fn(i, buf):
            s, t = divmod(i, nt)
            c, ii = divmod(s, 4)
            if ii == 0 and t == 0:
                for r in range(16):
                    X = XB + 16 * (c & 1) + r
                    k(f"v_dot2_f32_bf16 v{v_sum+(r&1)}, v{X}, v{v_ones}, v{v_sum+(r&1)}")
                    k(f"v_dot2_f32_bf16 v{v_sq+(r&1)}, v{X}, v{X}, v{v_sq+(r&1)}")
            X = XB + 16 * (c & 1) + 4 * ii
            A = AF + 4 * buf
            swap = (mode == 'v' and t >= 5)
            a, b = (vr(X, 4), vr(A, 4)) if swap else (vr(A, 4), vr(X, 4))
            k(f"v_mfma_f32_16x16x32_bf16 {vr(ACC+4*t,4)}, {a}, {b}, {vr(ACC+4*t,4)}")
            if ii == 0:
                k(f"v_mfma_f32_16x16x32_bf16 {vr(CS+4*t,4)}, {vr(v_ones,4)}, {vr(A,4)}, {vr(CS+4*t,4)}")

        def mk_sync(c):
            def f():
                k.vmwait(f"c{c}")
                for i in range(4):
                    k(f"ds_read_b128 {vr(XB+16*(c&1)+4*i,4)}, v{VXR+i} offset:{(c%RXL)*16384}")
                k("s_barrier")
                if mode == 'q' and c in (0, 1, 4):
                    k.stamp()
            return f
        sync_at = {4 * c * nt: mk_sync(c) for c in range(5)}

        def side(i):
            c, r = divmod(i, 4 * nt)
            if r == 0 and c + PD < 5:
                for g in chunk_loads(c + PD):
                    spr.add(g)
            spr.emit(1)
        gemm_pipeline(k, n, D, lambda j: 2, read_fn, mfma_fn, sync_at, side)
        assert not spr.q
    k(f"s_cmp_eq_u32 s{s_cb}, 0")
    k("s_cbranch_scc1 k1_loop_k")
    k(f"s_cmp_eq_u32 s{s_cb}, 1")
    k("s_cbranch_scc1 k1_loop_v")
    mainloop('q')
    k.label("k1_epi")
    k.stamp()
    k.vm = []
    v_mean, v_rstd = E, E + 1
    BX = E + 4
    LDS_EX = LDS_X
    k(f"s_lshl_b32 s{s_t}, s{s_w}, 8")
    k(f"s_add_u32 s{s_t}, s{s_t}, {LDS_EX}")
    k(f"v_lshlrev_b32 v{t3}, 4, v{v_idx}")
    k(f"v_add_u32 v{t3}, s{s_t}, v{t3}")
    k(f"v_lshlrev_b32 v{t2}, 4, v{v_l}")
    k(f"v_add_u32 v{t2}, {LDS_EX}, v{t2}")
    for t in range(7):
        c = CS + 4 * t
        k(f"v_and_b32 v{c+1}, 0xffff0000, v{c}")
        k(f"v_sub_f32 v{c}, v{c}, v{c+1}")
        k(f"v_and_b32 v{c+2}, 0xffff0000, v{c}")
        k(f"v_sub_f32 v{c+3}, v{c}, v{c+2}")
        k(f"v_lshrrev_b32 v{c}, 16, v{c+1}")
        k(f"v_or_b32 v{c}, v{c}, v{c+2}")
        k(f"v_lshrrev_b32 v{c+1}, 16, v{c+3}")
        k(f"v_mov_b32 v{c+2}, 0")
        k(f"v_mov_b32 v{c+3}, 0")
        k(f"ds_write_b128 v{t3}, {vr(c,4)} offset:{t*1024}")
    k(f"v_add_f32 v{v_sum}, v{v_sum}, v{v_sum+1}")
    k(f"v_add_f32 v{v_sq}, v{v_sq}, v{v_sq+1}")
    k("s_waitcnt lgkmcnt(0)")
    k("s_barrier")
    for t in range(7):
        k(f"ds_read_b128 {vr(XB+4*t,4)}, v{t2} offset:{t*1024}")
    chs = []
    for v, tt in ((v_sum, t0), (v_sq, t1)):
        chs.append([(f"v_mov_b32 v{tt}, v{v}", 0), (f"v_permlane16_swap_b32 v{v}, v{tt}", 2), (f"v_add_f32 v{v}, v{v}, v{tt}", 1),
                    (f"v_mov_b32 v{tt}, v{v}", 0), (f"v_permlane32_swap_b32 v{v}, v{tt}", 2), (f"v_add_f32 v{v}, v{v}, v{tt}", 1)])
    interleave(k, chs)
    ln_stats(k, v_sum, v_sq, v_mean, v_rstd, t0, t1)
    k(f"v_xor_b32 v{t0}, 0x80000000, v{v_mean}")
    k(f"v_lshrrev_b32 v{BX}, 16, v{t0}")
    k(f"v_or_b32 v{BX}, v{BX}, v{t0}")
    k(f"v_mov_b32 v{BX+1}, v{BX}")
    k(f"v_mov_b32 v{BX+2}, 0")
    k(f"v_mov_b32 v{BX+3}, 0")
    v_rs = E + 2
    k(f"v_mul_f32 v{v_rs}, {hex(f2u(QSCALE))}, v{v_rstd}")
    k(f"v_mov_b32 v{v_rs+1}, v{v_rs}")
    k("s_waitcnt lgkmcnt(0)")
    for t in range(5):
        k(f"v_mfma_f32_16x16x32_bf16 {vr(ACC+4*t,4)}, {vr(XB+4*t,4)}, {vr(BX,4)}, {vr(ACC+4*t,4)}")
    k.nop(4)
    O_ = E + 8
    for t in range(5):
        a = ACC + 4 * t
        k(f"v_pk_mul_f32 {vr(a,2)}, {vr(a,2)}, {vr(v_rs,2)}")
        k(f"v_pk_mul_f32 {vr(a+2,2)}, {vr(a+2,2)}, {vr(v_rs,2)}")
        k(f"v_cvt_pk_bf16_f32 v{O_+2*t}, v{a}, v{a+1}")
        k(f"v_cvt_pk_bf16_f32 v{O_+1+2*t}, v{a+2}, v{a+3}")
        k(f"buffer_store_dwordx2 {vr(O_+2*t,2)}, v{QAD+t}, s[{sWS}:{sWS+3}], s{s_qoff} offen")
    k.stamp_flush(s_w)
    k(f"s_cmp_lt_u32 s{s_cb}, 2")
    k("s_cbranch_scc1 k1_kv_epi")
    k.label("k1_end")
    k("s_endpgm")

    k.label("k1_kv_epi")
    s_base, s_u = 39, 40
    k(f"s_lshl_b32 s{s_t}, s{s_tb}, 1")
    k(f"s_lshr_b32 s{s_t2}, s{s_w}, 1")
    k(f"s_add_u32 s{s_t}, s{s_t}, s{s_t2}")
    k(f"s_mul_i32 s{s_base}, s{s_t}, 2560")
    k(f"s_add_u32 s{s_base}, s{s_base}, {WS_KV}")
    k(f"s_and_b32 s{s_u}, s{s_w}, 1")
    k(f"s_cmp_eq_u32 s{s_cb}, 1")
    k("s_cbranch_scc1 k1_epi_v")
    for t in range(5, 7):
        k(f"v_mfma_f32_16x16x32_bf16 {vr(ACC+4*t,4)}, {vr(XB+4*t,4)}, {vr(BX,4)}, {vr(ACC+4*t,4)}")
    P = E + 20
    k(f"v_cmp_eq_u32 vcc, 0, v{v_g}")
    k(f"s_lshl_b32 s{s_t}, s{s_u}, 4")
    k(f"v_add_u32 v{t1}, s{s_t}, v{v_idx}")
    k(f"v_lshrrev_b32 v{t2}, 1, v{v_g}")
    k(f"v_lshl_add_u32 v{t2}, v{t2}, 5, v{t1}")
    k(f"v_lshlrev_b32 v{t2}, 4, v{t2}")
    k(f"v_and_b32 v{t3}, 1, v{v_g}")
    k(f"v_lshl_add_u32 v{t2}, v{t3}, 3, v{t2}")
    k(f"v_lshlrev_b32 v{t0}, 3, v{t1}")
    k(f"v_add_u32 v{t0}, 2304, v{t0}")
    k(f"v_mov_b32 v{t1}, 0x7ffffff8")
    k(f"v_cndmask_b32 v{t1}, v{t1}, v{t0}, vcc")
    for r in range(8):
        k(f"v_mul_f32 v{ACC+20+r}, v{ACC+20+r}, v{v_rstd}")
    k(f"v_cvt_pk_bf16_f32 v{P}, v{ACC+20}, v{ACC+21}")
    k(f"v_cvt_pk_bf16_f32 v{P+1}, v{ACC+22}, v{ACC+23}")
    k(f"v_cvt_pk_bf16_f32 v{P+2}, v{ACC+24}, v{ACC+25}")
    k(f"v_cvt_pk_bf16_f32 v{P+3}, v{ACC+26}, v{ACC+27}")
    k(f"v_cndmask_b32 v{P+2}, 0, v{P+2}, vcc")
    k(f"v_cndmask_b32 v{P+3}, 0, v{P+3}, vcc")
    k(f"buffer_store_dwordx2 {vr(P,2)}, v{t2}, s[{sWS}:{sWS+3}], s{s_base} offen")
    k(f"buffer_store_dwordx2 {vr(P+2,2)}, v{t1}, s[{sWS}:{sWS+3}], s{s_base} offen")
    k(f"v_mov_b32 v{t3}, 0")
    for i in range(4):
        k(f"v_dot2_f32_bf16 v{t3}, v{P+i}, v{P+i}, v{t3}")
    k.nop(3)
    xsum_rows(k, t3, t0)
    for sh in (8, 4, 2, 1):
        k.nop(2)
        k(f"v_max_f32_dpp v{t3}, v{t3}, v{t3} row_ror:{sh} row_mask:0xf bank_mask:0xf")
    k(f"s_lshl_b32 s{s_t}, s{s_tb}, 2")
    k(f"s_add_u32 s{s_t}, s{s_t}, s{s_w}")
    k(f"s_lshl_b32 s{s_t}, s{s_t}, 2")
    k(f"s_add_u32 s{s_t}, s{s_t}, {WS_KMAX}")
    k(f"v_mov_b32 v{t2}, 0")
    k(f"buffer_store_dword v{t3}, v{t2}, s[{sWS}:{sWS+3}], s{s_t} offen")
    k("s_endpgm")
    k.label("k1_epi_v")
    for t in range(5, 7):
        k(f"v_mfma_f32_16x16x32_bf16 {vr(ACC+4*t,4)}, {vr(BX,4)}, {vr(XB+4*t,4)}, {vr(ACC+4*t,4)}")
    k(f"s_lshl_b32 s{s_t}, s{s_w}, 6")
    k(f"s_add_u32 s{s_t}, s{s_t}, {LDS_SCR}")
    k(f"v_lshlrev_b32 v{t2}, 2, v{v_idx}")
    k(f"v_add_u32 v{t2}, s{s_t}, v{t2}")
    k(f"ds_write_b32 v{t2}, v{v_rstd}")
    k(f"v_lshlrev_b32 v{t2}, 4, v{v_g}")
    k(f"v_add_u32 v{t2}, s{s_t}, v{t2}")
    k("s_waitcnt lgkmcnt(0)")
    R4 = XB + 32
    k(f"ds_read_b128 {vr(R4,4)}, v{t2}")
    k(f"v_and_b32 v{t1}, 1, v{v_g}")
    k(f"s_lshl_b32 s{s_t}, s{s_u}, 1")
    k(f"v_add_u32 v{t1}, s{s_t}, v{t1}")
    k(f"v_mul_u32_u24 v{t1}, 20, v{t1}")
    k(f"v_add_u32 v{t1}, v{t1}, v{v_idx}")
    k(f"v_lshlrev_b32 v{t1}, 4, v{t1}")
    k(f"v_lshrrev_b32 v{t2}, 1, v{v_g}")
    k(f"v_lshl_add_u32 v{t1}, v{t2}, 3, v{t1}")
    k(f"v_cmp_gt_u32 vcc, 4, v{v_idx}")
    k(f"v_mov_b32 v{t2}, 0x7ffffff8")
    k.nop(1)
    k(f"v_cndmask_b32 v{t0}, v{t2}, v{t1}, vcc")
    k("s_waitcnt lgkmcnt(0)")
    for t in range(5, 7):
        for r in range(4):
            a = ACC + 4 * t + r
            k(f"v_mul_f32 v{a}, v{a}, v{R4+r}")
        k(f"v_cvt_pk_bf16_f32 v{P+2*(t-5)}, v{ACC+4*t}, v{ACC+4*t+1}")
        k(f"v_cvt_pk_bf16_f32 v{P+2*(t-5)+1}, v{ACC+4*t+2}, v{ACC+4*t+3}")
    k(f"buffer_store_dwordx2 {vr(P,2)}, v{t1}, s[{sWS}:{sWS+3}], s{s_base} offen offset:1024")
    k(f"buffer_store_dwordx2 {vr(P+2,2)}, v{t0}, s[{sWS}:{sWS+3}], s{s_base} offen offset:{1024+256}")
    k("s_endpgm")

    k.label("k1_loop_k")
    mainloop('k')
    k("s_branch k1_epi")
    k.label("k1_loop_v")
    mainloop('v')
    k("s_branch k1_epi")

    return k.text(248), "k1_kernel", (256, 256, LDS_SCR + 512)


def gen_k2():
    k = Kern("k2_kernel")
    sWS, sKVs = 16, 20
    s_tb, s_hg, s_w, s_t, s_t2, s_kh, s_cnt, s_h, s_dma = 32, 33, 34, 35, 36, 38, 39, 40, 41
    s_vm = 42
    s_lo = 50
    s_a, s_b, s_c, s_d = 54, 55, 56, 57
    v_l, v_q, v_half = 1, 2, 3
    t0, t1, t2, t3 = 4, 5, 6, 7
    v_k1, v_k2, v_v = 8, 9, 10
    v_dma = 11
    v_km = 12
    v_oa = 13
    QA1, QA2, QB1, QB2 = 16, 20, 24, 28
    SA, SB = 32, 48
    PA, PB = 64, 72
    OA, OB = 80, 96
    KF = 112
    VF = 128
    MX = 144
    NV = 152

    k("s_cmp_ge_u32 s2, 256")
    k("s_cbranch_scc1 k2_end")
    k.stamp_init()
    k(f"s_load_dwordx2 s[12:13], s[0:1], {KA['ws']}")
    k(f"s_load_dwordx4 s[4:7], s[0:1], {KA['w1']}")
    k(f"s_load_dwordx2 s[8:9], s[0:1], {KA['w2']}")
    wave_lane_setup(k, s_w, v_l)
    k(f"v_and_b32 v{v_q}, 31, v{v_l}")
    k(f"v_lshrrev_b32 v{v_half}, 5, v{v_l}")
    k(f"v_lshlrev_b32 v{v_dma}, 4, v{v_l}")
    k(f"s_cmp_ge_u32 s{s_w}, 8")
    k("s_cbranch_scc1 k2_helper")
    decode_tb_cb(k, s_tb, s_hg, s_t, s_t2)
    k(f"s_lshr_b32 s{s_kh}, s{s_w}, 2")
    k(f"s_and_b32 s{s_t}, s{s_w}, 3")
    k(f"s_lshl_b32 s{s_h}, s{s_hg}, 2")
    k(f"s_add_u32 s{s_h}, s{s_h}, s{s_t}")
    k(f"v_lshlrev_b32 v{t0}, 3, v{v_q}")
    k(f"v_lshlrev_b32 v{t2}, 3, v{v_l}")
    k(f"s_mul_i32 s{s_dma}, s{s_kh}, 81920")
    k(f"s_and_b32 s{s_t2}, s{s_w}, 3")
    k(f"s_lshl_b32 s{s_t2}, s{s_t2}, 10")
    k(f"s_add_u32 s{s_dma}, s{s_dma}, s{s_t2}")
    k(f"s_lshl_b32 s{s_t}, s{s_h}, 6")
    k(f"s_lshl_b32 s{s_t2}, s{s_tb}, 1")
    k(f"s_add_u32 s{s_t}, s{s_t}, s{s_t2}")
    k(f"s_mul_i32 s{s_t}, s{s_t}, 1280")
    k(f"s_add_u32 s{s_t}, s{s_t}, {WS_Q}")
    k(f"s_mov_b32 s{s_a}, {WS_KMAX}")
    k("s_waitcnt lgkmcnt(0)")
    k.srd(sWS, 12, WS_SIZE)
    k.srd(sKVs, 12, 163840, WS_KV)

    def dma(i, tag):
        k(f"s_add_u32 m0, s{s_dma}, {i*4096}")
        k(f"s_add_u32 s{s_b}, s{s_dma}, {i*4096}")
        k.vmissue(f"buffer_load_dwordx4 v{v_dma}, s[{sKVs}:{sKVs+3}], s{s_b} offen lds", tag)
    k.vmissue(f"buffer_load_dwordx4 {vr(QA1,4)}, v{v_dma}, s[{sWS}:{sWS+3}], s{s_t} offen", "q")
    k.vmissue(f"buffer_load_dwordx2 {vr(QA2,2)}, v{t0}, s[{sWS}:{sWS+3}], s{s_t} offen offset:1024", "q")
    k.vmissue(f"buffer_load_dwordx4 {vr(QB1,4)}, v{v_dma}, s[{sWS}:{sWS+3}], s{s_t} offen offset:1280", "q")
    k.vmissue(f"buffer_load_dwordx2 {vr(QB2,2)}, v{t0}, s[{sWS}:{sWS+3}], s{s_t} offen offset:2304", "q")
    k.vmissue(f"buffer_load_dwordx2 {vr(MX,2)}, v{t2}, s[{sWS}:{sWS+3}], s{s_a} offen", "q")
    for i in range(2):
        dma(i, "stA")
    STBPOS = int(os.environ.get("STBPOS", "2"))
    if STBPOS == 0:
        for i in range(2, 8):
            dma(i, "stB")
    k(f"s_mov_b32 s{s_vm}, 0x000fffff")
    k(f"s_mov_b32 s{s_vm+1}, 0x000fffff")
    k(f"s_mov_b32 s{s_lo}, -1")
    k(f"s_mov_b32 s{s_lo+1}, 0")
    s_fl = 37
    k(f"s_lshl_b32 s{s_fl}, s{s_w}, 2")
    k(f"s_mul_i32 s{s_t}, s{s_kh}, 81920")
    k(f"v_add_u32 v{v_k1}, s{s_t}, v{v_dma}")
    k(f"v_add_u32 v{v_k2}, s{s_t}, v{t0}")
    k(f"v_mul_u32_u24 v{v_v}, 20, v{v_half}")
    k(f"v_add_u32 v{v_v}, v{v_v}, v{v_q}")
    k(f"v_lshlrev_b32 v{v_v}, 4, v{v_v}")
    k(f"v_add_u32 v{v_v}, s{s_t}, v{v_v}")
    for b in range(2):
        k(f"v_mov_b32 v{KF+8*b+4}, 0x3f803f80")
        k(f"v_mov_b32 v{KF+8*b+5}, 0x00003f80")
    k(f"v_and_b32 v{t2}, 27, v{v_q}")
    k(f"v_cmp_eq_u32 vcc, 24, v{t2}")
    k(f"v_mov_b32 v{t3}, 0x3f803f80")
    k.nop(1)
    k(f"v_cndmask_b32 v{t3}, 0, v{t3}, vcc")
    for i in range(16):
        k(f"v_mov_b32 v{VF+i}, v{t3}")
    for i in range(32):
        k(f"v_mov_b32 v{OA+i}, 0")
    for i in range(8):
        k(f"v_mov_b32 v{PB+i}, 0")
    mA, mB = MX + 4, MX + 5
    k(f"v_mov_b32 v{mA}, 0")
    k(f"v_mov_b32 v{mB}, 0")
    k(f"v_cmp_eq_u32 vcc, 0, v{v_half}")
    k.vmwait("q")
    if STBPOS == 1:
        for i in range(2, 8):
            dma(i, "stB")
    for Q2 in (QA2, QB2):
        k(f"v_cndmask_b32 v{Q2}, 0, v{Q2}, vcc")
        k(f"v_cndmask_b32 v{Q2+1}, 0, v{Q2+1}, vcc")
    chK = [(f"v_max_f32 v{v_km}, v{MX}, v{MX+1}", 0)]
    for sh in (8, 4, 2, 1):
        chK.append((f"v_max_f32_dpp v{v_km}, v{v_km}, v{v_km} row_ror:{sh} row_mask:0xf bank_mask:0xf", 2))
    chK += [(f"v_mov_b32 v{t0}, v{v_km}", 0), (f"v_permlane16_swap_b32 v{v_km}, v{t0}", 2), (f"v_max_f32 v{v_km}, v{v_km}, v{t0}", 1),
            (f"v_mov_b32 v{t0}, v{v_km}", 0), (f"v_permlane32_swap_b32 v{v_km}, v{t0}", 2), (f"v_max_f32 v{v_km}, v{v_km}, v{t0}", 1)]
    chs = [chK]
    for (Q1, Q2, m, tt) in ((QA1, QA2, mA, t1), (QB1, QB2, mB, t2)):
        c = [(f"v_dot2_f32_bf16 v{m}, v{r}, v{r}, v{m}", 0) for r in (Q1, Q1 + 1, Q1 + 2, Q1 + 3, Q2, Q2 + 1)]
        c += [(f"v_mov_b32 v{tt}, v{m}", 3), (f"v_permlane32_swap_b32 v{m}, v{tt}", 2), (f"v_add_f32 v{m}, v{m}, v{tt}", 1)]
        chs.append(c)
    interleave(k, chs)
    chs = []
    for (Q2, m) in ((QA2, mA), (QB2, mB)):
        chs.append([(f"v_mul_f32 v{m}, v{m}, v{v_km}", 0), (f"v_sqrt_f32 v{m}, v{m}", 0),
                    (f"v_mul_f32 v{m}, {hex(f2u(1.0 + 2**-6))}, v{m}", 1),
                    (f"v_lshrrev_b32 v{m}, 16, v{m}", 0), (f"v_add_u32 v{m}, 0x8001, v{m}", 0),
                    (f"v_cndmask_b32 v{Q2}, v{m}, v{Q2}, vcc", 0)])
    interleave(k, chs)

    def split_m(Q2, m):
        k(f"v_sub_f32 v{t0}, 0, v{m}")
        k(f"v_and_b32 v{t1}, 0xffff0000, v{t0}")
        k(f"v_sub_f32 v{t0}, v{t0}, v{t1}")
        k(f"v_and_b32 v{t2}, 0xffff0000, v{t0}")
        k(f"v_sub_f32 v{t0}, v{t0}, v{t2}")
        k(f"v_lshrrev_b32 v{t1}, 16, v{t1}")
        k(f"v_or_b32 v{t1}, v{t1}, v{t2}")
        k(f"v_lshrrev_b32 v{t0}, 16, v{t0}")
        k(f"v_cndmask_b32 v{Q2}, v{t1}, v{Q2}, vcc")
        k(f"v_cndmask_b32 v{Q2+1}, v{t0}, v{Q2+1}, vcc")

    BASE_SW = 24

    def toff(t):
        return (t - BASE_SW if t >= BASE_SW else t) * 2560
    adv = {"k": False, "v": False}

    def rdK(t, keep=False):
        if t > 31 or ("nolds" in K2VAR and t > 1):
            return
        if t >= BASE_SW and not adv["k"]:
            adv["k"] = True
            k(f"v_add_u32 v{v_k1}, {BASE_SW*2560}, v{v_k1}")
            k(f"v_add_u32 v{v_k2}, {BASE_SW*2560}, v{v_k2}")
        buf = t & 1
        k(f"ds_read_b128 {vr(KF+8*buf,4)}, v{v_k1} offset:{toff(t)}")
        k(f"s_mov_b64 exec, s[{s_lo}:{s_lo+1}]")
        k(f"ds_read_b64 {vr(KF+8*buf+4,2)}, v{v_k2} offset:{toff(t)+2304}")
        if not keep:
            k("s_mov_b64 exec, -1")

    def rdV(t):
        if t > 31 or ("nolds" in K2VAR and t > 1):
            return
        if t >= BASE_SW and not adv["v"]:
            adv["v"] = True
            k(f"v_add_u32 v{v_v}, {BASE_SW*2560}, v{v_v}")
        buf = t & 1
        if "noexec" not in K2VAR: k(f"s_mov_b64 exec, s[{s_vm}:{s_vm+1}]")
        k(f"ds_read_b128 {vr(VF+8*buf,4)}, v{v_v} offset:{toff(t)+1024}")
        k(f"ds_read_b128 {vr(VF+8*buf+4,4)}, v{v_v} offset:{toff(t)+1024+640}")
        if "noexec" not in K2VAR: k("s_mov_b64 exec, -1")

    def qk(S, Q1, Q2, buf):
        return [f"v_mfma_f32_32x32x16_bf16 {vr(S,16)}, {vr(KF+8*buf,4)}, {vr(Q1,4)}, 0",
                f"v_mfma_f32_32x32x8_bf16 {vr(S,16)}, {vr(KF+8*buf+4,2)}, {vr(Q2,2)}, {vr(S,16)}"]

    def pv(O, P, buf):
        return [f"v_mfma_f32_32x32x16_bf16 {vr(O,16)}, {vr(VF+8*buf,4)}, {vr(P,4)}, {vr(O,16)}",
                f"v_mfma_f32_32x32x16_bf16 {vr(O,16)}, {vr(VF+8*buf+4,4)}, {vr(P+4,4)}, {vr(O,16)}"]

    def phase(S, P, mf, pre=None):
        for gidx in range(4):
            if pre and gidx == 0:
                pre()
            if mf[gidx] and "nomfma" not in K2VAR and not ("nopv" in K2VAR and gidx >= 2) and not ("noqk2" in K2VAR and gidx == 1):
                k(mf[gidx])
            elif mf[gidx] and "pad" in K2VAR:
                k("s_nop 1")
            for i in range(4):
                r = S + 4 * gidx + i
                if "noexp" in K2VAR:
                    k(f"s_nop 1")
                else:
                    k(f"v_exp_f32 v{r}, v{r}")
            if gidx > 0:
                g0 = gidx - 1
                k(f"v_cvt_pk_bf16_f32 v{P+2*g0}, v{S+4*g0}, v{S+4*g0+1}")
                k(f"v_cvt_pk_bf16_f32 v{P+2*g0+1}, v{S+4*g0+2}, v{S+4*g0+3}")
        k(f"v_cvt_pk_bf16_f32 v{P+6}, v{S+12}, v{S+13}")
        k(f"v_cvt_pk_bf16_f32 v{P+7}, v{S+14}, v{S+15}")

    k.stamp()
    k.vmwait("stA")
    k("s_barrier")
    k.stamp()
    rdK(0)
    rdV(0)
    rdK(1)
    k("s_waitcnt lgkmcnt(4)")
    for m in qk(SA, QA1, QA2, 0):
        k(m)
    if STBPOS == 2:
        for i in range(2, 8):
            dma(i, "stB")
    else:
        k.nop(12)
    for t in range(32):
        b = t & 1
        prio = {0: 3, 1: 2, 2: 3, 7: 2, 9: 1, 10: 0, 11: 3, 25: 2, 29: 1, 31: 0}
        if t in prio:
            k(f"s_setprio {prio[t]}")
        mf = qk(SB, QB1, QB2, b) + pv(OB, PB, b ^ 1)
        phase(SA, PA, mf)

        def pre(t=t):
            k("s_waitcnt lgkmcnt(0)")
            if t == 1:
                k.vmwait("stB")
                k("s_barrier")
                k(f"v_mov_b32 v{t0}, 0")
                k(f"v_mov_b32 v{t1}, s{s_fl}")
                k(f"ds_write_b32 v{t1}, v{t0}")
            if t == 10:
                k("s_barrier")
            rdK(t + 2, keep=(t + 1 != BASE_SW))
            rdV(t + 1)
        mf = (qk(SA, QA1, QA2, b ^ 1) if t < 31 else [None, None]) + pv(OA, PA, b)
        phase(SB, PB, mf, pre=pre)
    k.stamp()
    k.nop(2)
    for m in pv(OB, PB, 1):
        k(m)
    k(f"s_mul_i32 s{s_t}, s{s_kh}, 81920")
    k(f"s_and_b32 s{s_t2}, s{s_w}, 3")
    k(f"s_mul_i32 s{s_t2}, s{s_t2}, 3328")
    k(f"s_add_u32 s{s_t2}, s{s_t2}, 1024")
    k(f"s_add_u32 s{s_a}, s{s_t}, s{s_t2}")
    k(f"s_xor_b32 s{s_t}, s{s_kh}, 1")
    k(f"s_mul_i32 s{s_t}, s{s_t}, 81920")
    k(f"s_add_u32 s{s_b}, s{s_t}, s{s_t2}")
    k(f"v_add_u32 v{t0}, s{s_a}, v{v_dma}")
    k(f"v_add_u32 v{t1}, s{s_b}, v{v_dma}")
    k(f"v_lshlrev_b32 v{t2}, 2, v{v_l}")
    k(f"v_add_u32 v{t3}, s{s_b}, v{t2}")
    k(f"v_add_u32 v{t2}, s{s_a}, v{t2}")
    k(f"s_cmp_eq_u32 s{s_kh}, 0")
    k("s_cbranch_scc1 k2_send0")
    for i in range(3):
        k(f"ds_write_b128 v{t0}, {vr(OA+4*i,4)} offset:{i*1024}")
    k(f"ds_write_b32 v{t2}, v{OA+12} offset:3072")
    k(f"v_mov_b32 v{MX+6}, 1")
    k(f"v_mov_b32 v{MX+7}, s{s_fl}")
    k("s_waitcnt lgkmcnt(0)")
    k(f"ds_write_b32 v{MX+7}, v{MX+6}")
    for i in range(13):
        k(f"v_mov_b32 v{OA+i}, v{OB+i}")
    for i in range(8):
        k(f"v_mov_b32 v{QA1+i}, v{QB1+i}")
    k("s_branch k2_sent")
    k.label("k2_send0")
    k.nop(4)
    for i in range(3):
        k(f"ds_write_b128 v{t0}, {vr(OB+4*i,4)} offset:{i*1024}")
    k(f"ds_write_b32 v{t2}, v{OB+12} offset:3072")
    k(f"v_mov_b32 v{MX+6}, 1")
    k(f"v_mov_b32 v{MX+7}, s{s_fl}")
    k("s_waitcnt lgkmcnt(0)")
    k(f"ds_write_b32 v{MX+7}, v{MX+6}")
    k.label("k2_sent")
    v_a0 = MX
    k(f"s_lshl_b32 s{s_t}, s{s_tb}, 6")
    k(f"s_lshl_b32 s{s_t2}, s{s_kh}, 5")
    k(f"s_add_u32 s{s_t}, s{s_t}, s{s_t2}")
    k(f"v_add_u32 v{v_a0}, s{s_t}, v{v_q}")
    k(f"v_lshrrev_b32 v{v_a0+1}, 4, v{v_a0}")
    k(f"v_mul_u32_u24 v{v_a0+1}, {80*256}, v{v_a0+1}")
    k(f"v_and_b32 v{v_a0}, 15, v{v_a0}")
    k(f"v_lshl_add_u32 v{v_a0+1}, v{v_a0}, 4, v{v_a0+1}")
    k(f"s_mul_i32 s{s_t}, s{s_h}, 5")
    for i, dg in enumerate((0, 2, 4)):
        k(f"v_add_u32 v{v_a0}, s{s_t}, v{v_half}")
        k(f"v_add_u32 v{v_a0}, {dg}, v{v_a0}")
        k(f"v_lshrrev_b32 v{v_a0+2}, 1, v{v_a0}")
        k(f"v_lshl_add_u32 v{v_a0+2}, v{v_a0+2}, 8, v{v_a0+1}")
        k(f"v_and_b32 v{v_a0}, 1, v{v_a0}")
        k(f"v_lshl_add_u32 v{v_oa+i}, v{v_a0}, 3, v{v_a0+2}")
    k(f"v_cmp_eq_u32 vcc, 0, v{v_half}")
    k(f"v_mov_b32 v{v_a0}, 0x7ffffff8")
    k.nop(1)
    k(f"v_cndmask_b32 v{v_oa+2}, v{v_a0}, v{v_oa+2}, vcc")
    k(f"v_xor_b32 v{MX+7}, 16, v{MX+7}")
    k("s_setprio 0")
    k.label("k2_poll")
    k(f"ds_read_b32 v{MX+6}, v{MX+7}")
    k("s_waitcnt lgkmcnt(0)")
    k(f"v_readfirstlane_b32 s{s_t}, v{MX+6}")
    k.nop(1)
    k(f"s_cmp_eq_u32 s{s_t}, 1")
    k("s_cbranch_scc1 k2_polled")
    k("s_sleep 2")
    k("s_branch k2_poll")
    k.label("k2_polled")
    for i in range(3):
        k(f"ds_read_b128 {vr(OB+4*i,4)}, v{t1} offset:{i*1024}")
    k(f"ds_read_b32 v{OB+12}, v{t3} offset:3072")
    k("s_waitcnt lgkmcnt(0)")
    k(f"v_add_f32 v{OA+12}, v{OA+12}, v{OB+12}")
    for i in range(12):
        k(f"v_add_f32 v{OA+i}, v{OA+i}, v{OB+i}")
    k(f"v_cmp_nle_f32 vcc, {hex(f2u(2.0**-64))}, v{OA+12}")
    k(f"s_mov_b64 s[{s_a}:{s_a+1}], vcc")
    k(f"v_cmp_nge_f32 vcc, {hex(f2u(2.0**64))}, v{OA+12}")
    k.nop(2)
    k(f"s_or_b64 vcc, vcc, s[{s_a}:{s_a+1}]")
    if "no" not in K2VAR: k("s_cbranch_vccnz k2_fallback")
    k.label("k2_final")
    k(f"v_rcp_f32 v{t3}, v{OA+12}")
    k.nop(1)
    for i in range(12):
        k(f"v_mul_f32 v{OA+i}, v{OA+i}, v{t3}")
    for i in range(6):
        k(f"v_cvt_pk_bf16_f32 v{PA+i}, v{OA+2*i}, v{OA+2*i+1}")
    k(f"s_mov_b32 s{s_t}, {WS_O}")
    for i in range(3):
        k(f"buffer_store_dwordx2 {vr(PA+2*i,2)}, v{v_oa+i}, s[{sWS}:{sWS+3}], s{s_t} offen")
    k.stamp_flush(s_w)
    k.label("k2_end")
    k("s_endpgm")
    k.label("k2_fallback")
    k(f"v_cmp_eq_u32 vcc, 0, v{v_half}")
    k.nop(2)
    k(f"v_cndmask_b32 v{QA2}, 0, v{QA2}, vcc")
    k(f"v_cndmask_b32 v{QA2+1}, 0, v{QA2+1}, vcc")
    k(f"v_mov_b32 v{mA}, 0xff800000")
    k(f"v_lshlrev_b32 v{v_k2}, 3, v{v_q}")
    k(f"v_mul_u32_u24 v{v_v}, 20, v{v_half}")
    k(f"v_add_u32 v{v_v}, v{v_v}, v{v_q}")
    k(f"v_lshlrev_b32 v{v_v}, 4, v{v_v}")
    k(f"s_mov_b32 s{s_cnt}, 0")
    k.label("k2_fb_max")
    k(f"buffer_load_dwordx4 {vr(KF,4)}, v{v_dma}, s[{sKVs}:{sKVs+3}], s{s_cnt} offen")
    k(f"s_mov_b64 exec, s[{s_lo}:{s_lo+1}]")
    k(f"buffer_load_dwordx2 {vr(KF+4,2)}, v{v_k2}, s[{sKVs}:{sKVs+3}], s{s_cnt} offen offset:2304")
    k("s_mov_b64 exec, -1")
    k("s_waitcnt vmcnt(0)")
    for m in qk(SA, QA1, QA2, 0):
        k(m)
    k.nop(16)
    for i in range(8):
        k(f"v_max3_f32 v{mA}, v{SA+2*i}, v{SA+2*i+1}, v{mA}")
    k(f"s_add_u32 s{s_cnt}, s{s_cnt}, 2560")
    k(f"s_cmp_lt_u32 s{s_cnt}, 163840")
    k("s_cbranch_scc1 k2_fb_max")
    k(f"v_mov_b32 v{t0}, v{mA}")
    k.nop(2)
    k(f"v_permlane32_swap_b32 v{mA}, v{t0}")
    k.nop(2)
    k(f"v_max_f32 v{mA}, v{mA}, v{t0}")
    k(f"v_cmp_eq_u32 vcc, 0, v{v_half}")
    split_m(QA2, mA)
    for i in range(16):
        k(f"v_mov_b32 v{OA+i}, 0")
    k(f"s_mov_b32 s{s_cnt}, 0")
    k.label("k2_fb_main")
    k(f"buffer_load_dwordx4 {vr(KF,4)}, v{v_dma}, s[{sKVs}:{sKVs+3}], s{s_cnt} offen")
    k(f"s_mov_b64 exec, s[{s_lo}:{s_lo+1}]")
    k(f"buffer_load_dwordx2 {vr(KF+4,2)}, v{v_k2}, s[{sKVs}:{sKVs+3}], s{s_cnt} offen offset:2304")
    k(f"s_mov_b64 exec, s[{s_vm}:{s_vm+1}]")
    k(f"buffer_load_dwordx4 {vr(VF,4)}, v{v_v}, s[{sKVs}:{sKVs+3}], s{s_cnt} offen offset:1024")
    k(f"buffer_load_dwordx4 {vr(VF+4,4)}, v{v_v}, s[{sKVs}:{sKVs+3}], s{s_cnt} offen offset:1664")
    k("s_mov_b64 exec, -1")
    k("s_waitcnt vmcnt(0)")
    for m in qk(SA, QA1, QA2, 0):
        k(m)
    k.nop(16)
    for i in range(16):
        k(f"v_exp_f32 v{SA+i}, v{SA+i}")
    k.nop(1)
    for i in range(8):
        k(f"v_cvt_pk_bf16_f32 v{PA+i}, v{SA+2*i}, v{SA+2*i+1}")
    k.nop(2)
    for m in pv(OA, PA, 0):
        k(m)
    k(f"s_add_u32 s{s_cnt}, s{s_cnt}, 2560")
    k(f"s_cmp_lt_u32 s{s_cnt}, 163840")
    k("s_cbranch_scc1 k2_fb_main")
    k.nop(16)
    k("s_branch k2_final")

    k.label("k2_helper")
    sW1, sW2, sPF, sB1, sWO, sXX = 24, 28, 44, 48, 60, 64
    s_u, s_src, s_cbk, s_p = 37, 58, 52, 53
    s_lo, s_hi = 32, 33
    s_b0, s_b1 = 38, 40
    BK = [32, 64, 96]
    TMP = [128, 136]
    CSE, CSO, ONE = 16, 112, 144
    v_src, v_dst, v_np, v_gg, v_ex = 8, 9, 10, 12, 13
    k("s_setprio 3")
    k(f"s_load_dwordx2 s[10:11], s[0:1], {KA['wo']}")
    k(f"s_load_dwordx2 s[14:15], s[0:1], {KA['x']}")
    k(f"s_mov_b32 s{s_lo}, 0x05040100")
    k(f"s_mov_b32 s{s_hi}, 0x07060302")
    for i in range(4):
        k(f"v_mov_b32 v{ONE+i}, 0x3f803f80")
    k("s_waitcnt lgkmcnt(0)")
    k.srd(sWS, 12, WS_SIZE)
    k.srd(sKVs, 12, 163840, WS_KV)
    k.srd(sW1, 4, 640 * 3072)
    k.srd(sW2, 8, 1536 * 1280)
    k.srd(sB1, 6, 3072)
    k.srd(sWO, 10, 640 * 1280)
    k.srd(sXX, 14, 2048 * 1280)

    def hdma(lo, hi):
        lab = k.newlabel("hd")
        k(f"s_mov_b32 s{s_cnt}, {32768 + lo*1024}")
        k.label(lab)
        k(f"s_mov_b32 m0, s{s_cnt}")
        k(f"s_add_u32 s{s_t}, s{s_cnt}, 81920")
        k(f"buffer_load_dwordx4 v{v_dma}, s[{sKVs}:{sKVs+3}], s{s_cnt} offen lds")
        k(f"s_mov_b32 m0, s{s_t}")
        k(f"s_add_u32 s{s_cnt}, s{s_cnt}, 1024")
        k(f"buffer_load_dwordx4 v{v_dma}, s[{sKVs}:{sKVs+3}], s{s_t} offen lds")
        k(f"s_cmp_lt_u32 s{s_cnt}, {32768 + hi*1024}")
        k(f"s_cbranch_scc1 {lab}")
    k.vm = []
    v_s1, v_s2, v_t32, v_t16, v_ex = 8, 9, 10, 12, 13
    v_xs, v_xd = 14, 15
    FR = 32
    XR = 64
    CS0, CS1 = 16, 112
    SRC = [52, 53, 58]
    DB = {0: [68, 69], 1: [70, 71, 72, 73], 2: [74, 75, 76, 77]}
    s_cb1, s_p1 = 78, 79
    k(f"v_lshrrev_b32 v{t0}, 3, v{v_l}")
    k(f"v_and_b32 v{t1}, 7, v{v_l}")
    k(f"v_mul_u32_u24 v{v_s1}, 3072, v{t0}")
    k(f"v_lshl_add_u32 v{v_s1}, v{t1}, 4, v{v_s1}")
    k(f"v_mul_u32_u24 v{v_s2}, 1280, v{t0}")
    k(f"v_lshl_add_u32 v{v_s2}, v{t1}, 4, v{v_s2}")
    k(f"v_and_b32 v{t0}, 15, v{v_l}")
    k(f"v_lshrrev_b32 v{t1}, 4, v{v_l}")
    k(f"v_mul_u32_u24 v{v_xs}, 1280, v{t0}")
    k(f"v_lshl_add_u32 v{v_xs}, v{t1}, 4, v{v_xs}")
    k(f"v_bfe_u32 v{t0}, v{v_l}, 2, 2")
    k(f"v_and_b32 v{t1}, 3, v{v_l}")
    k(f"v_lshl_add_u32 v{t2}, v{v_half}, 3, v{t0}")
    k(f"v_lshlrev_b32 v{v_t32}, 7, v{t2}")
    k(f"v_bfe_u32 v{t2}, v{v_l}, 4, 1")
    k(f"v_lshl_add_u32 v{v_t32}, v{t2}, 5, v{v_t32}")
    k(f"v_lshl_add_u32 v{v_t32}, v{t1}, 3, v{v_t32}")
    k(f"v_lshrrev_b32 v{t2}, 4, v{v_l}")
    k(f"v_lshl_add_u32 v{t2}, v{t2}, 3, v{t0}")
    k(f"v_lshlrev_b32 v{v_t16}, 7, v{t2}")
    k(f"v_lshl_add_u32 v{v_t16}, v{t1}, 3, v{v_t16}")
    k(f"v_add_u32 v{v_t32}, 16384, v{v_t32}")
    k(f"v_add_u32 v{v_t16}, {81920+16384}, v{v_t16}")
    for i in range(16):
        k(f"v_mov_b32 v{CS0+i}, 0")
        k(f"v_mov_b32 v{CS1+i}, 0")
    k("s_barrier")
    geo = [(240, 10, 3072, 32, 3, 40, 16, WS_W1), (240, 24, 1280, 16, 5, 48, 32, WS_W2), (100, 10, 1280, 16, 5, 20, 32, WS_WO)]
    for m, (nu, nrb, ld, MT, NT, S, KS, dst) in enumerate(geo):
        k(f"s_min_u32 s{s_u}, s2, {nu-1}")
        sdiv(k, s_a, s_b, s_u, nrb, s_t)
        if m == 0:
            k(f"s_mov_b32 s{s_cb1}, s{s_a}")
            k(f"s_mov_b32 s{s_p1}, s{s_b}")
        k(f"s_mul_i32 s{SRC[m]}, s{s_b}, {64*ld}")
        k(f"s_lshl_b32 s{s_t}, s{s_a}, 7")
        k(f"s_add_u32 s{SRC[m]}, s{SRC[m]}, s{s_t}")
        for j, sb in enumerate(DB[m]):
            k(f"s_mul_i32 s{s_c}, s{s_a}, {64//MT}")
            k(f"s_add_u32 s{s_c}, s{s_c}, {j}")
            sdiv(k, s_d, s_cnt, s_c, NT, s_t)
            k(f"s_mul_i32 s{s_d}, s{s_d}, {S}")
            k(f"s_mul_i32 s{s_t}, s{s_b}, {64//KS}")
            k(f"s_add_u32 s{s_d}, s{s_d}, s{s_t}")
            k(f"s_mul_i32 s{s_d}, s{s_d}, {NT}")
            k(f"s_add_u32 s{s_d}, s{s_d}, s{s_cnt}")
            k(f"s_lshl_b32 s{s_d}, s{s_d}, 10")
            k(f"s_add_u32 s{sb}, s{s_d}, {dst}")
        if m == 0:
            k("s_barrier")
    hdma(0, 24)
    k("s_waitcnt vmcnt(8)")
    hdma(24, 48)
    k("s_waitcnt vmcnt(30)")
    k(f"s_lshr_b32 s{s_a}, s2, 1")
    k(f"s_mul_i32 s{s_a}, s{s_a}, {16*1280}")
    k(f"s_and_b32 s{s_t}, s2, 1")
    k(f"s_mul_i32 s{s_t}, s{s_t}, 640")
    k(f"s_add_u32 s{s_a}, s{s_a}, s{s_t}")
    for i in range(10):
        k.vmissue(f"buffer_load_dwordx4 {vr(XR+4*i,4)}, v{v_xs}, s[{sXX}:{sXX+3}], s{s_a} offen offset:{i*64}", "X")
    k(f"v_lshlrev_b32 v{t0}, 1, v{v_q}")
    k(f"s_lshl_b32 s{s_t}, s{s_cb1}, 7")
    k.vmissue(f"buffer_load_ushort v{XR+40}, v{t0}, s[{sB1}:{sB1+3}], s{s_t} offen", "X")
    k.vmissue(f"buffer_load_ushort v{XR+41}, v{t0}, s[{sB1}:{sB1+3}], s{s_t} offen offset:64", "X")
    k(f"s_mul_i32 s{s_d}, s2, 10240")
    k(f"s_add_u32 s{s_d}, s{s_d}, {WS_XG}")
    k("s_waitcnt vmcnt(12)")
    k("s_barrier")

    def bdma(m, lds, tag):
        srd, vs, ld = ((sW1, v_s1, 3072), (sW2, v_s2, 1280), (sWO, v_s2, 1280))[m]
        for i in range(8):
            k(f"s_mov_b32 m0, {lds + i*1024}")
            k(f"s_add_u32 s{s_t2}, s{SRC[m]}, {i*8*ld}")
            k.vmissue(f"buffer_load_dwordx4 v{vs}, s[{srd}:{srd+3}], s{s_t2} offen lds", tag)

    def bproc(m, tag):
        k.vmwait(tag)
        nu, nrb, ld, MT, NT, S, KS, dst = geo[m]
        nts = 64 // MT
        for f in range(8):
            ks, tt = divmod(f, nts)
            for j in range(2):
                off = (ks * KS + 4 * j) * 128 + tt * MT * 2
                k(f"ds_read_b64_tr_b16 {vr(FR+4*f+2*j,2)}, v{v_t32 if MT == 32 else v_t16} offset:{off}")
            if f == 3:
                k("s_waitcnt lgkmcnt(0)")
        k("s_waitcnt lgkmcnt(0)")
        for f in range(8):
            ks, tt = divmod(f, nts)
            k(f"s_add_u32 s{s_t2}, s{DB[m][tt]}, {ks*NT*1024}")
            k.vmissue(f"buffer_store_dwordx4 {vr(FR+4*f,4)}, v{v_dma}, s[{sWS}:{sWS+3}], s{s_t2} offen {SC}", "st")
            if m == 0:
                CSr = (CS0, CS1)[tt]
                k(f"v_mfma_f32_32x32x16_bf16 {vr(CSr,16)}, {vr(ONE,4)}, {vr(FR+4*f,4)}, {vr(CSr,16)}")
    bdma(0, 16384, "A")
    bdma(1, 81920 + 16384, "B")
    k.vmwait("X")
    for i in range(10):
        k(f"s_add_u32 s{s_t2}, s{s_d}, {i*1024}")
        k.vmissue(f"buffer_store_dwordx4 {vr(XR+4*i,4)}, v{v_dma}, s[{sWS}:{sWS+3}], s{s_t2} offen {SC}", "st")
    bproc(0, "A")
    bdma(2, 16384, "C")
    bproc(1, "B")
    k(f"v_lshlrev_b32 v{v_ex}, 4, v{v_q}")
    k(f"s_lshl_b32 s{s_a}, s{s_cb1}, 12")
    k(f"s_add_u32 s{s_a}, s{s_a}, {WS_EX}")
    k(f"s_mul_i32 s{s_b}, s{s_p1}, 3")
    for tt, CSr in enumerate((CS0, CS1)):
        k(f"v_and_b32 v{t1}, 0xffff0000, v{CSr}")
        k(f"v_sub_f32 v{t0}, v{CSr}, v{t1}")
        k(f"v_and_b32 v{t2}, 0xffff0000, v{t0}")
        k(f"v_sub_f32 v{t0}, v{t0}, v{t2}")
        for i, reg in enumerate((t1, t2, t0)):
            k(f"s_add_u32 s{s_c}, s{s_b}, {i}")
            k(f"s_lshr_b32 s{s_t}, s{s_c}, 3")
            k(f"s_lshl_b32 s{s_t}, s{s_t}, 9")
            k(f"s_and_b32 s{s_c}, s{s_c}, 7")
            k(f"s_lshl_b32 s{s_c}, s{s_c}, 1")
            k(f"s_add_u32 s{s_c}, s{s_c}, s{s_t}")
            k(f"s_add_u32 s{s_c}, s{s_c}, s{s_a}")
            k(f"buffer_store_short_d16_hi v{reg}, v{v_ex}, s[{sWS}:{sWS+3}], s{s_c} offen offset:{2048*tt}")
        k(f"buffer_store_dword v{XR+40+tt}, v{v_ex}, s[{sWS}:{sWS+3}], s{s_a} offen offset:{2048*tt+1536+12}")
    k(f"v_subrev_u32 v{v_t16}, 81920, v{v_t16}")
    k.vm += ["st"] * 8
    bproc(2, "C")
    k("s_waitcnt vmcnt(0)")
    for ch in PFORDER:
        if ch in "HhOX":
            off, K_ = {"H": (WS_H1, 1536), "h": (WS_H, 640), "O": (WS_O, 640), "X": (WS_XG, 640)}[ch]
            slab = 256 * K_ * 2
            k(f"s_and_b32 s{s_a}, s2, 7")
            k(f"s_mul_i32 s{s_a}, s{s_a}, {slab}")
            k(f"s_add_u32 s14, s12, s{s_a}")
            k("s_addc_u32 s15, s13, 0")
            helper_prefetch(k, sPF, 14, off, slab, v_l, t0, t1, s_t, s_t2)
        elif ch == "w":
            k("s_waitcnt vmcnt(0)")
        else:
            off, nb = {"o": (WS_WO, 800 * 1024), "1": (WS_W1, 1920 * 1024), "2": (WS_W2, 1920 * 1024)}[ch]
            helper_prefetch(k, sPF, 12, off, nb, v_l, t0, t1, s_t, s_t2)
    k("s_endpgm")
    return k.text(NV), "k2_kernel", (256, 576, 163840)


def gen_g16(name, Kdim):
    k = Kern(name + "_kernel")
    NCH = Kdim // 128
    PD = PD16
    R, RX, D = PD + 2, PD + 1, 8
    sWS, sX2, sB, sO = 20, 24, 28, 44
    s_tb, s_cb, s_w, s_t, s_t2, s_off, s_xoff, s_l = 32, 33, 34, 35, 36, 37, 38, 39
    s_hoff, s_rmoff, s_tok, s_xg = 40, 41, 42, 43
    v_ow, v_or, OADR = 10, 16, 17
    v_l, v_idx, v_g = 1, 2, 3
    v_x = 4
    v_a2 = 5
    v_st = 6
    v_s1, v_s2 = 8, 9
    v_rm = 11
    t0, t1, t2, t3 = 12, 13, 14, 15
    RES = 20
    BIA = 30
    AF = 40
    ACC = 80
    XB = 100
    NV = XB + RX * 16
    WSW = WS_WO if name == "k3" else WS_W2
    helper = False
    k("s_cmp_ge_u32 s2, 256")
    k(f"s_cbranch_scc1 {name}_end")
    k.stamp_init()
    k(f"s_load_dwordx2 s[12:13], s[0:1], {KA['ws']}")
    if name == "k5":
        k(f"s_load_dwordx4 s[8:11], s[0:1], {KA['b2']}")
    wave_lane_setup(k, s_w, v_l)
    if helper:
        k(f"s_cmp_eq_u32 s{s_w}, 4")
        k(f"s_cbranch_scc1 {name}_helper")
    if name == "k5" and MAP5:
        b = MAP5
        k(f"s_bfe_u32 s{s_t}, s2, {hex(((3-b) << 16) | b)}")
        k(f"s_lshl_b32 s{s_tb}, s{s_t}, {2+b}")
        k(f"s_bfe_u32 s{s_t}, s2, {hex(((2+b) << 16) | 3)}")
        k(f"s_add_u32 s{s_tb}, s{s_tb}, s{s_t}")
        k(f"s_and_b32 s{s_t}, s2, {(1 << b) - 1}")
        k(f"s_lshl_b32 s{s_cb}, s{s_t}, {3-b}")
        k(f"s_lshr_b32 s{s_t}, s2, {5+b}")
        k(f"s_add_u32 s{s_cb}, s{s_cb}, s{s_t}")
    else:
        decode_tb_cb(k, s_tb, s_cb, s_t, s_t2)
    k(f"v_lshlrev_b32 v{v_x}, 4, v{v_l}")
    k(f"s_lshl_b32 s{s_t}, s{s_tb}, 2")
    k(f"s_add_u32 s{s_t}, s{s_t}, s{s_w}")
    k(f"s_mul_i32 s{s_xoff}, s{s_t}, {Kdim*32}")
    k(f"s_add_u32 s{s_xoff}, s{s_xoff}, {WS_O if name == 'k3' else WS_H1}")
    k(f"s_mul_i32 s{s_off}, s{s_cb}, {Kdim*160}")
    k(f"s_mul_i32 s{s_l}, s{s_w}, 5120")
    k(f"s_add_u32 s{s_off}, s{s_off}, s{s_l}")
    k(f"s_add_u32 s{s_off}, s{s_off}, {WSW}")
    k(f"v_and_b32 v{v_idx}, 15, v{v_l}")
    k(f"v_lshrrev_b32 v{v_g}, 4, v{v_l}")
    k(f"s_lshl_b32 s{s_t}, s{s_tb}, 6")
    k(f"s_lshl_b32 s{s_t2}, s{s_w}, 4")
    k(f"s_add_u32 s{s_tok}, s{s_t}, s{s_t2}")
    k(f"v_add_u32 v{t0}, s{s_tok}, v{v_idx}")
    v_h = t3
    k(f"v_lshrrev_b32 v{t1}, 5, v{t0}")
    k(f"v_mul_u32_u24 v{v_h}, {640*64}, v{t1}")
    k(f"v_and_b32 v{t1}, 31, v{t0}")
    k(f"v_lshl_add_u32 v{v_h}, v{t1}, 4, v{v_h}")
    k(f"v_lshrrev_b32 v{t1}, 1, v{v_g}")
    k(f"v_lshl_add_u32 v{v_h}, v{t1}, 9, v{v_h}")
    k(f"v_and_b32 v{t2}, 1, v{v_g}")
    k(f"v_lshl_add_u32 v{v_h}, v{t2}, 3, v{v_h}")
    k(f"v_lshlrev_b32 v{v_rm}, 4, v{v_idx}")
    k(f"v_lshl_add_u32 v{v_rm}, v{t1}, 8, v{v_rm}")
    k(f"v_lshl_add_u32 v{v_rm}, v{t2}, 3, v{v_rm}")
    k(f"s_mul_i32 s{s_xg}, s{s_tok}, 1280")
    k(f"s_mul_i32 s{s_t}, s{s_cb}, 2560")
    k(f"s_add_u32 s{s_xg}, s{s_xg}, s{s_t}")
    k(f"s_add_u32 s{s_xg}, s{s_xg}, {WS_XG}")
    k(f"s_mul_i32 s{s_hoff}, s{s_cb}, 5120")
    k(f"s_add_u32 s{s_hoff}, s{s_hoff}, {WS_H}")
    k(f"s_mul_i32 s{s_rmoff}, s{s_cb}, 160")
    k(f"v_add_u32 v{t2}, 4096, v{v_h}")
    k(f"v_lshlrev_b32 v{t1}, 3, v{v_g}")
    s_cc, s_cx, s_cw = 48, 49, 50
    if ROT:
        fa, fb = (3, 5) if NCH == 12 else (1, 2)
        k(f"s_and_b32 s{s_t}, s{s_tb}, 3")
        k(f"s_mul_i32 s{s_t}, s{s_t}, {fa}")
        k(f"s_mul_i32 s{s_t2}, s{s_cb}, {fb}")
        k(f"s_add_u32 s{s_t}, s{s_t}, s{s_t2}")
        sdiv(k, s_cx, s_cc, s_t, NCH, s_t2)
    else:
        k(f"s_mov_b32 s{s_cc}, 0")
    k("s_waitcnt lgkmcnt(0)")
    k.srd(sWS, 12, WS_SIZE)
    if name == "k5":
        k.srd(sB, 8, 1280)

    def chunk_loads(c):
        fs = []
        for i in range(4):
            def fx(i=i, c=c):
                if i == 0:
                    k(f"s_mul_i32 s{s_cx}, s{s_cc}, 4096")
                    k(f"s_mul_i32 s{s_cw}, s{s_cc}, 20480")
                    k(f"s_add_u32 s{s_cx}, s{s_cx}, s{s_xoff}")
                    k(f"s_add_u32 s{s_cw}, s{s_cw}, s{s_off}")
                    k(f"s_add_u32 s{s_cc}, s{s_cc}, 1")
                    k(f"s_cmp_eq_u32 s{s_cc}, {NCH}")
                    k(f"s_cselect_b32 s{s_cc}, 0, s{s_cc}")
                k.vmissue(f"buffer_load_dwordx4 {vr(XB+(c%RX)*16+4*i,4)}, v{v_x}, s[{sWS}:{sWS+3}], s{s_cx} offen offset:{i*1024}", f"c{c}")
            fs.append(fx)
        for i in range(5):
            def fw(i=i, c=c):
                k(f"s_add_u32 m0, s{s_l}, {(c%R)*20480 + i*1024}")
                k(f"s_add_u32 s{s_t2}, s{s_cw}, {i*1024}")
                k.vmissue(f"buffer_load_dwordx4 v{v_x}, s[{sWS}:{sWS+3}], s{s_t2} offen lds", f"c{c}")
            fs.append(fw)
        return fs
    for f in chunk_loads(0):
        f()
    for t in range(5):
        if name == "k3":
            k.vmissue(f"buffer_load_dwordx2 {vr(RES+2*t,2)}, v{v_rm}, s[{sWS}:{sWS+3}], s{s_xg} offen offset:{t*512}", "c0")
        else:
            if t < 4:
                k.vmissue(f"buffer_load_dwordx2 {vr(RES+2*t,2)}, v{v_h}, s[{sWS}:{sWS+3}], s{s_hoff} offen offset:{t*1024}", "c0")
            else:
                k.vmissue(f"buffer_load_dwordx2 {vr(RES+2*t,2)}, v{t2}, s[{sWS}:{sWS+3}], s{s_hoff} offen", "c0")
            k.vmissue(f"buffer_load_dwordx2 {vr(BIA+2*t,2)}, v{t1}, s[{sB}:{sB+3}], s{s_rmoff} offen offset:{t*32}", "c0")
    for c in range(1, PD):
        for f in chunk_loads(c):
            f()
    k(f"v_add_u32 v{v_a2}, {3*20480}, v{v_x}")
    k(f"v_lshlrev_b32 v{v_st}, 6, v{t0}")
    k(f"v_mov_b32 v{v_s1}, 0")
    k(f"v_mov_b32 v{v_s2}, 0")
    k(f"v_mov_b32 v7, 0x3f803f80")
    if name == "k5":
        k.srd(sO, 10, 2048 * 1280)
        k(f"s_mul_i32 s{s_t}, s{s_w}, 2560")
        k(f"s_add_u32 s{s_t}, s{s_t}, {R*20480}")
        k(f"v_mul_u32_u24 v{v_ow}, 160, v{v_idx}")
        k(f"v_add_u32 v{v_ow}, v{v_ow}, v{t1}")
        k(f"v_add_u32 v{v_ow}, s{s_t}, v{v_ow}")
        k(f"v_add_u32 v{v_or}, s{s_t}, v{v_x}")
        for i in range(3):
            k(f"v_add_u32 v{v_s1}, {i*64}, v{v_l}")
            k(f"v_mul_u32_u24 v{v_s2}, 6554, v{v_s1}")
            k(f"v_lshrrev_b32 v{v_s2}, 16, v{v_s2}")
            k(f"v_mul_u32_u24 v{v_st}, 10, v{v_s2}")
            k(f"v_sub_u32 v{v_st}, v{v_s1}, v{v_st}")
            k(f"v_add_u32 v{v_s2}, s{s_tok}, v{v_s2}")
            k(f"v_mul_u32_u24 v{v_s2}, 1280, v{v_s2}")
            k(f"v_lshl_add_u32 v{OADR+i}, v{v_st}, 4, v{v_s2}")
        k(f"v_cmp_gt_u32 vcc, 32, v{v_l}")
        k(f"v_mov_b32 v{v_s1}, 0x7ffffff0")
        k.nop(1)
        k(f"v_cndmask_b32 v{OADR+2}, v{v_s1}, v{OADR+2}, vcc")
    spr = Sprinkle()
    k.stamp()

    def read_fn(i, buf):
        c, r = divmod(i, 20)
        slot = c % R
        base, off = (v_x, slot * 20480) if slot < 3 else (v_a2, (slot - 3) * 20480)
        k(f"ds_read_b128 {vr(AF+4*buf,4)}, v{base} offset:{off + r*1024}")

    def mfma_fn(i, buf):
        c, r = divmod(i, 20)
        s, t = divmod(r, 5)
        X = XB + (c % RX) * 16 + 4 * s
        if i == 0:
            for tt in range(5):
                a = ACC + 4 * tt
                k(f"v_lshlrev_b32 v{a}, 16, v{RES+2*tt}")
                k(f"v_and_b32 v{a+1}, 0xffff0000, v{RES+2*tt}")
                k(f"v_lshlrev_b32 v{a+2}, 16, v{RES+2*tt+1}")
                k(f"v_and_b32 v{a+3}, 0xffff0000, v{RES+2*tt+1}")
                if name == "k5":
                    k(f"v_lshlrev_b32 v{RES+2*tt}, 16, v{BIA+2*tt}")
                    k(f"v_and_b32 v{BIA+2*tt}, 0xffff0000, v{BIA+2*tt}")
                    k(f"v_lshlrev_b32 v{RES+2*tt+1}, 16, v{BIA+2*tt+1}")
                    k(f"v_and_b32 v{BIA+2*tt+1}, 0xffff0000, v{BIA+2*tt+1}")
                    k(f"v_add_f32 v{a}, v{a}, v{RES+2*tt}")
                    k(f"v_add_f32 v{a+1}, v{a+1}, v{BIA+2*tt}")
                    k(f"v_add_f32 v{a+2}, v{a+2}, v{RES+2*tt+1}")
                    k(f"v_add_f32 v{a+3}, v{a+3}, v{BIA+2*tt+1}")
            k.nop(2)
        k(f"v_mfma_f32_16x16x32_bf16 {vr(ACC+4*t,4)}, {vr(AF+4*buf,4)}, {vr(X,4)}, {vr(ACC+4*t,4)}")

    def mk_sync(c):
        def f():
            k.vmwait(f"c{c}")
            k("s_barrier")
            if c in (0, 1, NCH - 1):
                k.stamp()
        return f
    sync_at = {20 * c: mk_sync(c) for c in range(NCH)}

    def side(i):
        c, r = divmod(i, 20)
        if r == 0 and c + PD < NCH:
            for f in chunk_loads(c + PD):
                spr.add(f)
        spr.emit(1)
    gemm_pipeline(k, 20 * NCH, D, lambda j: 1, read_fn, mfma_fn, sync_at, side)
    assert not spr.q
    k.stamp()
    k.nop(4)
    T = AF
    for t in range(5):
        a = ACC + 4 * t
        k(f"v_cvt_pk_bf16_f32 v{T+2*t}, v{a}, v{a+1}")
        k(f"v_cvt_pk_bf16_f32 v{T+1+2*t}, v{a+2}, v{a+3}")
        if name == "k3":
            if t < 4:
                k(f"buffer_store_dwordx2 {vr(T+2*t,2)}, v{v_h}, s[{sWS}:{sWS+3}], s{s_hoff} offen offset:{t*1024}")
            else:
                k(f"buffer_store_dwordx2 {vr(T+2*t,2)}, v{t2}, s[{sWS}:{sWS+3}], s{s_hoff} offen")
        else:
            k(f"ds_write_b64 v{v_ow}, {vr(T+2*t,2)} offset:{t*32}")
    if name == "k3":
        for i in range(10):
            k(f"v_dot2_f32_bf16 v{v_s1}, v{T+i}, v7, v{v_s1}")
            k(f"v_dot2_f32_bf16 v{v_s2}, v{T+i}, v{T+i}, v{v_s2}")
        chs = []
        for v, tt in ((v_s1, t0), (v_s2, t1)):
            chs.append([(f"v_mov_b32 v{tt}, v{v}", 3), (f"v_permlane16_swap_b32 v{v}, v{tt}", 2), (f"v_add_f32 v{v}, v{v}, v{tt}", 1),
                        (f"v_mov_b32 v{tt}, v{v}", 0), (f"v_permlane32_swap_b32 v{v}, v{tt}", 2), (f"v_add_f32 v{v}, v{v}, v{tt}", 1)])
        k.nop(3)
        interleave(k, chs)
        k(f"s_lshl_b32 s{s_t}, s{s_cb}, 3")
        k(f"s_add_u32 s{s_t}, s{s_t}, {WS_ST}")
        k(f"buffer_store_dwordx2 {vr(v_s1,2)}, v{v_st}, s[{sWS}:{sWS+3}], s{s_t} offen")
    else:
        k("s_waitcnt lgkmcnt(0)")
        for i in range(3):
            k(f"ds_read_b128 {vr(T+12+4*i,4)}, v{v_or} offset:{i*1024}")
        for i in range(3):
            k(f"s_waitcnt lgkmcnt({2-i})")
            k(f"buffer_store_dwordx4 {vr(T+12+4*i,4)}, v{OADR+i}, s[{sO}:{sO+3}], s{s_rmoff} offen")
    k.stamp_flush(s_w)
    k.label(f"{name}_end")
    k("s_endpgm")
    if helper:
        k.label(f"{name}_helper")
        slab = 256 * Kdim * 2
        k(f"s_and_b32 s{s_l}, s2, 7")
        k(f"s_mul_i32 s{s_l}, s{s_l}, {slab}")
        k("s_waitcnt lgkmcnt(0)")
        k(f"s_add_u32 s14, s12, s{s_l}")
        k("s_addc_u32 s15, s13, 0")
        helper_prefetch(k, 48, 14, WS_O if name == "k3" else WS_H1, slab, v_l, t0, t1, s_t, s_t2)
        k("s_barrier")
        if name == "k3":
            helper_prefetch(k, 52, 12, WS_W1, 1920 * 1024, v_l, t0, t1, s_t, s_t2)
        for c in range(NCH - 1):
            k("s_barrier")
        k("s_endpgm")
    return k.text(NV), name + "_kernel", (256, 256, R * 20480 + (10240 + 1024 if name == "k5" else 0))


def gen_k4():
    k = Kern("k4_kernel")
    CK = 4
    NCH = 40 // CK
    PD = PD32
    R, RX, D = PD + 2, PD + 1, 6
    CB = CK * 3 * 1024
    sWS = 20
    s_tb, s_cb, s_w, s_t, s_t2, s_off, s_xoff, s_l = 32, 33, 34, 35, 36, 37, 38, 39
    v_l, v_q, v_half = 1, 2, 3
    v_x = 4
    v_x2 = 5
    t0, t1, t2, t3 = 12, 13, 14, 15
    BX = 16
    ST = 20
    AF = 28
    E = 56
    BX2 = 68
    ACC = 80
    EXA = 128
    XB = 152
    NV = XB + RX * 16
    helper = False
    k("s_cmp_ge_u32 s2, 256")
    k("s_cbranch_scc1 k4_end")
    k.stamp_init()
    k(f"s_load_dwordx2 s[12:13], s[0:1], {KA['ws']}")
    wave_lane_setup(k, s_w, v_l)
    if helper:
        k(f"s_cmp_eq_u32 s{s_w}, 4")
        k("s_cbranch_scc1 k4_helper")
    if MAP4 == 0:
        k(f"s_and_b32 s{s_t}, s2, 7")
        k(f"s_lshl_b32 s{s_tb}, s{s_t}, 1")
        k(f"s_bfe_u32 s{s_t}, s2, 0x10003")
        k(f"s_add_u32 s{s_tb}, s{s_tb}, s{s_t}")
        k(f"s_lshr_b32 s{s_cb}, s2, 4")
    else:
        b = MAP4
        k(f"s_bfe_u32 s{s_t}, s2, {hex(((3-b) << 16) | b)}")
        k(f"s_lshl_b32 s{s_tb}, s{s_t}, {1+b}")
        k(f"s_bfe_u32 s{s_t}, s2, {hex(((1+b) << 16) | 3)}")
        k(f"s_add_u32 s{s_tb}, s{s_tb}, s{s_t}")
        k(f"s_and_b32 s{s_t}, s2, {(1 << b) - 1}")
        k(f"s_lshl_b32 s{s_cb}, s{s_t}, {4-b}")
        k(f"s_lshr_b32 s{s_t}, s2, {4+b}")
        k(f"s_add_u32 s{s_cb}, s{s_cb}, s{s_t}")
    k(f"v_lshlrev_b32 v{v_x}, 4, v{v_l}")
    k(f"s_lshl_b32 s{s_t}, s{s_tb}, 2")
    k(f"s_add_u32 s{s_t}, s{s_t}, s{s_w}")
    k(f"s_mul_i32 s{s_xoff}, s{s_t}, {640*64}")
    k(f"s_add_u32 s{s_xoff}, s{s_xoff}, {WS_H}")
    k(f"s_mul_i32 s{s_off}, s{s_cb}, {640*192}")
    k(f"s_mul_i32 s{s_l}, s{s_w}, {CB//4}")
    k(f"s_add_u32 s{s_off}, s{s_off}, s{s_l}")
    k(f"s_add_u32 s{s_off}, s{s_off}, {WS_W1}")
    s_cc, s_cx, s_cw = 48, 49, 50
    if ROT:
        k(f"s_and_b32 s{s_t}, s{s_tb}, 1")
        k(f"s_mul_i32 s{s_t}, s{s_t}, 5")
        k(f"s_mul_i32 s{s_t2}, s{s_cb}, 3")
        k(f"s_add_u32 s{s_t}, s{s_t}, s{s_t2}")
        sdiv(k, s_cx, s_cc, s_t, NCH, s_t2)
    else:
        k(f"s_mov_b32 s{s_cc}, 0")
    k("s_waitcnt lgkmcnt(0)")
    k.srd(sWS, 12, WS_SIZE)

    def chunk_loads(c):
        fs = []
        for i in range(CK):
            def fx(i=i, c=c):
                if i == 0:
                    k(f"s_mul_i32 s{s_cx}, s{s_cc}, {CK*1024}")
                    k(f"s_mul_i32 s{s_cw}, s{s_cc}, {CB}")
                    k(f"s_add_u32 s{s_cx}, s{s_cx}, s{s_xoff}")
                    k(f"s_add_u32 s{s_cw}, s{s_cw}, s{s_off}")
                    k(f"s_add_u32 s{s_cc}, s{s_cc}, 1")
                    k(f"s_cmp_eq_u32 s{s_cc}, {NCH}")
                    k(f"s_cselect_b32 s{s_cc}, 0, s{s_cc}")
                k.vmissue(f"buffer_load_dwordx4 {vr(XB+((c%RX)*CK+i)*4,4)}, v{v_x}, s[{sWS}:{sWS+3}], s{s_cx} offen offset:{i*1024}", f"c{c}")
            fs.append(fx)
        for i in range(CB // 4096):
            def fw(i=i, c=c):
                k(f"s_add_u32 m0, s{s_l}, {(c%R)*CB + i*1024}")
                k(f"s_add_u32 s{s_t2}, s{s_cw}, {i*1024}")
                k.vmissue(f"buffer_load_dwordx4 v{v_x}, s[{sWS}:{sWS+3}], s{s_t2} offen lds", f"c{c}")
            fs.append(fw)
        return fs
    for c in range(PD):
        for f in chunk_loads(c):
            f()
    k(f"v_and_b32 v{v_q}, 31, v{v_l}")
    k(f"v_lshrrev_b32 v{v_half}, 5, v{v_l}")
    k(f"v_add_u32 v{v_x2}, {5*CB}, v{v_x}")
    for i in range(48):
        k(f"v_mov_b32 v{ACC+i}, 0")
    k(f"s_lshl_b32 s{s_t}, s{s_tb}, 7")
    k(f"s_lshl_b32 s{s_t2}, s{s_w}, 5")
    k(f"s_add_u32 s{s_t}, s{s_t}, s{s_t2}")
    k(f"v_add_u32 v{t1}, s{s_t}, v{v_q}")
    k(f"v_lshlrev_b32 v{t3}, 6, v{t1}")
    k(f"v_lshl_add_u32 v{t3}, v{v_half}, 5, v{t3}")
    k(f"v_lshrrev_b32 v{t2}, 4, v{t1}")
    k(f"v_mul_u32_u24 v{t2}, {1536*32}, v{t2}")
    k(f"v_and_b32 v{t1}, 15, v{t1}")
    k(f"v_lshl_add_u32 v{t2}, v{t1}, 4, v{t2}")
    k(f"v_lshl_add_u32 v{t2}, v{v_half}, 8, v{t2}")
    s_so, s_ex, s_st = 40, 41, 42
    k(f"s_mul_i32 s{s_so}, s{s_cb}, {12*256}")
    k(f"s_add_u32 s{s_so}, s{s_so}, {WS_H1}")
    k(f"s_mul_i32 s{s_ex}, s{s_cb}, 6144")
    k(f"s_add_u32 s{s_ex}, s{s_ex}, {WS_EX}")
    k(f"s_mov_b32 s{s_st}, {WS_ST}")

    def epi_loads():
        fs = []
        for i in range(2):
            fs.append(lambda i=i: k.vmissue(f"buffer_load_dwordx4 {vr(ST+4*i,4)}, v{t3}, s[{sWS}:{sWS+3}], s{s_st} offen offset:{i*16}", "epi"))
        for t in range(6):
            def fe(t=t):
                k(f"s_add_u32 s{s_t2}, s{s_ex}, {t*1024}")
                k.vmissue(f"buffer_load_dwordx4 {vr(EXA+4*t,4)}, v{v_x}, s[{sWS}:{sWS+3}], s{s_t2} offen", "epi")
            fs.append(fe)
        return fs
    spr = Sprinkle()
    k.stamp()
    UPC = CK * 3
    v_mean, v_rstd, v_sum, v_sq = E, E + 1, E + 2, E + 3

    def stats_code():
        kk = Kern("tmp")
        kk(f"v_add_f32 v{v_sum}, v{ST}, v{ST+2}")
        kk(f"v_add_f32 v{v_sq}, v{ST+1}, v{ST+3}")
        kk(f"v_add_f32 v{ST+4}, v{ST+4}, v{ST+6}")
        kk(f"v_add_f32 v{ST+5}, v{ST+5}, v{ST+7}")
        kk(f"v_add_f32 v{v_sum}, v{v_sum}, v{ST+4}")
        kk(f"v_add_f32 v{v_sq}, v{v_sq}, v{ST+5}")
        xsum_halves(kk, v_sum, t0)
        xsum_halves(kk, v_sq, t0)
        ln_stats(kk, v_sum, v_sq, v_mean, v_rstd, t0, t1)
        kk(f"v_xor_b32 v{t0}, 0x80000000, v{v_mean}")
        kk(f"v_lshrrev_b32 v{BX}, 16, v{t0}")
        kk(f"v_or_b32 v{BX}, v{BX}, v{t0}")
        kk(f"v_cmp_eq_u32 vcc, 0, v{v_half}")
        for r_ in (BX + 1, BX + 2, BX + 3, BX2, BX2 + 1, BX2 + 2):
            kk(f"v_mov_b32 v{r_}, v{BX}")
        kk(f"v_lshrrev_b32 v{t0}, 16, v{t1}")
        kk(f"v_cndmask_b32 v{BX2+3}, v{t0}, v{BX}, vcc")
        kk(f"v_mul_f32 v{v_rstd}, v{v_rstd}, v{v_rstd}")
        kk(f"v_mov_b32 v{v_rstd+1}, v{v_rstd}")
        return [l.strip() for l in kk.L]

    def read_fn(i, buf):
        c, r = divmod(i, UPC)
        slot = c % R
        base, off = (v_x, slot * CB) if slot < 5 else (v_x2, (slot - 5) * CB)
        k(f"ds_read_b128 {vr(AF+4*buf,4)}, v{base} offset:{off + r*1024}")

    def mfma_fn(i, buf):
        c, r = divmod(i, UPC)
        s, t = divmod(r, 3)
        X = XB + ((c % RX) * CK + s) * 4
        k(f"v_mfma_f32_32x32x16_bf16 {vr(ACC+16*t,16)}, {vr(AF+4*buf,4)}, {vr(X,4)}, {vr(ACC+16*t,16)}")

    def mk_sync(c):
        def f():
            k.vmwait(f"c{c}")
            k("s_barrier")
            if c in (0, 1, NCH - 1):
                k.stamp()
        return f
    sync_at = {UPC * c: mk_sync(c) for c in range(NCH)}
    spr2 = Sprinkle()

    def side(i):
        c, r = divmod(i, UPC)
        if r == 0:
            if c + PD < NCH:
                for f in chunk_loads(c + PD):
                    spr.add(f)
            elif c + PD == NCH:
                for f in epi_loads():
                    spr.add(f)
            if c == NCH - 1:
                k.vmwait("epi")
                for l in stats_code():
                    spr2.add(lambda l=l: k(l))
        spr.emit(1)
        spr2.emit(4)
    gemm_pipeline(k, UPC * NCH, D, lambda j: 1, read_fn, mfma_fn, sync_at, side)
    assert not spr.q
    spr2.emit(1000)
    k.stamp()
    k.nop(2)
    for t in range(3):
        k(f"v_mfma_f32_32x32x16_bf16 {vr(ACC+16*t,16)}, {vr(EXA+8*t,4)}, {vr(BX,4)}, {vr(ACC+16*t,16)}")
        k(f"v_mfma_f32_32x32x16_bf16 {vr(ACC+16*t,16)}, {vr(EXA+8*t+4,4)}, {vr(BX2,4)}, {vr(ACC+16*t,16)}")
    k.nop(6)
    R2 = E + 4
    k(f"v_mov_b32 v{R2}, v{v_rstd}")
    k(f"v_mov_b32 v{R2+1}, v{v_rstd}")
    TM = XB
    for t in range(3):
        for qp in range(2):
            O4 = XB + 32 + (t * 2 + qp) * 4
            for qq in range(2):
                z = ACC + 16 * t + 8 * qp + 4 * qq
                m = TM + 4 * qq
                for r in range(4):
                    k(f"v_max_f32 v{m+r}, 0, v{z+r}")
                k(f"v_pk_mul_f32 {vr(z,2)}, {vr(z,2)}, {vr(R2,2)}")
                k(f"v_pk_mul_f32 {vr(z+2,2)}, {vr(z+2,2)}, {vr(R2,2)}")
                k(f"v_pk_mul_f32 {vr(z,2)}, {vr(z,2)}, {vr(m,2)}")
                k(f"v_pk_mul_f32 {vr(z+2,2)}, {vr(z+2,2)}, {vr(m+2,2)}")
                k(f"v_cvt_pk_bf16_f32 v{O4+2*qq}, v{z}, v{z+1}")
                k(f"v_cvt_pk_bf16_f32 v{O4+2*qq+1}, v{z+2}, v{z+3}")
            k.nop(2)
            k(f"v_permlane32_swap_b32 v{O4}, v{O4+2}")
            k(f"v_permlane32_swap_b32 v{O4+1}, v{O4+3}")
            k(f"buffer_store_dwordx4 {vr(O4,4)}, v{t2}, s[{sWS}:{sWS+3}], s{s_so} offen offset:{(4*t+2*qp)*256} {SC4}")
    k.stamp_flush(s_w)
    k.label("k4_end")
    k("s_endpgm")
    if helper:
        k.label("k4_helper")
        slab = 256 * 640 * 2
        k(f"s_and_b32 s{s_l}, s2, 7")
        k(f"s_mul_i32 s{s_l}, s{s_l}, {slab}")
        k("s_waitcnt lgkmcnt(0)")
        k(f"s_add_u32 s14, s12, s{s_l}")
        k("s_addc_u32 s15, s13, 0")
        helper_prefetch(k, 48, 14, WS_H, slab, v_l, t0, t1, s_t, s_t2)
        k("s_barrier")
        k("s_barrier")
        helper_prefetch(k, 52, 12, WS_W2, 1920 * 1024, v_l, t0, t1, s_t, s_t2)
        for c in range(NCH - 2):
            k("s_barrier")
        k("s_endpgm")
    return k.text(NV), "k4_kernel", (256, 320 if helper else 256, R * CB)


def gen_mlp():
    k = Kern("k3_kernel")
    sWS, sB, sO = 20, 28, 44
    s_g, s_i, s_w, s_t, s_t2 = 32, 33, 34, 35, 36
    s_tb, s_cb, s_tok = 37, 38, 39
    s_xa, s_wa, s_l5 = 40, 41, 42
    s_xb, s_wb, s_l3 = 48, 49, 50
    s_xc, s_wc = 51, 52
    s_hoff, s_rmoff, s_xg, s_cnt, s_spin = 53, 54, 55, 56, 57
    s_so, s_ex, s_st = 58, 59, 43
    v_l, v_idx, v_g, v_x = 1, 2, 3, 4
    v_q, v_half = 5, 6
    v_one = 7
    t0, t1, t2, t3 = 8, 9, 10, 11
    v_h, v_h4, v_xg, v_st = 12, 13, 14, 15
    v_s1, v_s2 = 16, 17
    v_hi1, v_hi2 = 18, 19
    HP = 20
    OADR, v_ow, v_or, v_b8 = 30, 33, 34, 35
    v_h1a, v_sta = 36, 37
    E = 38
    BX, BX2 = 48, 52
    AF = 56
    ACC = 116
    EXA = 164
    XB = 188
    NV = 252
    D16 = int(os.environ.get("D16", "8"))
    ROTB = int(os.environ.get("ROTB", "0"))
    ROTC = int(os.environ.get("ROTC", "0"))
    HELP = int(os.environ.get("HELP", "0"))
    W1AT = int(os.environ.get("W1AT", "3"))
    NB0 = int(os.environ.get("NB0", "6"))
    ROTA = int(os.environ.get("ROTA", "0"))
    s_rA, s_rB, s_rC = 24, 25, 26
    s_cw, s_cx, s_u = 27, 14, 15
    D32 = int(os.environ.get("D32", "6"))
    RES, BIA, ST = EXA, EXA + 10, E + 2

    def lds_addr(off):
        if off < 61440:
            return v_x, off
        if off < 122880:
            return v_hi1, off - 61440
        return v_hi2, off - 122880

    k("s_cmp_ge_u32 s2, 256")
    k("s_cbranch_scc1 k3_end")
    k.stamp_init()
    k(f"s_load_dwordx2 s[12:13], s[0:1], {KA['ws']}")
    k(f"s_load_dwordx4 s[8:11], s[0:1], {KA['b2']}")
    wave_lane_setup(k, s_w, v_l)
    k(f"s_and_b32 s{s_t}, s2, 7")
    k(f"s_lshl_b32 s{s_g}, s{s_t}, 1")
    k(f"s_bfe_u32 s{s_t}, s2, 0x10003")
    k(f"s_add_u32 s{s_g}, s{s_g}, s{s_t}")
    k(f"s_lshr_b32 s{s_i}, s2, 4")
    k(f"s_lshl_b32 s{s_tb}, s{s_g}, 1")
    k(f"s_and_b32 s{s_t}, s{s_i}, 1")
    k(f"s_add_u32 s{s_tb}, s{s_tb}, s{s_t}")
    k(f"s_lshr_b32 s{s_cb}, s{s_i}, 1")
    if HELP:
        k(f"s_cmp_eq_u32 s{s_w}, 4")
        k("s_cbranch_scc1 k3_helper")
    k(f"v_lshlrev_b32 v{v_x}, 4, v{v_l}")
    k(f"v_and_b32 v{v_idx}, 15, v{v_l}")
    k(f"v_lshrrev_b32 v{v_g}, 4, v{v_l}")
    k(f"s_lshl_b32 s{s_t}, s{s_tb}, 6")
    k(f"s_lshl_b32 s{s_t2}, s{s_w}, 4")
    k(f"s_add_u32 s{s_tok}, s{s_t}, s{s_t2}")
    k(f"s_mul_i32 s{s_xa}, s{s_tok}, 1280")
    k(f"s_mul_i32 s{s_t}, s{s_cb}, 2560")
    k(f"s_add_u32 s{s_xg}, s{s_xa}, s{s_t}")
    k(f"s_add_u32 s{s_xg}, s{s_xg}, {WS_XG}")
    k(f"s_add_u32 s{s_xa}, s{s_xa}, {WS_O}")
    k(f"s_mul_i32 s{s_l5}, s{s_w}, 5120")
    k(f"s_mul_i32 s{s_wa}, s{s_cb}, {640*160}")
    k(f"s_add_u32 s{s_wa}, s{s_wa}, s{s_l5}")
    k(f"s_add_u32 s{s_wa}, s{s_wa}, {WS_WO}")
    k(f"v_lshrrev_b32 v{t1}, 1, v{v_g}")
    k(f"v_and_b32 v{t2}, 1, v{v_g}")
    k(f"v_lshlrev_b32 v{v_xg}, 4, v{v_idx}")
    k(f"v_lshl_add_u32 v{v_xg}, v{t1}, 8, v{v_xg}")
    k(f"v_lshl_add_u32 v{v_xg}, v{t2}, 3, v{v_xg}")
    if ROTA:
        sdiv(k, s_t, s_rA, s_cb, 5, s_t2)
    else:
        k(f"s_mov_b32 s{s_rA}, 0")
    if ROTB:
        sdiv(k, s_t, s_rB, s_i, 10, s_t2)
    else:
        k(f"s_mov_b32 s{s_rB}, 0")
    if ROTC:
        k(f"s_mul_i32 s{s_rC}, s{s_cb}, 3")
        k(f"s_lshr_b32 s{s_rC}, s{s_rC}, 1")
    else:
        k(f"s_mov_b32 s{s_rC}, 0")
    k("s_waitcnt lgkmcnt(0)")
    k.srd(sWS, 12, WS_SIZE)

    def rot_base(dst, srot, c, N, stride, base):
        k(f"s_sub_u32 s{dst}, s{srot}, {N - c}")
        k(f"s_cselect_b32 s{s_u}, {N}, 0")
        k(f"s_add_u32 s{dst}, s{dst}, s{s_u}")
        k(f"s_mul_i32 s{dst}, s{dst}, {stride}")
        k(f"s_add_u32 s{dst}, s{dst}, s{base}")

    def xload16(c, i, sx, RX, tag, pol):
        if i == 0:
            rot_base(s_cx, s_rA if sx == s_xa else s_rC, c, 5 if sx == s_xa else 12, 4096, sx)
        k.vmissue(f"buffer_load_dwordx4 {vr(XB+(c%RX)*16+4*i,4)}, v{v_x}, s[{sWS}:{sWS+3}], s{s_cx} offen offset:{i*1024} {pol}", tag)

    def wload16(c, i, sw, R, tag):
        if i == 0:
            rot_base(s_cw, s_rA if sw == s_wa else s_rC, c, 5 if sw == s_wa else 12, 20480, sw)
        k(f"s_add_u32 m0, s{s_l5}, {((c + (3 if R == 7 else 0))%R)*20480 + i*1024}")
        k(f"s_add_u32 s{s_t2}, s{s_cw}, {i*1024}")
        k.vmissue(f"buffer_load_dwordx4 v{v_x}, s[{sWS}:{sWS+3}], s{s_t2} offen lds", tag)

    W1LOC = [81920 + c * 12288 for c in range(6)] + [c * 12288 for c in range(4)]

    def w1load(c, i):
        if i == 0:
            rot_base(s_cw, s_rB, c, 10, 12288, s_wb)
        k(f"s_add_u32 m0, s{s_l3}, {W1LOC[c] + i*1024}")
        k(f"s_add_u32 s{s_t2}, s{s_cw}, {i*1024}")
        k.vmissue(f"buffer_load_dwordx4 v{v_x}, s[{sWS}:{sWS+3}], s{s_t2} offen lds", "w1a" if c < 6 else "w1b")

    RA, RXA, PDA = 4, 3, 2
    for i in range(4):
        xload16(0, i, s_xa, RXA, "c0", "")
    for i in range(5):
        wload16(0, i, s_wa, RA, "c0")
    for t in range(5):
        k.vmissue(f"buffer_load_dwordx2 {vr(RES+2*t,2)}, v{v_xg}, s[{sWS}:{sWS+3}], s{s_xg} offen offset:{t*512}", "c0")
    for i in range(4):
        xload16(1, i, s_xa, RXA, "c1", "")
    for i in range(5):
        wload16(1, i, s_wa, RA, "c1")
    k.srd(sB, 8, 1280)
    k.srd(sO, 10, 2048 * 1280)
    k(f"v_and_b32 v{v_q}, 31, v{v_l}")
    k(f"v_lshrrev_b32 v{v_half}, 5, v{v_l}")
    k(f"v_add_u32 v{v_hi1}, 61440, v{v_x}")
    k(f"v_add_u32 v{v_hi2}, 122880, v{v_x}")
    k(f"v_mov_b32 v{v_one}, 0x3f803f80")
    k(f"v_mov_b32 v{v_s1}, 0")
    k(f"v_mov_b32 v{v_s2}, 0")
    k(f"v_add_u32 v{t0}, s{s_tok}, v{v_idx}")
    k(f"v_lshrrev_b32 v{t3}, 5, v{t0}")
    k(f"v_mul_u32_u24 v{v_h}, {640*64}, v{t3}")
    k(f"v_and_b32 v{t3}, 31, v{t0}")
    k(f"v_lshl_add_u32 v{v_h}, v{t3}, 4, v{v_h}")
    k(f"v_lshl_add_u32 v{v_h}, v{t1}, 9, v{v_h}")
    k(f"v_add_u32 v{v_h4}, 4096, v{v_h}")
    k(f"v_lshl_add_u32 v{v_h}, v{t2}, 10, v{v_h}")
    k(f"v_cmp_eq_u32 vcc, 0, v{t2}")
    k(f"v_mov_b32 v{t3}, 0x7ffffff0")
    k(f"v_lshlrev_b32 v{v_st}, 3, v{t0}")
    k(f"v_cndmask_b32 v{v_h4}, v{t3}, v{v_h4}, vcc")
    k(f"v_cmp_eq_u32 vcc, 0, v{v_g}")
    k(f"v_lshlrev_b32 v{v_b8}, 3, v{v_g}")
    k.nop(1)
    k(f"v_cndmask_b32 v{v_st}, v{t3}, v{v_st}, vcc")
    k(f"s_mul_i32 s{s_hoff}, s{s_cb}, 5120")
    k(f"s_add_u32 s{s_hoff}, s{s_hoff}, {WS_H}")
    k(f"s_mul_i32 s{s_rmoff}, s{s_cb}, 160")
    k(f"s_lshl_b32 s{s_cnt}, s{s_g}, 8")
    k(f"s_add_u32 s{s_cnt}, s{s_cnt}, {WS_CNT}")
    k(f"s_lshl_b32 s{s_t}, s{s_g}, 2")
    k(f"s_add_u32 s{s_t}, s{s_t}, s{s_w}")
    k(f"s_mul_i32 s{s_xb}, s{s_t}, {640*64}")
    k(f"s_add_u32 s{s_xb}, s{s_xb}, {WS_H}")
    k(f"s_mul_i32 s{s_l3}, s{s_w}, 3072")
    k(f"s_mul_i32 s{s_wb}, s{s_i}, {640*192}")
    k(f"s_add_u32 s{s_wb}, s{s_wb}, s{s_l3}")
    k(f"s_add_u32 s{s_wb}, s{s_wb}, {WS_W1}")
    k(f"s_mul_i32 s{s_so}, s{s_i}, {12*256}")
    k(f"s_add_u32 s{s_so}, s{s_so}, {WS_H1}")
    k(f"s_mul_i32 s{s_ex}, s{s_i}, 6144")
    k(f"s_add_u32 s{s_ex}, s{s_ex}, {WS_EX}")
    k(f"s_mov_b32 s{s_st}, {WS_ST}")
    k(f"s_lshl_b32 s{s_t}, s{s_t}, 5")
    k(f"v_add_u32 v{t0}, s{s_t}, v{v_q}")
    k(f"v_lshlrev_b32 v{v_sta}, 3, v{t0}")
    k(f"v_lshl_add_u32 v{v_sta}, v{v_half}, 16, v{v_sta}")
    k(f"v_lshrrev_b32 v{t3}, 4, v{t0}")
    k(f"v_mul_u32_u24 v{v_h1a}, {1536*32}, v{t3}")
    k(f"v_and_b32 v{t3}, 15, v{t0}")
    k(f"v_lshl_add_u32 v{v_h1a}, v{t3}, 4, v{v_h1a}")
    k(f"v_lshl_add_u32 v{v_h1a}, v{v_half}, 8, v{v_h1a}")
    k(f"s_mul_i32 s{s_xc}, s{s_tok}, 3072")
    k(f"s_add_u32 s{s_xc}, s{s_xc}, {WS_H1}")
    k(f"s_mul_i32 s{s_wc}, s{s_cb}, {1536*160}")
    k(f"s_add_u32 s{s_wc}, s{s_wc}, s{s_l5}")
    k(f"s_add_u32 s{s_wc}, s{s_wc}, {WS_W2}")
    LDS_OUT = 143360
    k(f"s_mul_i32 s{s_t}, s{s_w}, 2560")
    k(f"s_add_u32 s{s_t}, s{s_t}, {LDS_OUT}")
    k(f"v_mul_u32_u24 v{v_ow}, 160, v{v_idx}")
    k(f"v_add_u32 v{v_ow}, v{v_ow}, v{v_b8}")
    k(f"v_add_u32 v{v_ow}, s{s_t}, v{v_ow}")
    k(f"v_add_u32 v{v_or}, s{s_t}, v{v_x}")
    for i in range(3):
        k(f"v_add_u32 v{t0}, {i*64}, v{v_l}")
        k(f"v_mul_u32_u24 v{t1}, 6554, v{t0}")
        k(f"v_lshrrev_b32 v{t1}, 16, v{t1}")
        k(f"v_mul_u32_u24 v{t2}, 10, v{t1}")
        k(f"v_sub_u32 v{t2}, v{t0}, v{t2}")
        k(f"v_add_u32 v{t1}, s{s_tok}, v{t1}")
        k(f"v_mul_u32_u24 v{t1}, 1280, v{t1}")
        k(f"v_lshl_add_u32 v{OADR+i}, v{t2}, 4, v{t1}")
    k(f"v_cmp_gt_u32 vcc, 32, v{v_l}")
    k(f"v_mov_b32 v{t0}, 0x7ffffff0")
    k.nop(1)
    k(f"v_cndmask_b32 v{OADR+2}, v{t0}, v{OADR+2}, vcc")

    def phase16(NCH, R, RX, side, init, pre=""):
        def read_fn(i, buf):
            c, r = divmod(i, 20)
            b, off = lds_addr(((c + (3 if R == 7 else 0)) % R) * 20480 + r * 1024)
            k(f"ds_read_b128 {vr(AF+4*buf,4)}, v{b} offset:{off}")

        def mfma_fn(i, buf):
            c, r = divmod(i, 20)
            s_, t = divmod(r, 5)
            X = XB + (c % RX) * 16 + 4 * s_
            if i == 0:
                init()
                k.nop(2)
            k(f"v_mfma_f32_16x16x32_bf16 {vr(ACC+4*t,4)}, {vr(AF+4*buf,4)}, {vr(X,4)}, {vr(ACC+4*t,4)}")

        def mk_sync(c):
            def f():
                k.vmwait(f"{pre}c{c}")
                k("s_barrier")
                if False:
                    k.stamp()
            return f
        gemm_pipeline(k, 20 * NCH, D16, lambda j: 1, read_fn, mfma_fn, {20 * c: mk_sync(c) for c in range(NCH)}, side)

    spr = Sprinkle()

    def sideA(i):
        c, r = divmod(i, 20)
        if r == 0:
            if c + PDA < 5:
                for j in range(4):
                    spr.add(lambda j=j, c=c: xload16(c + PDA, j, s_xa, RXA, f"c{c+PDA}", ""))
                for j in range(5):
                    spr.add(lambda j=j, c=c: wload16(c + PDA, j, s_wa, RA, f"c{c+PDA}"))
            if c == W1AT:
                for cc in range(6):
                    for j in range(3):
                        spr.add(lambda j=j, cc=cc: w1load(cc, j))
        spr.emit(1)

    def initA():
        for tt in range(5):
            a = ACC + 4 * tt
            k(f"v_lshlrev_b32 v{a}, 16, v{RES+2*tt}")
            k(f"v_and_b32 v{a+1}, 0xffff0000, v{RES+2*tt}")
            k(f"v_lshlrev_b32 v{a+2}, 16, v{RES+2*tt+1}")
            k(f"v_and_b32 v{a+3}, 0xffff0000, v{RES+2*tt+1}")
    phase16(5, RA, RXA, sideA, initA)
    assert not spr.q
    k.stamp()
    k.nop(4)
    T = AF
    for t in range(5):
        a = ACC + 4 * t
        k(f"v_cvt_pk_bf16_f32 v{HP+2*t}, v{a}, v{a+1}")
        k(f"v_cvt_pk_bf16_f32 v{HP+1+2*t}, v{a+2}, v{a+3}")
    for i in range(10):
        k(f"v_mov_b32 v{T+i}, v{HP+i}")
    k(f"v_mov_b32 v{T+10}, v{HP+8}")
    k(f"v_mov_b32 v{T+11}, v{HP+9}")
    for p in range(3):
        k(f"v_permlane16_swap_b32 v{T+4*p}, v{T+4*p+2}")
        k(f"v_permlane16_swap_b32 v{T+4*p+1}, v{T+4*p+3}")
        if p < 2:
            k.vmissue(f"buffer_store_dwordx4 {vr(T+4*p,4)}, v{v_h}, s[{sWS}:{sWS+3}], s{s_hoff} offen offset:{p*2048} sc1", "st")
        else:
            k.vmissue(f"buffer_store_dwordx4 {vr(T+4*p,4)}, v{v_h4}, s[{sWS}:{sWS+3}], s{s_hoff} offen sc1", "st")
    for i in range(10):
        k(f"v_dot2_f32_bf16 v{v_s1}, v{HP+i}, v{v_one}, v{v_s1}")
        k(f"v_dot2_f32_bf16 v{v_s2}, v{HP+i}, v{HP+i}, v{v_s2}")
    chs = []
    for v, tt in ((v_s1, t0), (v_s2, t1)):
        chs.append([(f"v_mov_b32 v{tt}, v{v}", 3), (f"v_permlane16_swap_b32 v{v}, v{tt}", 2), (f"v_add_f32 v{v}, v{v}, v{tt}", 1),
                    (f"v_mov_b32 v{tt}, v{v}", 0), (f"v_permlane32_swap_b32 v{v}, v{tt}", 2), (f"v_add_f32 v{v}, v{v}, v{tt}", 1)])
    k.nop(3)
    interleave(k, chs)
    k(f"s_lshl_b32 s{s_t}, s{s_cb}, 14")
    k(f"s_add_u32 s{s_t}, s{s_t}, {WS_ST}")
    k.vmissue(f"buffer_store_dwordx2 {vr(v_s1,2)}, v{v_st}, s[{sWS}:{sWS+3}], s{s_t} offen sc1", "st")

    def group_sync(n, pre0, preload, need):
        pre0()
        k.vmwait("st")
        k("s_barrier")
        k.stamp()
        lab = k.newlabel("na")
        k(f"v_mov_b32 v{t0}, 0")
        k(f"v_mov_b32 v{t1}, 1")
        k(f"s_cmp_lg_u32 s{s_w}, 0")
        k(f"s_cbranch_scc1 {lab}")
        k("s_mov_b64 exec, 1")
        k(f"buffer_atomic_add v{t1}, v{t0}, s[{sWS}:{sWS+3}], s{s_cnt} offen offset:{128*n}")
        k("s_mov_b64 exec, -1")
        k.label(lab)
        preload()
        lab2 = k.newlabel("np")
        lp = k.newlabel("poll")
        k(f"s_cmp_lg_u32 s{s_w}, 0")
        k(f"s_cbranch_scc1 {lab2}")
        k(f"s_mov_b32 s{s_spin}, 0x40000")
        k.label(lp)
        k(f"buffer_load_dword v{t1}, v{t0}, s[{sWS}:{sWS+3}], s{s_cnt} offen offset:{128*n} sc1")
        k("s_waitcnt vmcnt(0)")
        k(f"v_readfirstlane_b32 s{s_t}, v{t1}")
        k(f"s_sub_u32 s{s_spin}, s{s_spin}, 1")
        k(f"s_cmp_eq_u32 s{s_spin}, 0")
        k(f"s_cbranch_scc1 {lab2}")
        k(f"s_cmp_lt_u32 s{s_t}, 16")
        k(f"s_cbranch_scc1 {lp}")
        k.label(lab2)
        if need:
            k.vmwait(need)
        k("s_barrier")

    def pre1a():
        for cc in range(6 if W1AT > 4 else 0):
            for j in range(3):
                w1load(cc, j)

    def pre1():
        for cc in range(6, 10):
            for j in range(3):
                w1load(cc, j)
        for t in range(6):
            k(f"s_add_u32 s{s_t2}, s{s_ex}, {t*1024}")
            k.vmissue(f"buffer_load_dwordx4 {vr(EXA+4*t,4)}, v{v_x}, s[{sWS}:{sWS+3}], s{s_t2} offen", "w1b")
    group_sync(0, pre1a, pre1, "w1a")
    k.stamp()
    RC, RXC, PDX = 7, 4, 3

    NXB = 16

    def xb_load(sx):
        if sx % 4 == 0:
            rot_base(s_cx, s_rB, sx // 4, 10, 4096, s_xb)
        k.vmissue(f"buffer_load_dwordx4 {vr(XB+4*(sx%NXB),4)}, v{v_x}, s[{sWS}:{sWS+3}], s{s_cx} offen offset:{(sx%4)*1024} sc1", f"x{sx}")
    for sx in range(4):
        xb_load(sx)
    for j in range(4):
        k(f"s_add_u32 s{s_t2}, s{s_st}, {j*16384}")
        k.vmissue(f"buffer_load_dwordx2 {vr(ST+2*j,2)}, v{v_sta}, s[{sWS}:{sWS+3}], s{s_t2} offen sc1", "stt")
    for sx in range(4, NB0):
        xb_load(sx)
    xnext = [NB0]
    v_mean, v_rstd = E, E + 1

    def stats_code():
        kk = Kern("tmp")
        kk(f"v_add_f32 v{v_s1}, v{ST}, v{ST+2}")
        kk(f"v_add_f32 v{v_s2}, v{ST+1}, v{ST+3}")
        kk(f"v_add_f32 v{ST+4}, v{ST+4}, v{ST+6}")
        kk(f"v_add_f32 v{ST+5}, v{ST+5}, v{ST+7}")
        kk(f"v_add_f32 v{v_s1}, v{v_s1}, v{ST+4}")
        kk(f"v_add_f32 v{v_s2}, v{v_s2}, v{ST+5}")
        xsum_halves(kk, v_s1, t0)
        xsum_halves(kk, v_s2, t0)
        ln_stats(kk, v_s1, v_s2, v_mean, v_rstd, t0, t1)
        kk(f"v_xor_b32 v{t0}, 0x80000000, v{v_mean}")
        kk(f"v_lshrrev_b32 v{BX}, 16, v{t0}")
        kk(f"v_or_b32 v{BX}, v{BX}, v{t0}")
        kk(f"v_cmp_eq_u32 vcc, 0, v{v_half}")
        for r_ in (BX + 1, BX + 2, BX + 3, BX2, BX2 + 1, BX2 + 2):
            kk(f"v_mov_b32 v{r_}, v{BX}")
        kk(f"v_lshrrev_b32 v{t0}, 16, v{t1}")
        kk(f"v_cndmask_b32 v{BX2+3}, v{t0}, v{BX}, vcc")
        kk(f"v_mul_f32 v{v_mean}, v{v_rstd}, v{v_rstd}")
        kk(f"v_mov_b32 v{v_rstd}, v{v_mean}")
        return [l.strip() for l in kk.L]
    spr2 = Sprinkle()

    def b_read(i, buf):
        sx, t = divmod(i, 3)
        c, r = divmod(sx, 4)
        b, off = lds_addr(W1LOC[c] + (r * 3 + t) * 1024)
        k(f"ds_read_b128 {vr(AF+4*buf,4)}, v{b} offset:{off}")

    def b_mfma(i, buf):
        sx, t = divmod(i, 3)
        if t == 0:
            k.vmwait(f"x{sx}")
            if sx in (0, 8, 16, 24, 32):
                k.stamp()
        c0 = "0" if sx == 0 else vr(ACC + 16 * t, 16)
        k(f"v_mfma_f32_32x32x16_bf16 {vr(ACC+16*t,16)}, {vr(AF+4*buf,4)}, {vr(XB+4*(sx%NXB),4)}, {c0}")

    def b_side(i):
        sx, t = divmod(i, 3)
        if xnext[0] < 40 and xnext[0] <= sx + NXB - 1:
            xb_load(xnext[0])
            xnext[0] += 1
        if i == 30:
            for l in stats_code():
                spr2.add(lambda l=l: k(l))
        spr2.emit(2)
        if i == 6:
            for j in range(5):
                spr.add(lambda j=j: wload16(0, j, s_wc, RC, "Cc0"))
        if i == 73:
            k("s_barrier")
            for c in range(1, 4):
                for j in range(5):
                    spr.add(lambda j=j, c=c: wload16(c, j, s_wc, RC, f"Cc{c}"))
        if t != 0:
            spr.emit(1)

    def mid_sync():
        k.vmwait("w1b")
        k("s_barrier")
    gemm_pipeline(k, 120, D32, lambda j: 1, b_read, b_mfma, {72: mid_sync}, b_side)
    assert not spr.q
    assert not spr2.q
    k.stamp()
    for t in range(3):
        k(f"v_mfma_f32_32x32x16_bf16 {vr(ACC+16*t,16)}, {vr(EXA+8*t,4)}, {vr(BX,4)}, {vr(ACC+16*t,16)}")
        k(f"v_mfma_f32_32x32x16_bf16 {vr(ACC+16*t,16)}, {vr(EXA+8*t+4,4)}, {vr(BX2,4)}, {vr(ACC+16*t,16)}")
    k.nop(8)
    TM = XB
    for t in range(3):
        for qp in range(2):
            O4 = XB + 32 + (t * 2 + qp) * 4
            for qq in range(2):
                z = ACC + 16 * t + 8 * qp + 4 * qq
                m = TM + 4 * qq
                for r in range(4):
                    k(f"v_max_f32 v{m+r}, 0, v{z+r}")
                k(f"v_pk_mul_f32 {vr(z,2)}, {vr(z,2)}, {vr(E,2)}")
                k(f"v_pk_mul_f32 {vr(z+2,2)}, {vr(z+2,2)}, {vr(E,2)}")
                k(f"v_pk_mul_f32 {vr(z,2)}, {vr(z,2)}, {vr(m,2)}")
                k(f"v_pk_mul_f32 {vr(z+2,2)}, {vr(z+2,2)}, {vr(m+2,2)}")
                k(f"v_cvt_pk_bf16_f32 v{O4+2*qq}, v{z}, v{z+1}")
                k(f"v_cvt_pk_bf16_f32 v{O4+2*qq+1}, v{z+2}, v{z+3}")
            k.nop(2)
            k(f"v_permlane32_swap_b32 v{O4}, v{O4+2}")
            k(f"v_permlane32_swap_b32 v{O4+1}, v{O4+3}")
            k.vmissue(f"buffer_store_dwordx4 {vr(O4,4)}, v{v_h1a}, s[{sWS}:{sWS+3}], s{s_so} offen offset:{(4*t+2*qp)*256} sc1", "st")

    def pre2():
        for t in range(5):
            k.vmissue(f"buffer_load_dwordx2 {vr(BIA+2*t,2)}, v{v_b8}, s[{sB}:{sB+3}], s{s_rmoff} offen offset:{t*32}", "Cc0")
        for c in range(4, RC):
            for j in range(5):
                wload16(c, j, s_wc, RC, f"Cc{c}")
    group_sync(1, lambda: None, pre2, None)
    k.stamp()

    for c in range(PDX):
        for j in range(4):
            xload16(c, j, s_xc, RXC, f"Cc{c}", "sc1")

    def sideC(i):
        c, r = divmod(i, 20)
        if r == 0:
            if c + PDX < 12:
                for j in range(4):
                    spr.add(lambda j=j, c=c: xload16(c + PDX, j, s_xc, RXC, f"Cc{c+PDX}", "sc1"))
            cw = c - 2 + RC
            if c >= 2 and cw < 12:
                for j in range(5):
                    spr.add(lambda j=j, cw=cw: wload16(cw, j, s_wc, RC, f"Cc{cw}"))
        spr.emit(1)

    def initC():
        for tt in range(5):
            a = ACC + 4 * tt
            k(f"v_lshlrev_b32 v{a}, 16, v{HP+2*tt}")
            k(f"v_and_b32 v{a+1}, 0xffff0000, v{HP+2*tt}")
            k(f"v_lshlrev_b32 v{a+2}, 16, v{HP+2*tt+1}")
            k(f"v_and_b32 v{a+3}, 0xffff0000, v{HP+2*tt+1}")
            k(f"v_lshlrev_b32 v{t0}, 16, v{BIA+2*tt}")
            k(f"v_and_b32 v{t1}, 0xffff0000, v{BIA+2*tt}")
            k(f"v_lshlrev_b32 v{t2}, 16, v{BIA+2*tt+1}")
            k(f"v_and_b32 v{t3}, 0xffff0000, v{BIA+2*tt+1}")
            k(f"v_add_f32 v{a}, v{a}, v{t0}")
            k(f"v_add_f32 v{a+1}, v{a+1}, v{t1}")
            k(f"v_add_f32 v{a+2}, v{a+2}, v{t2}")
            k(f"v_add_f32 v{a+3}, v{a+3}, v{t3}")
    phase16(12, RC, RXC, sideC, initC, pre="C")
    assert not spr.q
    k.stamp()
    k.nop(4)
    for t in range(5):
        a = ACC + 4 * t
        k(f"v_cvt_pk_bf16_f32 v{T+2*t}, v{a}, v{a+1}")
        k(f"v_cvt_pk_bf16_f32 v{T+1+2*t}, v{a+2}, v{a+3}")
        k(f"ds_write_b64 v{v_ow}, {vr(T+2*t,2)} offset:{t*32}")
    k("s_waitcnt lgkmcnt(0)")
    for i in range(3):
        k(f"ds_read_b128 {vr(T+12+4*i,4)}, v{v_or} offset:{i*1024}")
    for i in range(3):
        k(f"s_waitcnt lgkmcnt({2-i})")
        k(f"buffer_store_dwordx4 {vr(T+12+4*i,4)}, v{OADR+i}, s[{sO}:{sO+3}], s{s_rmoff} offen")
    k.stamp_flush(s_w)
    k.label("k3_end")
    k("s_endpgm")
    if HELP:
        k.label("k3_helper")
        HC0 = int(os.environ.get("HC0", "7"))
        k(f"s_mul_i32 s{s_wc}, s{s_cb}, {1536*160}")
        k(f"s_and_b32 s{s_t2}, s{s_tb}, 3")
        k(f"s_mul_i32 s{s_t2}, s{s_t2}, 5120")
        k(f"s_add_u32 s{s_wc}, s{s_wc}, s{s_t2}")
        k(f"s_add_u32 s{s_wc}, s{s_wc}, {WS_W2}")
        k(f"v_lshlrev_b32 v{t0}, 7, v{v_l}")
        k(f"v_cmp_gt_u32 vcc, 40, v{v_l}")
        k(f"v_mov_b32 v{t1}, 0x7fffff00")
        k.nop(1)
        k(f"v_cndmask_b32 v{t0}, v{t1}, v{t0}, vcc")
        if ROTC:
            k(f"s_mul_i32 s{s_rC}, s{s_cb}, 3")
            k(f"s_lshr_b32 s{s_rC}, s{s_rC}, 1")
        else:
            k(f"s_mov_b32 s{s_rC}, 0")
        k("s_waitcnt lgkmcnt(0)")
        k.srd(sWS, 12, WS_SIZE)
        for _ in range(HELP):
            k("s_barrier")
        for c in range(HC0, 12):
            rot_base(s_cw, s_rC, c, 12, 20480, s_wc)
            k(f"buffer_load_dword v{t1}, v{t0}, s[{sWS}:{sWS+3}], s{s_cw} offen")
        for _ in range(9 - HELP):
            k("s_barrier")
        k("s_endpgm")
    return k.text(NV), "k3_kernel", (256, 320 if HELP else 256, 155648)


def gen_kp(order):
    k = Kern("kp_kernel")
    k("s_cmp_ge_u32 s2, 256")
    k("s_cbranch_scc1 kp_end")
    k(f"s_load_dwordx2 s[12:13], s[0:1], {KA['ws']}")
    k("v_and_b32 v1, 63, v0")
    k("s_waitcnt lgkmcnt(0)")
    for ch in order:
        off, nb = {"o": (WS_WO, 800 * 1024), "1": (WS_W1, 1920 * 1024), "2": (WS_W2, 1920 * 1024)}[ch]
        helper_prefetch(k, 48, 12, off, nb, 1, 4, 5, 35, 36)
        k("s_waitcnt vmcnt(0)")
    k.label("kp_end")
    k("s_endpgm")
    return k.text(16), "kp_kernel", (256, 64, 0)


def main(outpath):
    ks = [gen_k1(), gen_k2(), gen_mlp()]
    if os.environ.get("EMPTY"):
        e = Kern("ke_kernel")
        e("s_endpgm")
        for _ in range(int(os.environ["EMPTY"])):
            pass
        ks.append((e.text(8), "ke_kernel", (256, 64, 0)))
    if os.environ.get("KP"):
        ks.insert(2, gen_kp(os.environ["KP"]))
    hdr = open("cdna_kernels/" + NAME + ".s.ref").read().split("\n")
    head = [l for l in hdr if l.startswith(";") and "@launch" not in l and "Override" not in l and "grid=ceil" not in l]
    s = "\n".join(head) + "\n"
    for (_, name, (g, b, lds)) in ks:
        for _rep in range(2 if name[:2] in os.environ.get("DUP", "") else 1):
            s += f"; @launch kernel={name} grid=({g},1,1) block=({b},1,1) lds={lds}\n"
    s += '.amdgcn_target "amdgcn-amd-amdhsa--gfx950"\n.text\n'
    for ((txt, kd), _, _) in ks:
        s += txt
    s += "text_end:\n"
    s += '.section .rodata,"a"\n'
    for ((txt, kd), _, _) in ks:
        s += kd
    open(outpath, "w").write(s)


if __name__ == "__main__":
    main(sys.argv[1] if len(sys.argv) > 1 else "cdna_kernels/" + NAME + ".s")
```

```python
import sys
sys.path.insert(0, "work")
from common import *

WS_WO = 0x1000000
WS_W1 = 0x1100000
WS_W2 = 0x1300000
WS_EX = 0x1500000
WS_ST = 0x1520000
WS_XG = 0x1600000
WS_CNT = 0x1900000
WS_SIZE = 0x1A00000
PD16 = int(os.environ.get("PD16", "2"))
PD32 = int(os.environ.get("PD32", "3"))
NOPF = int(os.environ.get("NOPF", "0"))
PFORDER = os.environ.get("PFORDER", "OXo1")
SC = os.environ.get("SC", "sc1")
SC4 = os.environ.get("SC4", "")
MAP4 = int(os.environ.get("MAP4", "1"))
MAP5 = int(os.environ.get("MAP5", "0"))
ROT = int(os.environ.get("ROT", "0"))
PFT = int(os.environ.get("PFT", "14"))


def gemm_pipeline(k, n, D, nreads, read_fn, mfma_fn, sync_at, side):
    nbuf = D + 1
    for i in range(min(D, n)):
        if i in sync_at:
            sync_at[i]()
        read_fn(i, i % nbuf)
    for i in range(n):
        cnt = sum(nreads(j) for j in range(i + 1, min(i + D, n)))
        assert cnt <= 15
        k(f"s_waitcnt lgkmcnt({cnt})")
        mfma_fn(i, i % nbuf)
        j = i + D
        if j < n:
            if j in sync_at:
                sync_at[j]()
            read_fn(j, j % nbuf)
        side(i)


def sdiv(k, q, r, x, d, tmp):
    m = (2 ** 32 + d - 1) // d
    k(f"s_mul_hi_u32 s{q}, s{x}, {hex(m)}")
    k(f"s_mul_i32 s{tmp}, s{q}, {d}")
    k(f"s_sub_u32 s{r}, s{x}, s{tmp}")


def decode_tb_cb(k, s_tb, s_cb, s_t, s_t2):
    k(f"s_and_b32 s{s_t}, s2, 7")
    k(f"s_lshr_b32 s{s_t2}, s2, 3")
    k(f"s_lshl_b32 s{s_tb}, s{s_t}, 2")
    k(f"s_and_b32 s{s_t}, s{s_t2}, 3")
    k(f"s_add_u32 s{s_tb}, s{s_tb}, s{s_t}")
    k(f"s_lshr_b32 s{s_cb}, s{s_t2}, 2")


def interleave(k, chains):
    pos = [0] * len(chains)
    last = [-100] * len(chains)
    n = 0
    while any(p < len(c) for p, c in zip(pos, chains)):
        did = False
        for i, c in enumerate(chains):
            if pos[i] < len(c) and n - last[i] - 1 >= c[pos[i]][1]:
                k(c[pos[i]][0])
                last[i] = n
                pos[i] += 1
                n += 1
                did = True
        if not did:
            k("s_nop 0")
            n += 1


def helper_prefetch(k, srd, base_pair, off, nbytes, v_l, v_pf, v_dum, s_t, s_t2):
    k.srd(srd, base_pair, nbytes, off)
    k(f"s_lshr_b32 s{s_t}, s2, 3")
    k(f"s_lshl_b32 s{s_t}, s{s_t}, 13")
    k(f"v_lshlrev_b32 v{v_pf}, 7, v{v_l}")
    per = 32 * 64 * 128
    for i in range((nbytes + per - 1) // per):
        k(f"s_add_u32 s{s_t2}, s{s_t}, {i*per}")
        k(f"buffer_load_dword v{v_dum}, v{v_pf}, s[{srd}:{srd+3}], s{s_t2} offen")


class Sprinkle:
    def __init__(self):
        self.q = []

    def add(self, f):
        self.q.append(f)

    def emit(self, n):
        for _ in range(n):
            if self.q:
                self.q.pop(0)()


def frag_src(k, s_src, s_f, NT, S, KS, ld, TN, MT, s_a, s_b, s_c, s_d, s_t):
    sdiv(k, s_b, s_c, s_f, NT, s_t)
    sdiv(k, s_a, s_d, s_b, S, s_t)
    k(f"s_mul_i32 s{s_src}, s{s_d}, {KS*ld}")
    k(f"s_mul_i32 s{s_t}, s{s_a}, {TN*2}")
    k(f"s_add_u32 s{s_src}, s{s_src}, s{s_t}")
    k(f"s_mul_i32 s{s_t}, s{s_c}, {MT*2}")
    k(f"s_add_u32 s{s_src}, s{s_src}, s{s_t}")


def gen_k1():
    k = Kern("k1_kernel")
    R, RXL, PD = 4, 3, 2
    LDS_X = R * 20480
    LDS_KV = LDS_X + RXL * 16384
    LDS_SCR = LDS_KV + 25600
    sX, sW, sKV, sWS = 16, 20, 24, 28
    s_tb, s_cb, s_w, s_t, s_t2, s_off, s_l = 32, 33, 34, 35, 36, 37, 41
    s_ones = 38
    s_qoff = 42
    s_xl = 43
    s_rot = 44
    v_l, v_idx, v_g = 1, 2, 3
    v_w = 5
    v_a = 10
    v_akv = 11
    t0, t1, t2, t3 = 12, 13, 14, 15
    v_sum, v_sq = 16, 18
    v_ones = 20
    XB = 24
    D = 5
    AF = 104
    VAR, VKR = 132, 136
    QAD = 140
    VXS, VXR = 145, 149
    ACC = 160
    CS = 188
    E = 216

    k("s_getpc_b64 s[48:49]")
    k.label("k1_pc")
    k("s_cmp_ge_u32 s2, 256")
    k("s_cbranch_scc1 k1_end")
    k(f"s_load_dwordx4 s[4:7], s[0:1], {KA['x']}")
    k(f"s_load_dwordx4 s[8:11], s[0:1], {KA['wk']}")
    k(f"s_load_dwordx2 s[12:13], s[0:1], {KA['ws']}")
    k("s_sub_u32 s48, s48, k1_pc-k1_kernel")
    k("s_subb_u32 s49, s49, 0")
    k("s_mov_b32 s50, text_end-k1_kernel")
    k("s_mov_b32 s51, 0x00020000")
    k(f"s_lshr_b32 s{s_t}, s2, 3")
    k(f"s_lshl_b32 s{s_t}, s{s_t}, 15")
    k(f"v_lshlrev_b32 v{t0}, 7, v0")
    k(f"buffer_load_dword v{E}, v{t0}, s[48:51], s{s_t} offen")
    k.stamp_init()
    wave_lane_setup(k, s_w, v_l)
    k(f"v_and_b32 v{v_idx}, 15, v{v_l}")
    k(f"v_lshrrev_b32 v{v_g}, 4, v{v_l}")
    decode_tb_cb(k, s_tb, s_cb, s_t, s_t2)
    k(f"s_lshl_b32 s{s_t}, s{s_tb}, 6")
    k(f"s_lshl_b32 s{s_t2}, s{s_w}, 4")
    k(f"s_add_u32 s{s_t}, s{s_t}, s{s_t2}")
    for j in range(4):
        k(f"v_add_u32 v{t0}, {4*j}, v{v_g}")
        k(f"v_xor_b32 v{t1}, v{v_idx}, v{t0}")
        k(f"v_add_u32 v{t0}, s{s_t}, v{t0}")
        k(f"v_mul_u32_u24 v{t0}, 1280, v{t0}")
        k(f"v_lshl_add_u32 v{VXS+j}, v{t1}, 4, v{t0}")
    k(f"s_lshl_b32 s{s_xl}, s{s_w}, 12")
    k(f"s_add_u32 s{s_xl}, s{s_xl}, {LDS_X}")
    k(f"s_mul_i32 s{s_off}, s{s_cb}, 160")
    k(f"s_mul_i32 s{s_t}, s{s_w}, {32*1280}")
    k(f"s_add_u32 s{s_off}, s{s_off}, s{s_t}")
    k(f"s_mul_i32 s{s_l}, s{s_w}, 5120")
    dma_offsets_160(k, v_w, v_l, 1280, t0, t1, t2)
    k("s_waitcnt lgkmcnt(0)")
    k.srd(sX, 4, 2048 * 1280)
    k.srd(sW, 6, 640 * 1280)

    ROT1 = int(os.environ.get("ROT1", "1"))
    s_r1, s_cx1, s_cw1, s_u1 = 56, 57, 58, 59

    def chunk_loads(c):
        fs = []
        for i in range(4):
            def fx(i=i, c=c):
                if i == 0:
                    k(f"s_sub_u32 s{s_cx1}, s{s_r1}, {5 - c}")
                    k(f"s_cselect_b32 s{s_u1}, 5, 0")
                    k(f"s_add_u32 s{s_cx1}, s{s_cx1}, s{s_u1}")
                    k(f"s_mul_i32 s{s_cw1}, s{s_cx1}, {128*1280}")
                    k(f"s_add_u32 s{s_cw1}, s{s_cw1}, s{s_off}")
                    k(f"s_lshl_b32 s{s_cx1}, s{s_cx1}, 8")
                k(f"s_add_u32 m0, s{s_xl}, {(c%RXL)*16384 + i*1024}")
                k.nop(1)
                k.vmissue(f"buffer_load_dwordx4 v{VXS+i}, s[{sX}:{sX+3}], s{s_cx1} offen lds", f"c{c}")
            fs.append(fx)
        for i in range(5):
            def f(i=i, c=c):
                k(f"s_add_u32 m0, s{s_l}, {(c%R)*20480 + i*1024}")
                k.nop(1)
                k.vmissue(f"buffer_load_dwordx4 v{v_w+i}, s[{sW}:{sW+3}], s{s_cw1} offen lds", f"c{c}")
            fs.append(f)
        return fs
    if ROT1:
        k(f"s_and_b32 s{s_t}, s{s_tb}, 3")
        k(f"s_lshl_b32 s{s_t2}, s{s_cb}, 1")
        k(f"s_add_u32 s{s_t}, s{s_t}, s{s_t2}")
        sdiv(k, s_cx1, s_r1, s_t, 5, s_t2)
    else:
        k(f"s_mov_b32 s{s_r1}, 0")
    for f in chunk_loads(0):
        f()
    k.srd(sWS, 12, WS_SIZE)
    k.srd(52, 12, 4096, WS_CNT)
    k(f"s_lshl_b32 s{s_t}, s2, 7")
    k(f"v_mov_b32 v{t0}, 0")
    k.vmissue(f"buffer_store_dword v{t0}, v{t0}, s[52:55], s{s_t} offen", "c1")
    k(f"s_cmp_eq_u32 s{s_cb}, 0")
    k(f"s_cselect_b32 s{sKV}, s8, s10")
    k(f"s_cselect_b32 s{sKV+1}, s9, s11")
    k(f"s_mov_b32 s{sKV+2}, 25600")
    k(f"s_mov_b32 s{sKV+3}, 0x00020000")
    k(f"s_cmp_ge_u32 s{s_cb}, 2")
    k(f"s_cbranch_scc1 k1_nokvload")
    k(f"v_lshlrev_b32 v{t0}, 4, v{v_l}")
    for i in range(7):
        k(f"s_add_u32 s{s_t}, s{s_w}, {4*i}")
        k(f"s_min_u32 s{s_t}, s{s_t}, 24")
        k(f"s_lshl_b32 s{s_t}, s{s_t}, 10")
        k(f"s_add_u32 m0, s{s_t}, {LDS_KV}")
        k(f"s_mul_i32 s{s_t2}, s{s_r1}, 5120")
        k(f"s_add_u32 s{s_t}, s{s_t}, s{s_t2}")
        k(f"s_sub_u32 s{s_t2}, s{s_t}, 25600")
        k(f"s_cselect_b32 s{s_t}, s{s_t}, s{s_t2}")
        k(f"buffer_load_dwordx4 v{t0}, s[{sKV}:{sKV+3}], s{s_t} offen lds")
    k.label("k1_nokvload")
    K1PF = int(os.environ.get("K1PF", "0"))

    def sparse_pf(first_chunk):
        r0 = 128 * first_chunk
        k(f"s_lshr_b32 s{s_t}, s2, 3")
        k(f"s_lshl_b32 s{s_t}, s{s_t}, 2")
        k(f"s_add_u32 s{s_t}, s{s_t}, s{s_w}")
        k(f"s_lshl_b32 s{s_t}, s{s_t}, 13")
        k(f"s_add_u32 s{s_t}, s{s_t}, {r0*1280}")
        k(f"v_lshlrev_b32 v{t0}, 7, v{v_l}")
        k.vmissue(f"buffer_load_dword v{E+1}, v{t0}, s[{sW}:{sW+3}], s{s_t} offen", "c2")
        k(f"s_lshl_b32 s{s_t}, s{s_tb}, 6")
        k(f"s_lshl_b32 s{s_t2}, s{s_cb}, 3")
        k(f"s_add_u32 s{s_t}, s{s_t}, s{s_t2}")
        k(f"s_lshl_b32 s{s_t2}, s{s_w}, 1")
        k(f"s_add_u32 s{s_t}, s{s_t}, s{s_t2}")
        k(f"s_mul_i32 s{s_t}, s{s_t}, 1280")
        k(f"v_mul_u32_u24 v{t0}, 1280, v{v_g}")
        k(f"v_lshl_add_u32 v{t0}, v{v_idx}, 7, v{t0}")
        k(f"v_cmp_gt_u32 vcc, 10, v{v_idx}")
        k(f"v_cmp_gt_u32 s[52:53], 32, v{v_l}")
        k(f"v_mov_b32 v{t1}, 0x7fffff00")
        k("s_and_b64 vcc, vcc, s[52:53]")
        k.nop(1)
        k(f"v_cndmask_b32 v{t0}, v{t1}, v{t0}, vcc")
        k.vmissue(f"buffer_load_dword v{E+2}, v{t0}, s[{sX}:{sX+3}], s{s_t} offen", "c2")
    if K1PF == 2:
        sparse_pf(1)
    for f in chunk_loads(1):
        f()
    if K1PF == 1:
        sparse_pf(2)
    k(f"v_lshrrev_b32 v{t0}, 2, v{v_idx}")
    k(f"v_lshl_add_u32 v{t1}, v{v_g}, 2, v{t0}")
    k(f"v_mul_u32_u24 v{v_a}, 160, v{t1}")
    k(f"v_and_b32 v{t2}, 3, v{v_idx}")
    k(f"v_lshl_add_u32 v{v_a}, v{t2}, 3, v{v_a}")
    k(f"v_lshl_add_u32 v{t1}, v{v_g}, 3, v{t0}")
    k(f"v_mul_u32_u24 v{v_akv}, 40, v{t1}")
    k(f"v_lshl_add_u32 v{v_akv}, v{t2}, 3, v{v_akv}")
    k(f"v_add_u32 v{v_akv}, {LDS_KV}, v{v_akv}")
    k(f"v_lshlrev_b32 v{t3}, 8, v{v_idx}")
    k(f"v_add_u32 v{t3}, s{s_xl}, v{t3}")
    for i in range(4):
        k(f"s_add_u32 s{s_t}, s{s_w}, {i}")
        k(f"s_and_b32 s{s_rot}, s{s_t}, 3")
        k(f"s_mul_i32 s{s_t}, s{s_rot}, 5120")
        k(f"v_add_u32 v{VAR+i}, s{s_t}, v{v_a}")
        k(f"s_mul_i32 s{s_t}, s{s_rot}, 1280")
        k(f"v_add_u32 v{VKR+i}, s{s_t}, v{v_akv}")
        k(f"s_lshl_b32 s{s_t}, s{s_rot}, 2")
        k(f"v_add_u32 v{t0}, s{s_t}, v{v_g}")
        k(f"v_xor_b32 v{t0}, v{t0}, v{v_idx}")
        k(f"v_lshl_add_u32 v{VXR+i}, v{t0}, 4, v{t3}")
    k(f"s_and_b32 s{s_t}, s{s_w}, 1")
    k(f"s_lshl_b32 s{s_t}, s{s_t}, 4")
    k(f"v_add_u32 v{t3}, s{s_t}, v{v_idx}")
    for t in range(5):
        k(f"v_add_u32 v{t0}, {4*t}, v{v_g}")
        k(f"v_mul_u32_u24 v{t1}, 52, v{t0}")
        k(f"v_lshrrev_b32 v{t1}, 8, v{t1}")
        k(f"v_mul_u32_u24 v{t2}, 5, v{t1}")
        k(f"v_sub_u32 v{t0}, v{t0}, v{t2}")
        k(f"v_lshrrev_b32 v{t2}, 1, v{t0}")
        k(f"v_lshl_add_u32 v{t2}, v{t2}, 5, v{t3}")
        k(f"v_lshlrev_b32 v{t2}, 4, v{t2}")
        k(f"v_and_b32 v{QAD+t}, 1, v{t0}")
        k(f"v_lshl_add_u32 v{t2}, v{QAD+t}, 3, v{t2}")
        k(f"v_cmp_eq_u32 vcc, 4, v{t0}")
        k(f"v_lshlrev_b32 v{QAD+t}, 3, v{t3}")
        k(f"v_add_u32 v{QAD+t}, 1024, v{QAD+t}")
        k(f"v_cndmask_b32 v{t2}, v{t2}, v{QAD+t}, vcc")
        k(f"v_mul_u32_u24 v{t1}, {64*1280}, v{t1}")
        k(f"v_add_u32 v{QAD+t}, v{t1}, v{t2}")
    k(f"s_lshl_b32 s{s_qoff}, s{s_cb}, 8")
    k(f"s_lshl_b32 s{s_t}, s{s_tb}, 1")
    k(f"s_add_u32 s{s_qoff}, s{s_qoff}, s{s_t}")
    k(f"s_lshr_b32 s{s_t}, s{s_w}, 1")
    k(f"s_add_u32 s{s_qoff}, s{s_qoff}, s{s_t}")
    k(f"s_mul_i32 s{s_qoff}, s{s_qoff}, 1280")
    k(f"s_add_u32 s{s_qoff}, s{s_qoff}, {WS_Q}")
    k(f"s_mov_b32 s{s_ones}, 0x3f803f80")
    for i in range(4):
        k(f"v_mov_b32 v{v_ones+i}, s{s_ones}")
    for i in range(4):
        k(f"v_mov_b32 v{v_sum+i}, 0")
    for i in range(56):
        k(f"v_mov_b32 v{ACC+i}, 0")
    vm_snapshot = list(k.vm)
    k.stamp()

    def mainloop(mode):
        k.vm = list(vm_snapshot)
        nt = 5 if mode == 'q' else 7
        n = 20 * nt
        spr = Sprinkle()

        def read_fn(i, buf):
            s, t = divmod(i, nt)
            c, ii = divmod(s, 4)
            for j in range(2):
                if t < 5:
                    off = (c % R) * 20480 + j * 2560 + t * 32
                    base = VAR + ii
                else:
                    off = c * 5120 + j * 160 + (t - 5) * 32
                    base = VKR + ii
                k(f"ds_read_b64_tr_b16 {vr(AF+buf*4+2*j,2)}, v{base} offset:{off}")

        def mfma_fn(i, buf):
            s, t = divmod(i, nt)
            c, ii = divmod(s, 4)
            if ii == 0 and t == 0:
                for r in range(16):
                    X = XB + 16 * (c & 1) + r
                    k(f"v_dot2_f32_bf16 v{v_sum+(r&1)}, v{X}, v{v_ones}, v{v_sum+(r&1)}")
                    k(f"v_dot2_f32_bf16 v{v_sq+(r&1)}, v{X}, v{X}, v{v_sq+(r&1)}")
            X = XB + 16 * (c & 1) + 4 * ii
            A = AF + 4 * buf
            swap = (mode == 'v' and t >= 5)
            a, b = (vr(X, 4), vr(A, 4)) if swap else (vr(A, 4), vr(X, 4))
            k(f"v_mfma_f32_16x16x32_bf16 {vr(ACC+4*t,4)}, {a}, {b}, {vr(ACC+4*t,4)}")
            if ii == 0:
                k(f"v_mfma_f32_16x16x32_bf16 {vr(CS+4*t,4)}, {vr(v_ones,4)}, {vr(A,4)}, {vr(CS+4*t,4)}")

        def mk_sync(c):
            def f():
                k.vmwait(f"c{c}")
                for i in range(4):
                    k(f"ds_read_b128 {vr(XB+16*(c&1)+4*i,4)}, v{VXR+i} offset:{(c%RXL)*16384}")
                k("s_barrier")
                if mode == 'q' and c in (0, 1, 4):
                    k.stamp()
            return f
        sync_at = {4 * c * nt: mk_sync(c) for c in range(5)}

        def side(i):
            c, r = divmod(i, 4 * nt)
            if r == 0 and c + PD < 5:
                for g in chunk_loads(c + PD):
                    spr.add(g)
            spr.emit(1)
        gemm_pipeline(k, n, D, lambda j: 2, read_fn, mfma_fn, sync_at, side)
        assert not spr.q
    k(f"s_cmp_eq_u32 s{s_cb}, 0")
    k("s_cbranch_scc1 k1_loop_k")
    k(f"s_cmp_eq_u32 s{s_cb}, 1")
    k("s_cbranch_scc1 k1_loop_v")
    mainloop('q')
    k.label("k1_epi")
    k.stamp()
    k.vm = []
    v_mean, v_rstd = E, E + 1
    BX = E + 4
    LDS_EX = LDS_X
    k(f"s_lshl_b32 s{s_t}, s{s_w}, 8")
    k(f"s_add_u32 s{s_t}, s{s_t}, {LDS_EX}")
    k(f"v_lshlrev_b32 v{t3}, 4, v{v_idx}")
    k(f"v_add_u32 v{t3}, s{s_t}, v{t3}")
    k(f"v_lshlrev_b32 v{t2}, 4, v{v_l}")
    k(f"v_add_u32 v{t2}, {LDS_EX}, v{t2}")
    for t in range(7):
        c = CS + 4 * t
        k(f"v_and_b32 v{c+1}, 0xffff0000, v{c}")
        k(f"v_sub_f32 v{c}, v{c}, v{c+1}")
        k(f"v_and_b32 v{c+2}, 0xffff0000, v{c}")
        k(f"v_sub_f32 v{c+3}, v{c}, v{c+2}")
        k(f"v_lshrrev_b32 v{c}, 16, v{c+1}")
        k(f"v_or_b32 v{c}, v{c}, v{c+2}")
        k(f"v_lshrrev_b32 v{c+1}, 16, v{c+3}")
        k(f"v_mov_b32 v{c+2}, 0")
        k(f"v_mov_b32 v{c+3}, 0")
        k(f"ds_write_b128 v{t3}, {vr(c,4)} offset:{t*1024}")
    k(f"v_add_f32 v{v_sum}, v{v_sum}, v{v_sum+1}")
    k(f"v_add_f32 v{v_sq}, v{v_sq}, v{v_sq+1}")
    k("s_waitcnt lgkmcnt(0)")
    k("s_barrier")
    for t in range(7):
        k(f"ds_read_b128 {vr(XB+4*t,4)}, v{t2} offset:{t*1024}")
    chs = []
    for v, tt in ((v_sum, t0), (v_sq, t1)):
        chs.append([(f"v_mov_b32 v{tt}, v{v}", 0), (f"v_permlane16_swap_b32 v{v}, v{tt}", 2), (f"v_add_f32 v{v}, v{v}, v{tt}", 1),
                    (f"v_mov_b32 v{tt}, v{v}", 0), (f"v_permlane32_swap_b32 v{v}, v{tt}", 2), (f"v_add_f32 v{v}, v{v}, v{tt}", 1)])
    interleave(k, chs)
    ln_stats(k, v_sum, v_sq, v_mean, v_rstd, t0, t1)
    k(f"v_xor_b32 v{t0}, 0x80000000, v{v_mean}")
    k(f"v_lshrrev_b32 v{BX}, 16, v{t0}")
    k(f"v_or_b32 v{BX}, v{BX}, v{t0}")
    k(f"v_mov_b32 v{BX+1}, v{BX}")
    k(f"v_mov_b32 v{BX+2}, 0")
    k(f"v_mov_b32 v{BX+3}, 0")
    v_rs = E + 2
    k(f"v_mul_f32 v{v_rs}, {hex(f2u(QSCALE))}, v{v_rstd}")
    k(f"v_mov_b32 v{v_rs+1}, v{v_rs}")
    k("s_waitcnt lgkmcnt(0)")
    for t in range(5):
        k(f"v_mfma_f32_16x16x32_bf16 {vr(ACC+4*t,4)}, {vr(XB+4*t,4)}, {vr(BX,4)}, {vr(ACC+4*t,4)}")
    k.nop(4)
    O_ = E + 8
    for t in range(5):
        a = ACC + 4 * t
        k(f"v_pk_mul_f32 {vr(a,2)}, {vr(a,2)}, {vr(v_rs,2)}")
        k(f"v_pk_mul_f32 {vr(a+2,2)}, {vr(a+2,2)}, {vr(v_rs,2)}")
        k(f"v_cvt_pk_bf16_f32 v{O_+2*t}, v{a}, v{a+1}")
        k(f"v_cvt_pk_bf16_f32 v{O_+1+2*t}, v{a+2}, v{a+3}")
        k(f"buffer_store_dwordx2 {vr(O_+2*t,2)}, v{QAD+t}, s[{sWS}:{sWS+3}], s{s_qoff} offen")
    k.stamp_flush(s_w)
    k(f"s_cmp_lt_u32 s{s_cb}, 2")
    k("s_cbranch_scc1 k1_kv_epi")
    k.label("k1_end")
    k("s_endpgm")

    k.label("k1_kv_epi")
    s_base, s_u = 39, 40
    k(f"s_lshl_b32 s{s_t}, s{s_tb}, 1")
    k(f"s_lshr_b32 s{s_t2}, s{s_w}, 1")
    k(f"s_add_u32 s{s_t}, s{s_t}, s{s_t2}")
    k(f"s_mul_i32 s{s_base}, s{s_t}, 2560")
    k(f"s_add_u32 s{s_base}, s{s_base}, {WS_KV}")
    k(f"s_and_b32 s{s_u}, s{s_w}, 1")
    k(f"s_cmp_eq_u32 s{s_cb}, 1")
    k("s_cbranch_scc1 k1_epi_v")
    for t in range(5, 7):
        k(f"v_mfma_f32_16x16x32_bf16 {vr(ACC+4*t,4)}, {vr(XB+4*t,4)}, {vr(BX,4)}, {vr(ACC+4*t,4)}")
    P = E + 20
    k(f"v_cmp_eq_u32 vcc, 0, v{v_g}")
    k(f"s_lshl_b32 s{s_t}, s{s_u}, 4")
    k(f"v_add_u32 v{t1}, s{s_t}, v{v_idx}")
    k(f"v_lshrrev_b32 v{t2}, 1, v{v_g}")
    k(f"v_lshl_add_u32 v{t2}, v{t2}, 5, v{t1}")
    k(f"v_lshlrev_b32 v{t2}, 4, v{t2}")
    k(f"v_and_b32 v{t3}, 1, v{v_g}")
    k(f"v_lshl_add_u32 v{t2}, v{t3}, 3, v{t2}")
    k(f"v_lshlrev_b32 v{t0}, 3, v{t1}")
    k(f"v_add_u32 v{t0}, 2304, v{t0}")
    k(f"v_mov_b32 v{t1}, 0x7ffffff8")
    k(f"v_cndmask_b32 v{t1}, v{t1}, v{t0}, vcc")
    for r in range(8):
        k(f"v_mul_f32 v{ACC+20+r}, v{ACC+20+r}, v{v_rstd}")
    k(f"v_cvt_pk_bf16_f32 v{P}, v{ACC+20}, v{ACC+21}")
    k(f"v_cvt_pk_bf16_f32 v{P+1}, v{ACC+22}, v{ACC+23}")
    k(f"v_cvt_pk_bf16_f32 v{P+2}, v{ACC+24}, v{ACC+25}")
    k(f"v_cvt_pk_bf16_f32 v{P+3}, v{ACC+26}, v{ACC+27}")
    k(f"v_cndmask_b32 v{P+2}, 0, v{P+2}, vcc")
    k(f"v_cndmask_b32 v{P+3}, 0, v{P+3}, vcc")
    k(f"buffer_store_dwordx2 {vr(P,2)}, v{t2}, s[{sWS}:{sWS+3}], s{s_base} offen")
    k(f"buffer_store_dwordx2 {vr(P+2,2)}, v{t1}, s[{sWS}:{sWS+3}], s{s_base} offen")
    k(f"v_mov_b32 v{t3}, 0")
    for i in range(4):
        k(f"v_dot2_f32_bf16 v{t3}, v{P+i}, v{P+i}, v{t3}")
    k.nop(3)
    xsum_rows(k, t3, t0)
    for sh in (8, 4, 2, 1):
        k.nop(2)
        k(f"v_max_f32_dpp v{t3}, v{t3}, v{t3} row_ror:{sh} row_mask:0xf bank_mask:0xf")
    k(f"s_lshl_b32 s{s_t}, s{s_tb}, 2")
    k(f"s_add_u32 s{s_t}, s{s_t}, s{s_w}")
    k(f"s_lshl_b32 s{s_t}, s{s_t}, 2")
    k(f"s_add_u32 s{s_t}, s{s_t}, {WS_KMAX}")
    k(f"v_mov_b32 v{t2}, 0")
    k(f"buffer_store_dword v{t3}, v{t2}, s[{sWS}:{sWS+3}], s{s_t} offen")
    k("s_endpgm")
    k.label("k1_epi_v")
    for t in range(5, 7):
        k(f"v_mfma_f32_16x16x32_bf16 {vr(ACC+4*t,4)}, {vr(BX,4)}, {vr(XB+4*t,4)}, {vr(ACC+4*t,4)}")
    k(f"s_lshl_b32 s{s_t}, s{s_w}, 6")
    k(f"s_add_u32 s{s_t}, s{s_t}, {LDS_SCR}")
    k(f"v_lshlrev_b32 v{t2}, 2, v{v_idx}")
    k(f"v_add_u32 v{t2}, s{s_t}, v{t2}")
    k(f"ds_write_b32 v{t2}, v{v_rstd}")
    k(f"v_lshlrev_b32 v{t2}, 4, v{v_g}")
    k(f"v_add_u32 v{t2}, s{s_t}, v{t2}")
    k("s_waitcnt lgkmcnt(0)")
    R4 = XB + 32
    k(f"ds_read_b128 {vr(R4,4)}, v{t2}")
    k(f"v_and_b32 v{t1}, 1, v{v_g}")
    k(f"s_lshl_b32 s{s_t}, s{s_u}, 1")
    k(f"v_add_u32 v{t1}, s{s_t}, v{t1}")
    k(f"v_mul_u32_u24 v{t1}, 20, v{t1}")
    k(f"v_add_u32 v{t1}, v{t1}, v{v_idx}")
    k(f"v_lshlrev_b32 v{t1}, 4, v{t1}")
    k(f"v_lshrrev_b32 v{t2}, 1, v{v_g}")
    k(f"v_lshl_add_u32 v{t1}, v{t2}, 3, v{t1}")
    k(f"v_cmp_gt_u32 vcc, 4, v{v_idx}")
    k(f"v_mov_b32 v{t2}, 0x7ffffff8")
    k.nop(1)
    k(f"v_cndmask_b32 v{t0}, v{t2}, v{t1}, vcc")
    k("s_waitcnt lgkmcnt(0)")
    for t in range(5, 7):
        for r in range(4):
            a = ACC + 4 * t + r
            k(f"v_mul_f32 v{a}, v{a}, v{R4+r}")
        k(f"v_cvt_pk_bf16_f32 v{P+2*(t-5)}, v{ACC+4*t}, v{ACC+4*t+1}")
        k(f"v_cvt_pk_bf16_f32 v{P+2*(t-5)+1}, v{ACC+4*t+2}, v{ACC+4*t+3}")
    k(f"buffer_store_dwordx2 {vr(P,2)}, v{t1}, s[{sWS}:{sWS+3}], s{s_base} offen offset:1024")
    k(f"buffer_store_dwordx2 {vr(P+2,2)}, v{t0}, s[{sWS}:{sWS+3}], s{s_base} offen offset:{1024+256}")
    k("s_endpgm")

    k.label("k1_loop_k")
    mainloop('k')
    k("s_branch k1_epi")
    k.label("k1_loop_v")
    mainloop('v')
    k("s_branch k1_epi")

    return k.text(248), "k1_kernel", (256, 256, LDS_SCR + 512)


def gen_k2():
    k = Kern("k2_kernel")
    sWS, sKVs = 16, 20
    s_tb, s_hg, s_w, s_t, s_t2, s_kh, s_cnt, s_h, s_dma = 32, 33, 34, 35, 36, 38, 39, 40, 41
    s_vm = 42
    s_lo = 50
    s_a, s_b, s_c, s_d = 54, 55, 56, 57
    v_l, v_q, v_half = 1, 2, 3
    t0, t1, t2, t3 = 4, 5, 6, 7
    v_k1, v_k2, v_v = 8, 9, 10
    v_dma = 11
    v_km = 12
    v_oa = 13
    QA1, QA2, QB1, QB2 = 16, 20, 24, 28
    SA, SB = 32, 48
    PA, PB = 64, 72
    OA, OB = 80, 96
    KF = 112
    VF = 128
    MX = 144
    NV = 152

    k("s_cmp_ge_u32 s2, 256")
    k("s_cbranch_scc1 k2_end")
    k.stamp_init()
    k(f"s_load_dwordx2 s[12:13], s[0:1], {KA['ws']}")
    k(f"s_load_dwordx4 s[4:7], s[0:1], {KA['w1']}")
    k(f"s_load_dwordx2 s[8:9], s[0:1], {KA['w2']}")
    wave_lane_setup(k, s_w, v_l)
    k(f"v_and_b32 v{v_q}, 31, v{v_l}")
    k(f"v_lshrrev_b32 v{v_half}, 5, v{v_l}")
    k(f"v_lshlrev_b32 v{v_dma}, 4, v{v_l}")
    k(f"s_cmp_ge_u32 s{s_w}, 8")
    k("s_cbranch_scc1 k2_helper")
    decode_tb_cb(k, s_tb, s_hg, s_t, s_t2)
    k(f"s_lshr_b32 s{s_kh}, s{s_w}, 2")
    k(f"s_and_b32 s{s_t}, s{s_w}, 3")
    k(f"s_lshl_b32 s{s_h}, s{s_hg}, 2")
    k(f"s_add_u32 s{s_h}, s{s_h}, s{s_t}")
    k(f"v_lshlrev_b32 v{t0}, 3, v{v_q}")
    k(f"v_lshlrev_b32 v{t2}, 3, v{v_l}")
    k(f"s_mul_i32 s{s_dma}, s{s_kh}, 81920")
    k(f"s_and_b32 s{s_t2}, s{s_w}, 3")
    k(f"s_lshl_b32 s{s_t2}, s{s_t2}, 10")
    k(f"s_add_u32 s{s_dma}, s{s_dma}, s{s_t2}")
    k(f"s_lshl_b32 s{s_t}, s{s_h}, 6")
    k(f"s_lshl_b32 s{s_t2}, s{s_tb}, 1")
    k(f"s_add_u32 s{s_t}, s{s_t}, s{s_t2}")
    k(f"s_mul_i32 s{s_t}, s{s_t}, 1280")
    k(f"s_add_u32 s{s_t}, s{s_t}, {WS_Q}")
    k(f"s_mov_b32 s{s_a}, {WS_KMAX}")
    k("s_waitcnt lgkmcnt(0)")
    k.srd(sWS, 12, WS_SIZE)
    k.srd(sKVs, 12, 163840, WS_KV)

    def dma(i, tag):
        k(f"s_add_u32 m0, s{s_dma}, {i*4096}")
        k(f"s_add_u32 s{s_b}, s{s_dma}, {i*4096}")
        k.vmissue(f"buffer_load_dwordx4 v{v_dma}, s[{sKVs}:{sKVs+3}], s{s_b} offen lds", tag)
    k.vmissue(f"buffer_load_dwordx4 {vr(QA1,4)}, v{v_dma}, s[{sWS}:{sWS+3}], s{s_t} offen", "q")
    k.vmissue(f"buffer_load_dwordx2 {vr(QA2,2)}, v{t0}, s[{sWS}:{sWS+3}], s{s_t} offen offset:1024", "q")
    k.vmissue(f"buffer_load_dwordx4 {vr(QB1,4)}, v{v_dma}, s[{sWS}:{sWS+3}], s{s_t} offen offset:1280", "q")
    k.vmissue(f"buffer_load_dwordx2 {vr(QB2,2)}, v{t0}, s[{sWS}:{sWS+3}], s{s_t} offen offset:2304", "q")
    k.vmissue(f"buffer_load_dwordx2 {vr(MX,2)}, v{t2}, s[{sWS}:{sWS+3}], s{s_a} offen", "q")
    for i in range(2):
        dma(i, "stA")
    STBPOS = int(os.environ.get("STBPOS", "2"))
    if STBPOS == 0:
        for i in range(2, 8):
            dma(i, "stB")
    k(f"s_mov_b32 s{s_vm}, 0x000fffff")
    k(f"s_mov_b32 s{s_vm+1}, 0x000fffff")
    k(f"s_mov_b32 s{s_lo}, -1")
    k(f"s_mov_b32 s{s_lo+1}, 0")
    s_fl = 37
    k(f"s_lshl_b32 s{s_fl}, s{s_w}, 2")
    k(f"s_mul_i32 s{s_t}, s{s_kh}, 81920")
    k(f"v_add_u32 v{v_k1}, s{s_t}, v{v_dma}")
    k(f"v_add_u32 v{v_k2}, s{s_t}, v{t0}")
    k(f"v_mul_u32_u24 v{v_v}, 20, v{v_half}")
    k(f"v_add_u32 v{v_v}, v{v_v}, v{v_q}")
    k(f"v_lshlrev_b32 v{v_v}, 4, v{v_v}")
    k(f"v_add_u32 v{v_v}, s{s_t}, v{v_v}")
    for b in range(2):
        k(f"v_mov_b32 v{KF+8*b+4}, 0x3f803f80")
        k(f"v_mov_b32 v{KF+8*b+5}, 0x00003f80")
    k(f"v_and_b32 v{t2}, 27, v{v_q}")
    k(f"v_cmp_eq_u32 vcc, 24, v{t2}")
    k(f"v_mov_b32 v{t3}, 0x3f803f80")
    k.nop(1)
    k(f"v_cndmask_b32 v{t3}, 0, v{t3}, vcc")
    for i in range(16):
        k(f"v_mov_b32 v{VF+i}, v{t3}")
    for i in range(32):
        k(f"v_mov_b32 v{OA+i}, 0")
    for i in range(8):
        k(f"v_mov_b32 v{PB+i}, 0")
    mA, mB = MX + 4, MX + 5
    k(f"v_mov_b32 v{mA}, 0")
    k(f"v_mov_b32 v{mB}, 0")
    k(f"v_cmp_eq_u32 vcc, 0, v{v_half}")
    k.vmwait("q")
    if STBPOS == 1:
        for i in range(2, 8):
            dma(i, "stB")
    for Q2 in (QA2, QB2):
        k(f"v_cndmask_b32 v{Q2}, 0, v{Q2}, vcc")
        k(f"v_cndmask_b32 v{Q2+1}, 0, v{Q2+1}, vcc")
    chK = [(f"v_max_f32 v{v_km}, v{MX}, v{MX+1}", 0)]
    for sh in (8, 4, 2, 1):
        chK.append((f"v_max_f32_dpp v{v_km}, v{v_km}, v{v_km} row_ror:{sh} row_mask:0xf bank_mask:0xf", 2))
    chK += [(f"v_mov_b32 v{t0}, v{v_km}", 0), (f"v_permlane16_swap_b32 v{v_km}, v{t0}", 2), (f"v_max_f32 v{v_km}, v{v_km}, v{t0}", 1),
            (f"v_mov_b32 v{t0}, v{v_km}", 0), (f"v_permlane32_swap_b32 v{v_km}, v{t0}", 2), (f"v_max_f32 v{v_km}, v{v_km}, v{t0}", 1)]
    chs = [chK]
    for (Q1, Q2, m, tt) in ((QA1, QA2, mA, t1), (QB1, QB2, mB, t2)):
        c = [(f"v_dot2_f32_bf16 v{m}, v{r}, v{r}, v{m}", 0) for r in (Q1, Q1 + 1, Q1 + 2, Q1 + 3, Q2, Q2 + 1)]
        c += [(f"v_mov_b32 v{tt}, v{m}", 3), (f"v_permlane32_swap_b32 v{m}, v{tt}", 2), (f"v_add_f32 v{m}, v{m}, v{tt}", 1)]
        chs.append(c)
    interleave(k, chs)
    chs = []
    for (Q2, m) in ((QA2, mA), (QB2, mB)):
        chs.append([(f"v_mul_f32 v{m}, v{m}, v{v_km}", 0), (f"v_sqrt_f32 v{m}, v{m}", 0),
                    (f"v_mul_f32 v{m}, {hex(f2u(1.0 + 2**-6))}, v{m}", 1),
                    (f"v_lshrrev_b32 v{m}, 16, v{m}", 0), (f"v_add_u32 v{m}, 0x8001, v{m}", 0),
                    (f"v_cndmask_b32 v{Q2}, v{m}, v{Q2}, vcc", 0)])
    interleave(k, chs)

    def split_m(Q2, m):
        k(f"v_sub_f32 v{t0}, 0, v{m}")
        k(f"v_and_b32 v{t1}, 0xffff0000, v{t0}")
        k(f"v_sub_f32 v{t0}, v{t0}, v{t1}")
        k(f"v_and_b32 v{t2}, 0xffff0000, v{t0}")
        k(f"v_sub_f32 v{t0}, v{t0}, v{t2}")
        k(f"v_lshrrev_b32 v{t1}, 16, v{t1}")
        k(f"v_or_b32 v{t1}, v{t1}, v{t2}")
        k(f"v_lshrrev_b32 v{t0}, 16, v{t0}")
        k(f"v_cndmask_b32 v{Q2}, v{t1}, v{Q2}, vcc")
        k(f"v_cndmask_b32 v{Q2+1}, v{t0}, v{Q2+1}, vcc")

    BASE_SW = 24

    def toff(t):
        return (t - BASE_SW if t >= BASE_SW else t) * 2560
    adv = {"k": False, "v": False}

    def rdK(t, keep=False):
        if t > 31 or ("nolds" in K2VAR and t > 1):
            return
        if t >= BASE_SW and not adv["k"]:
            adv["k"] = True
            k(f"v_add_u32 v{v_k1}, {BASE_SW*2560}, v{v_k1}")
            k(f"v_add_u32 v{v_k2}, {BASE_SW*2560}, v{v_k2}")
        buf = t & 1
        k(f"ds_read_b128 {vr(KF+8*buf,4)}, v{v_k1} offset:{toff(t)}")
        k(f"s_mov_b64 exec, s[{s_lo}:{s_lo+1}]")
        k(f"ds_read_b64 {vr(KF+8*buf+4,2)}, v{v_k2} offset:{toff(t)+2304}")
        if not keep:
            k("s_mov_b64 exec, -1")

    def rdV(t):
        if t > 31 or ("nolds" in K2VAR and t > 1):
            return
        if t >= BASE_SW and not adv["v"]:
            adv["v"] = True
            k(f"v_add_u32 v{v_v}, {BASE_SW*2560}, v{v_v}")
        buf = t & 1
        if "noexec" not in K2VAR: k(f"s_mov_b64 exec, s[{s_vm}:{s_vm+1}]")
        k(f"ds_read_b128 {vr(VF+8*buf,4)}, v{v_v} offset:{toff(t)+1024}")
        k(f"ds_read_b128 {vr(VF+8*buf+4,4)}, v{v_v} offset:{toff(t)+1024+640}")
        if "noexec" not in K2VAR: k("s_mov_b64 exec, -1")

    def qk(S, Q1, Q2, buf):
        return [f"v_mfma_f32_32x32x16_bf16 {vr(S,16)}, {vr(KF+8*buf,4)}, {vr(Q1,4)}, 0",
                f"v_mfma_f32_32x32x8_bf16 {vr(S,16)}, {vr(KF+8*buf+4,2)}, {vr(Q2,2)}, {vr(S,16)}"]

    def pv(O, P, buf):
        return [f"v_mfma_f32_32x32x16_bf16 {vr(O,16)}, {vr(VF+8*buf,4)}, {vr(P,4)}, {vr(O,16)}",
                f"v_mfma_f32_32x32x16_bf16 {vr(O,16)}, {vr(VF+8*buf+4,4)}, {vr(P+4,4)}, {vr(O,16)}"]

    def phase(S, P, mf, pre=None):
        for gidx in range(4):
            if pre and gidx == 0:
                pre()
            if mf[gidx] and "nomfma" not in K2VAR and not ("nopv" in K2VAR and gidx >= 2) and not ("noqk2" in K2VAR and gidx == 1):
                k(mf[gidx])
            elif mf[gidx] and "pad" in K2VAR:
                k("s_nop 1")
            for i in range(4):
                r = S + 4 * gidx + i
                if "noexp" in K2VAR:
                    k(f"s_nop 1")
                else:
                    k(f"v_exp_f32 v{r}, v{r}")
            if gidx > 0:
                g0 = gidx - 1
                k(f"v_cvt_pk_bf16_f32 v{P+2*g0}, v{S+4*g0}, v{S+4*g0+1}")
                k(f"v_cvt_pk_bf16_f32 v{P+2*g0+1}, v{S+4*g0+2}, v{S+4*g0+3}")
        k(f"v_cvt_pk_bf16_f32 v{P+6}, v{S+12}, v{S+13}")
        k(f"v_cvt_pk_bf16_f32 v{P+7}, v{S+14}, v{S+15}")

    k.stamp()
    k.vmwait("stA")
    k("s_barrier")
    k.stamp()
    rdK(0)
    rdV(0)
    rdK(1)
    k("s_waitcnt lgkmcnt(4)")
    for m in qk(SA, QA1, QA2, 0):
        k(m)
    if STBPOS == 2:
        for i in range(2, 8):
            dma(i, "stB")
    else:
        k.nop(12)
    for t in range(32):
        b = t & 1
        prio = {0: 3, 1: 2, 2: 3, 7: 2, 9: 1, 10: 0, 11: 3, 25: 2, 29: 1, 31: 0}
        if t in prio:
            k(f"s_setprio {prio[t]}")
        mf = qk(SB, QB1, QB2, b) + pv(OB, PB, b ^ 1)
        phase(SA, PA, mf)

        def pre(t=t):
            k("s_waitcnt lgkmcnt(0)")
            if t == 1:
                k.vmwait("stB")
                k("s_barrier")
                k(f"v_mov_b32 v{t0}, 0")
                k(f"v_mov_b32 v{t1}, s{s_fl}")
                k(f"ds_write_b32 v{t1}, v{t0}")
            if t == 10:
                k("s_barrier")
            rdK(t + 2, keep=(t + 1 != BASE_SW))
            rdV(t + 1)
        mf = (qk(SA, QA1, QA2, b ^ 1) if t < 31 else [None, None]) + pv(OA, PA, b)
        phase(SB, PB, mf, pre=pre)
    k.stamp()
    k.nop(2)
    for m in pv(OB, PB, 1):
        k(m)
    k(f"s_mul_i32 s{s_t}, s{s_kh}, 81920")
    k(f"s_and_b32 s{s_t2}, s{s_w}, 3")
    k(f"s_mul_i32 s{s_t2}, s{s_t2}, 3328")
    k(f"s_add_u32 s{s_t2}, s{s_t2}, 1024")
    k(f"s_add_u32 s{s_a}, s{s_t}, s{s_t2}")
    k(f"s_xor_b32 s{s_t}, s{s_kh}, 1")
    k(f"s_mul_i32 s{s_t}, s{s_t}, 81920")
    k(f"s_add_u32 s{s_b}, s{s_t}, s{s_t2}")
    k(f"v_add_u32 v{t0}, s{s_a}, v{v_dma}")
    k(f"v_add_u32 v{t1}, s{s_b}, v{v_dma}")
    k(f"v_lshlrev_b32 v{t2}, 2, v{v_l}")
    k(f"v_add_u32 v{t3}, s{s_b}, v{t2}")
    k(f"v_add_u32 v{t2}, s{s_a}, v{t2}")
    k(f"s_cmp_eq_u32 s{s_kh}, 0")
    k("s_cbranch_scc1 k2_send0")
    for i in range(3):
        k(f"ds_write_b128 v{t0}, {vr(OA+4*i,4)} offset:{i*1024}")
    k(f"ds_write_b32 v{t2}, v{OA+12} offset:3072")
    k(f"v_mov_b32 v{MX+6}, 1")
    k(f"v_mov_b32 v{MX+7}, s{s_fl}")
    k("s_waitcnt lgkmcnt(0)")
    k(f"ds_write_b32 v{MX+7}, v{MX+6}")
    for i in range(13):
        k(f"v_mov_b32 v{OA+i}, v{OB+i}")
    for i in range(8):
        k(f"v_mov_b32 v{QA1+i}, v{QB1+i}")
    k("s_branch k2_sent")
    k.label("k2_send0")
    k.nop(4)
    for i in range(3):
        k(f"ds_write_b128 v{t0}, {vr(OB+4*i,4)} offset:{i*1024}")
    k(f"ds_write_b32 v{t2}, v{OB+12} offset:3072")
    k(f"v_mov_b32 v{MX+6}, 1")
    k(f"v_mov_b32 v{MX+7}, s{s_fl}")
    k("s_waitcnt lgkmcnt(0)")
    k(f"ds_write_b32 v{MX+7}, v{MX+6}")
    k.label("k2_sent")
    v_a0 = MX
    k(f"s_lshl_b32 s{s_t}, s{s_tb}, 6")
    k(f"s_lshl_b32 s{s_t2}, s{s_kh}, 5")
    k(f"s_add_u32 s{s_t}, s{s_t}, s{s_t2}")
    k(f"v_add_u32 v{v_a0}, s{s_t}, v{v_q}")
    k(f"v_lshrrev_b32 v{v_a0+1}, 4, v{v_a0}")
    k(f"v_mul_u32_u24 v{v_a0+1}, {80*256}, v{v_a0+1}")
    k(f"v_and_b32 v{v_a0}, 15, v{v_a0}")
    k(f"v_lshl_add_u32 v{v_a0+1}, v{v_a0}, 4, v{v_a0+1}")
    k(f"s_mul_i32 s{s_t}, s{s_h}, 5")
    for i, dg in enumerate((0, 2, 4)):
        k(f"v_add_u32 v{v_a0}, s{s_t}, v{v_half}")
        k(f"v_add_u32 v{v_a0}, {dg}, v{v_a0}")
        k(f"v_lshrrev_b32 v{v_a0+2}, 1, v{v_a0}")
        k(f"v_lshl_add_u32 v{v_a0+2}, v{v_a0+2}, 8, v{v_a0+1}")
        k(f"v_and_b32 v{v_a0}, 1, v{v_a0}")
        k(f"v_lshl_add_u32 v{v_oa+i}, v{v_a0}, 3, v{v_a0+2}")
    k(f"v_cmp_eq_u32 vcc, 0, v{v_half}")
    k(f"v_mov_b32 v{v_a0}, 0x7ffffff8")
    k.nop(1)
    k(f"v_cndmask_b32 v{v_oa+2}, v{v_a0}, v{v_oa+2}, vcc")
    k(f"v_xor_b32 v{MX+7}, 16, v{MX+7}")
    k("s_setprio 0")
    k.label("k2_poll")
    k(f"ds_read_b32 v{MX+6}, v{MX+7}")
    k("s_waitcnt lgkmcnt(0)")
    k(f"v_readfirstlane_b32 s{s_t}, v{MX+6}")
    k.nop(1)
    k(f"s_cmp_eq_u32 s{s_t}, 1")
    k("s_cbranch_scc1 k2_polled")
    k("s_sleep 2")
    k("s_branch k2_poll")
    k.label("k2_polled")
    for i in range(3):
        k(f"ds_read_b128 {vr(OB+4*i,4)}, v{t1} offset:{i*1024}")
    k(f"ds_read_b32 v{OB+12}, v{t3} offset:3072")
    k("s_waitcnt lgkmcnt(0)")
    k(f"v_add_f32 v{OA+12}, v{OA+12}, v{OB+12}")
    for i in range(12):
        k(f"v_add_f32 v{OA+i}, v{OA+i}, v{OB+i}")
    k(f"v_cmp_nle_f32 vcc, {hex(f2u(2.0**-64))}, v{OA+12}")
    k(f"s_mov_b64 s[{s_a}:{s_a+1}], vcc")
    k(f"v_cmp_nge_f32 vcc, {hex(f2u(2.0**64))}, v{OA+12}")
    k.nop(2)
    k(f"s_or_b64 vcc, vcc, s[{s_a}:{s_a+1}]")
    if "no" not in K2VAR: k("s_cbranch_vccnz k2_fallback")
    k.label("k2_final")
    k(f"v_rcp_f32 v{t3}, v{OA+12}")
    k.nop(1)
    for i in range(12):
        k(f"v_mul_f32 v{OA+i}, v{OA+i}, v{t3}")
    for i in range(6):
        k(f"v_cvt_pk_bf16_f32 v{PA+i}, v{OA+2*i}, v{OA+2*i+1}")
    k(f"s_mov_b32 s{s_t}, {WS_O}")
    for i in range(3):
        k(f"buffer_store_dwordx2 {vr(PA+2*i,2)}, v{v_oa+i}, s[{sWS}:{sWS+3}], s{s_t} offen")
    k.stamp_flush(s_w)
    k.label("k2_end")
    k("s_endpgm")
    k.label("k2_fallback")
    k(f"v_cmp_eq_u32 vcc, 0, v{v_half}")
    k.nop(2)
    k(f"v_cndmask_b32 v{QA2}, 0, v{QA2}, vcc")
    k(f"v_cndmask_b32 v{QA2+1}, 0, v{QA2+1}, vcc")
    k(f"v_mov_b32 v{mA}, 0xff800000")
    k(f"v_lshlrev_b32 v{v_k2}, 3, v{v_q}")
    k(f"v_mul_u32_u24 v{v_v}, 20, v{v_half}")
    k(f"v_add_u32 v{v_v}, v{v_v}, v{v_q}")
    k(f"v_lshlrev_b32 v{v_v}, 4, v{v_v}")
    k(f"s_mov_b32 s{s_cnt}, 0")
    k.label("k2_fb_max")
    k(f"buffer_load_dwordx4 {vr(KF,4)}, v{v_dma}, s[{sKVs}:{sKVs+3}], s{s_cnt} offen")
    k(f"s_mov_b64 exec, s[{s_lo}:{s_lo+1}]")
    k(f"buffer_load_dwordx2 {vr(KF+4,2)}, v{v_k2}, s[{sKVs}:{sKVs+3}], s{s_cnt} offen offset:2304")
    k("s_mov_b64 exec, -1")
    k("s_waitcnt vmcnt(0)")
    for m in qk(SA, QA1, QA2, 0):
        k(m)
    k.nop(16)
    for i in range(8):
        k(f"v_max3_f32 v{mA}, v{SA+2*i}, v{SA+2*i+1}, v{mA}")
    k(f"s_add_u32 s{s_cnt}, s{s_cnt}, 2560")
    k(f"s_cmp_lt_u32 s{s_cnt}, 163840")
    k("s_cbranch_scc1 k2_fb_max")
    k(f"v_mov_b32 v{t0}, v{mA}")
    k.nop(2)
    k(f"v_permlane32_swap_b32 v{mA}, v{t0}")
    k.nop(2)
    k(f"v_max_f32 v{mA}, v{mA}, v{t0}")
    k(f"v_cmp_eq_u32 vcc, 0, v{v_half}")
    split_m(QA2, mA)
    for i in range(16):
        k(f"v_mov_b32 v{OA+i}, 0")
    k(f"s_mov_b32 s{s_cnt}, 0")
    k.label("k2_fb_main")
    k(f"buffer_load_dwordx4 {vr(KF,4)}, v{v_dma}, s[{sKVs}:{sKVs+3}], s{s_cnt} offen")
    k(f"s_mov_b64 exec, s[{s_lo}:{s_lo+1}]")
    k(f"buffer_load_dwordx2 {vr(KF+4,2)}, v{v_k2}, s[{sKVs}:{sKVs+3}], s{s_cnt} offen offset:2304")
    k(f"s_mov_b64 exec, s[{s_vm}:{s_vm+1}]")
    k(f"buffer_load_dwordx4 {vr(VF,4)}, v{v_v}, s[{sKVs}:{sKVs+3}], s{s_cnt} offen offset:1024")
    k(f"buffer_load_dwordx4 {vr(VF+4,4)}, v{v_v}, s[{sKVs}:{sKVs+3}], s{s_cnt} offen offset:1664")
    k("s_mov_b64 exec, -1")
    k("s_waitcnt vmcnt(0)")
    for m in qk(SA, QA1, QA2, 0):
        k(m)
    k.nop(16)
    for i in range(16):
        k(f"v_exp_f32 v{SA+i}, v{SA+i}")
    k.nop(1)
    for i in range(8):
        k(f"v_cvt_pk_bf16_f32 v{PA+i}, v{SA+2*i}, v{SA+2*i+1}")
    k.nop(2)
    for m in pv(OA, PA, 0):
        k(m)
    k(f"s_add_u32 s{s_cnt}, s{s_cnt}, 2560")
    k(f"s_cmp_lt_u32 s{s_cnt}, 163840")
    k("s_cbranch_scc1 k2_fb_main")
    k.nop(16)
    k("s_branch k2_final")

    k.label("k2_helper")
    sW1, sW2, sPF, sB1, sWO, sXX = 24, 28, 44, 48, 60, 64
    s_u, s_src, s_cbk, s_p = 37, 58, 52, 53
    s_lo, s_hi = 32, 33
    s_b0, s_b1 = 38, 40
    BK = [32, 64, 96]
    TMP = [128, 136]
    CSE, CSO, ONE = 16, 112, 144
    v_src, v_dst, v_np, v_gg, v_ex = 8, 9, 10, 12, 13
    k("s_setprio 3")
    k(f"s_load_dwordx2 s[10:11], s[0:1], {KA['wo']}")
    k(f"s_load_dwordx2 s[14:15], s[0:1], {KA['x']}")
    k(f"s_load_dwordx4 s[80:83], s[0:1], {KA['b2']}")
    k(f"s_mov_b32 s{s_lo}, 0x05040100")
    k(f"s_mov_b32 s{s_hi}, 0x07060302")
    for i in range(4):
        k(f"v_mov_b32 v{ONE+i}, 0x3f803f80")
    k("s_waitcnt lgkmcnt(0)")
    k.srd(sWS, 12, WS_SIZE)
    k.srd(sKVs, 12, 163840, WS_KV)
    k.srd(sW1, 4, 640 * 3072)
    k.srd(sW2, 8, 1536 * 1280)
    k.srd(sB1, 6, 3072)
    k.srd(sWO, 10, 640 * 1280)
    k.srd(sXX, 14, 2048 * 1280)

    def hdma(lo, hi):
        lab = k.newlabel("hd")
        k(f"s_mov_b32 s{s_cnt}, {32768 + lo*1024}")
        k.label(lab)
        k(f"s_mov_b32 m0, s{s_cnt}")
        k(f"s_add_u32 s{s_t}, s{s_cnt}, 81920")
        k(f"buffer_load_dwordx4 v{v_dma}, s[{sKVs}:{sKVs+3}], s{s_cnt} offen lds")
        k(f"s_mov_b32 m0, s{s_t}")
        k(f"s_add_u32 s{s_cnt}, s{s_cnt}, 1024")
        k(f"buffer_load_dwordx4 v{v_dma}, s[{sKVs}:{sKVs+3}], s{s_t} offen lds")
        k(f"s_cmp_lt_u32 s{s_cnt}, {32768 + hi*1024}")
        k(f"s_cbranch_scc1 {lab}")
    k.vm = []
    v_s1, v_s2, v_t32, v_t16, v_ex = 8, 9, 10, 12, 13
    v_xs, v_xd = 14, 15
    FR = 32
    XR = 64
    CS0, CS1 = 16, 112
    SRC = [52, 53, 58]
    DB = {0: [68, 69], 1: [70, 71, 72, 73], 2: [74, 75, 76, 77]}
    s_cb1, s_p1 = 78, 79
    k(f"v_lshrrev_b32 v{t0}, 3, v{v_l}")
    k(f"v_and_b32 v{t1}, 7, v{v_l}")
    k(f"v_mul_u32_u24 v{v_s1}, 3072, v{t0}")
    k(f"v_lshl_add_u32 v{v_s1}, v{t1}, 4, v{v_s1}")
    k(f"v_mul_u32_u24 v{v_s2}, 1280, v{t0}")
    k(f"v_lshl_add_u32 v{v_s2}, v{t1}, 4, v{v_s2}")
    k(f"v_and_b32 v{t0}, 15, v{v_l}")
    k(f"v_lshrrev_b32 v{t1}, 4, v{v_l}")
    k(f"v_mul_u32_u24 v{v_xs}, 1280, v{t0}")
    k(f"v_lshl_add_u32 v{v_xs}, v{t1}, 4, v{v_xs}")
    k(f"v_bfe_u32 v{t0}, v{v_l}, 2, 2")
    k(f"v_and_b32 v{t1}, 3, v{v_l}")
    k(f"v_lshl_add_u32 v{t2}, v{v_half}, 3, v{t0}")
    k(f"v_lshlrev_b32 v{v_t32}, 7, v{t2}")
    k(f"v_bfe_u32 v{t2}, v{v_l}, 4, 1")
    k(f"v_lshl_add_u32 v{v_t32}, v{t2}, 5, v{v_t32}")
    k(f"v_lshl_add_u32 v{v_t32}, v{t1}, 3, v{v_t32}")
    k(f"v_lshrrev_b32 v{t2}, 4, v{v_l}")
    k(f"v_lshl_add_u32 v{t2}, v{t2}, 3, v{t0}")
    k(f"v_lshlrev_b32 v{v_t16}, 7, v{t2}")
    k(f"v_lshl_add_u32 v{v_t16}, v{t1}, 3, v{v_t16}")
    k(f"v_add_u32 v{v_t32}, 16384, v{v_t32}")
    k(f"v_add_u32 v{v_t16}, {81920+16384}, v{v_t16}")
    for i in range(16):
        k(f"v_mov_b32 v{CS0+i}, 0")
        k(f"v_mov_b32 v{CS1+i}, 0")
    k("s_barrier")
    geo = [(240, 10, 3072, 32, 3, 40, 16, WS_W1), (240, 24, 1280, 16, 5, 48, 32, WS_W2), (100, 10, 1280, 16, 5, 20, 32, WS_WO)]
    for m, (nu, nrb, ld, MT, NT, S, KS, dst) in enumerate(geo):
        k(f"s_min_u32 s{s_u}, s2, {nu-1}")
        sdiv(k, s_a, s_b, s_u, nrb, s_t)
        if m == 0:
            k(f"s_mov_b32 s{s_cb1}, s{s_a}")
            k(f"s_mov_b32 s{s_p1}, s{s_b}")
        k(f"s_mul_i32 s{SRC[m]}, s{s_b}, {64*ld}")
        k(f"s_lshl_b32 s{s_t}, s{s_a}, 7")
        k(f"s_add_u32 s{SRC[m]}, s{SRC[m]}, s{s_t}")
        for j, sb in enumerate(DB[m]):
            k(f"s_mul_i32 s{s_c}, s{s_a}, {64//MT}")
            k(f"s_add_u32 s{s_c}, s{s_c}, {j}")
            sdiv(k, s_d, s_cnt, s_c, NT, s_t)
            k(f"s_mul_i32 s{s_d}, s{s_d}, {S}")
            k(f"s_mul_i32 s{s_t}, s{s_b}, {64//KS}")
            k(f"s_add_u32 s{s_d}, s{s_d}, s{s_t}")
            k(f"s_mul_i32 s{s_d}, s{s_d}, {NT}")
            k(f"s_add_u32 s{s_d}, s{s_d}, s{s_cnt}")
            k(f"s_lshl_b32 s{s_d}, s{s_d}, 10")
            k(f"s_add_u32 s{sb}, s{s_d}, {dst}")
        if m == 0:
            k("s_barrier")
    hdma(0, 24)
    k("s_waitcnt vmcnt(8)")
    hdma(24, 48)
    k("s_waitcnt vmcnt(30)")
    k(f"s_lshr_b32 s{s_a}, s2, 1")
    k(f"s_mul_i32 s{s_a}, s{s_a}, {16*1280}")
    k(f"s_and_b32 s{s_t}, s2, 1")
    k(f"s_mul_i32 s{s_t}, s{s_t}, 640")
    k(f"s_add_u32 s{s_a}, s{s_a}, s{s_t}")
    for i in range(10):
        k.vmissue(f"buffer_load_dwordx4 {vr(XR+4*i,4)}, v{v_xs}, s[{sXX}:{sXX+3}], s{s_a} offen offset:{i*64}", "X")
    k(f"v_lshlrev_b32 v{t0}, 1, v{v_q}")
    k(f"s_lshl_b32 s{s_t}, s{s_cb1}, 7")
    k.vmissue(f"buffer_load_ushort v{XR+40}, v{t0}, s[{sB1}:{sB1+3}], s{s_t} offen", "X")
    k.vmissue(f"buffer_load_ushort v{XR+41}, v{t0}, s[{sB1}:{sB1+3}], s{s_t} offen offset:64", "X")
    k(f"s_mul_i32 s{s_d}, s2, 10240")
    k(f"s_add_u32 s{s_d}, s{s_d}, {WS_XG}")
    k("s_waitcnt vmcnt(12)")
    k("s_barrier")

    def bdma(m, lds, tag):
        srd, vs, ld = ((sW1, v_s1, 3072), (sW2, v_s2, 1280), (sWO, v_s2, 1280))[m]
        for i in range(8):
            k(f"s_mov_b32 m0, {lds + i*1024}")
            k(f"s_add_u32 s{s_t2}, s{SRC[m]}, {i*8*ld}")
            k.vmissue(f"buffer_load_dwordx4 v{vs}, s[{srd}:{srd+3}], s{s_t2} offen lds", tag)

    def bproc(m, tag):
        k.vmwait(tag)
        nu, nrb, ld, MT, NT, S, KS, dst = geo[m]
        nts = 64 // MT
        for f in range(8):
            ks, tt = divmod(f, nts)
            for j in range(2):
                off = (ks * KS + 4 * j) * 128 + tt * MT * 2
                k(f"ds_read_b64_tr_b16 {vr(FR+4*f+2*j,2)}, v{v_t32 if MT == 32 else v_t16} offset:{off}")
            if f == 3:
                k("s_waitcnt lgkmcnt(0)")
        k("s_waitcnt lgkmcnt(0)")
        for f in range(8):
            ks, tt = divmod(f, nts)
            k(f"s_add_u32 s{s_t2}, s{DB[m][tt]}, {ks*NT*1024}")
            k.vmissue(f"buffer_store_dwordx4 {vr(FR+4*f,4)}, v{v_dma}, s[{sWS}:{sWS+3}], s{s_t2} offen {SC}", "st")
            if m == 0:
                CSr = (CS0, CS1)[tt]
                k(f"v_mfma_f32_32x32x16_bf16 {vr(CSr,16)}, {vr(ONE,4)}, {vr(FR+4*f,4)}, {vr(CSr,16)}")
    bdma(0, 16384, "A")
    bdma(1, 81920 + 16384, "B")
    k.vmwait("X")
    for i in range(10):
        k(f"s_add_u32 s{s_t2}, s{s_d}, {i*1024}")
        k.vmissue(f"buffer_store_dwordx4 {vr(XR+4*i,4)}, v{v_dma}, s[{sWS}:{sWS+3}], s{s_t2} offen {SC}", "st")
    bproc(0, "A")
    bdma(2, 16384, "C")
    bproc(1, "B")
    k(f"v_lshlrev_b32 v{v_ex}, 4, v{v_q}")
    k(f"s_lshl_b32 s{s_a}, s{s_cb1}, 12")
    k(f"s_add_u32 s{s_a}, s{s_a}, {WS_EX}")
    k(f"s_mul_i32 s{s_b}, s{s_p1}, 3")
    for tt, CSr in enumerate((CS0, CS1)):
        k(f"v_and_b32 v{t1}, 0xffff0000, v{CSr}")
        k(f"v_sub_f32 v{t0}, v{CSr}, v{t1}")
        k(f"v_and_b32 v{t2}, 0xffff0000, v{t0}")
        k(f"v_sub_f32 v{t0}, v{t0}, v{t2}")
        for i, reg in enumerate((t1, t2, t0)):
            k(f"s_add_u32 s{s_c}, s{s_b}, {i}")
            k(f"s_lshr_b32 s{s_t}, s{s_c}, 3")
            k(f"s_lshl_b32 s{s_t}, s{s_t}, 9")
            k(f"s_and_b32 s{s_c}, s{s_c}, 7")
            k(f"s_lshl_b32 s{s_c}, s{s_c}, 1")
            k(f"s_add_u32 s{s_c}, s{s_c}, s{s_t}")
            k(f"s_add_u32 s{s_c}, s{s_c}, s{s_a}")
            k(f"buffer_store_short_d16_hi v{reg}, v{v_ex}, s[{sWS}:{sWS+3}], s{s_c} offen offset:{2048*tt}")
        k(f"buffer_store_dword v{XR+40+tt}, v{v_ex}, s[{sWS}:{sWS+3}], s{s_a} offen offset:{2048*tt+1536+12}")
    k(f"v_subrev_u32 v{v_t16}, 81920, v{v_t16}")
    k.vm += ["st"] * 8
    bproc(2, "C")
    TOUCH = int(os.environ.get("TOUCH", "0"))
    if TOUCH:
        sh = TOUCH
        k.srd(84, 82, 2048 * 1280)
        k.srd(88, 80, 1280)
        k(f"s_lshr_b32 s{s_t}, s2, 3")
        k(f"s_lshl_b32 s{s_t}, s{s_t}, {6+sh}")
        k(f"v_lshlrev_b32 v{t0}, {sh}, v{v_l}")
        k(f"buffer_load_dword v{t1}, v{t0}, s[{sWS}:{sWS+3}], s{s_t} offen")
        k(f"buffer_load_dword v{t2}, v{t0}, s[84:87], s{s_t} offen")
        k(f"buffer_load_dword v{t3}, v{t0}, s[88:91], s{s_t} offen")
    k("s_waitcnt vmcnt(0)")
    for ch in PFORDER:
        if ch in "HhOX":
            off, K_ = {"H": (WS_H1, 1536), "h": (WS_H, 640), "O": (WS_O, 640), "X": (WS_XG, 640)}[ch]
            slab = 256 * K_ * 2
            k(f"s_and_b32 s{s_a}, s2, 7")
            k(f"s_mul_i32 s{s_a}, s{s_a}, {slab}")
            k(f"s_add_u32 s14, s12, s{s_a}")
            k("s_addc_u32 s15, s13, 0")
            helper_prefetch(k, sPF, 14, off, slab, v_l, t0, t1, s_t, s_t2)
        elif ch == "w":
            k("s_waitcnt vmcnt(0)")
        else:
            off, nb = {"o": (WS_WO, 800 * 1024), "1": (WS_W1, 1920 * 1024), "2": (WS_W2, 1920 * 1024)}[ch]
            helper_prefetch(k, sPF, 12, off, nb, v_l, t0, t1, s_t, s_t2)
    k("s_endpgm")
    return k.text(NV), "k2_kernel", (256, 576, 163840)


def gen_g16(name, Kdim):
    k = Kern(name + "_kernel")
    NCH = Kdim // 128
    PD = PD16
    R, RX, D = PD + 2, PD + 1, 8
    sWS, sX2, sB, sO = 20, 24, 28, 44
    s_tb, s_cb, s_w, s_t, s_t2, s_off, s_xoff, s_l = 32, 33, 34, 35, 36, 37, 38, 39
    s_hoff, s_rmoff, s_tok, s_xg = 40, 41, 42, 43
    v_ow, v_or, OADR = 10, 16, 17
    v_l, v_idx, v_g = 1, 2, 3
    v_x = 4
    v_a2 = 5
    v_st = 6
    v_s1, v_s2 = 8, 9
    v_rm = 11
    t0, t1, t2, t3 = 12, 13, 14, 15
    RES = 20
    BIA = 30
    AF = 40
    ACC = 80
    XB = 100
    NV = XB + RX * 16
    WSW = WS_WO if name == "k3" else WS_W2
    helper = False
    k("s_cmp_ge_u32 s2, 256")
    k(f"s_cbranch_scc1 {name}_end")
    k.stamp_init()
    k(f"s_load_dwordx2 s[12:13], s[0:1], {KA['ws']}")
    if name == "k5":
        k(f"s_load_dwordx4 s[8:11], s[0:1], {KA['b2']}")
    wave_lane_setup(k, s_w, v_l)
    if helper:
        k(f"s_cmp_eq_u32 s{s_w}, 4")
        k(f"s_cbranch_scc1 {name}_helper")
    if name == "k5" and MAP5:
        b = MAP5
        k(f"s_bfe_u32 s{s_t}, s2, {hex(((3-b) << 16) | b)}")
        k(f"s_lshl_b32 s{s_tb}, s{s_t}, {2+b}")
        k(f"s_bfe_u32 s{s_t}, s2, {hex(((2+b) << 16) | 3)}")
        k(f"s_add_u32 s{s_tb}, s{s_tb}, s{s_t}")
        k(f"s_and_b32 s{s_t}, s2, {(1 << b) - 1}")
        k(f"s_lshl_b32 s{s_cb}, s{s_t}, {3-b}")
        k(f"s_lshr_b32 s{s_t}, s2, {5+b}")
        k(f"s_add_u32 s{s_cb}, s{s_cb}, s{s_t}")
    else:
        decode_tb_cb(k, s_tb, s_cb, s_t, s_t2)
    k(f"v_lshlrev_b32 v{v_x}, 4, v{v_l}")
    k(f"s_lshl_b32 s{s_t}, s{s_tb}, 2")
    k(f"s_add_u32 s{s_t}, s{s_t}, s{s_w}")
    k(f"s_mul_i32 s{s_xoff}, s{s_t}, {Kdim*32}")
    k(f"s_add_u32 s{s_xoff}, s{s_xoff}, {WS_O if name == 'k3' else WS_H1}")
    k(f"s_mul_i32 s{s_off}, s{s_cb}, {Kdim*160}")
    k(f"s_mul_i32 s{s_l}, s{s_w}, 5120")
    k(f"s_add_u32 s{s_off}, s{s_off}, s{s_l}")
    k(f"s_add_u32 s{s_off}, s{s_off}, {WSW}")
    k(f"v_and_b32 v{v_idx}, 15, v{v_l}")
    k(f"v_lshrrev_b32 v{v_g}, 4, v{v_l}")
    k(f"s_lshl_b32 s{s_t}, s{s_tb}, 6")
    k(f"s_lshl_b32 s{s_t2}, s{s_w}, 4")
    k(f"s_add_u32 s{s_tok}, s{s_t}, s{s_t2}")
    k(f"v_add_u32 v{t0}, s{s_tok}, v{v_idx}")
    v_h = t3
    k(f"v_lshrrev_b32 v{t1}, 5, v{t0}")
    k(f"v_mul_u32_u24 v{v_h}, {640*64}, v{t1}")
    k(f"v_and_b32 v{t1}, 31, v{t0}")
    k(f"v_lshl_add_u32 v{v_h}, v{t1}, 4, v{v_h}")
    k(f"v_lshrrev_b32 v{t1}, 1, v{v_g}")
    k(f"v_lshl_add_u32 v{v_h}, v{t1}, 9, v{v_h}")
    k(f"v_and_b32 v{t2}, 1, v{v_g}")
    k(f"v_lshl_add_u32 v{v_h}, v{t2}, 3, v{v_h}")
    k(f"v_lshlrev_b32 v{v_rm}, 4, v{v_idx}")
    k(f"v_lshl_add_u32 v{v_rm}, v{t1}, 8, v{v_rm}")
    k(f"v_lshl_add_u32 v{v_rm}, v{t2}, 3, v{v_rm}")
    k(f"s_mul_i32 s{s_xg}, s{s_tok}, 1280")
    k(f"s_mul_i32 s{s_t}, s{s_cb}, 2560")
    k(f"s_add_u32 s{s_xg}, s{s_xg}, s{s_t}")
    k(f"s_add_u32 s{s_xg}, s{s_xg}, {WS_XG}")
    k(f"s_mul_i32 s{s_hoff}, s{s_cb}, 5120")
    k(f"s_add_u32 s{s_hoff}, s{s_hoff}, {WS_H}")
    k(f"s_mul_i32 s{s_rmoff}, s{s_cb}, 160")
    k(f"v_add_u32 v{t2}, 4096, v{v_h}")
    k(f"v_lshlrev_b32 v{t1}, 3, v{v_g}")
    s_cc, s_cx, s_cw = 48, 49, 50
    if ROT:
        fa, fb = (3, 5) if NCH == 12 else (1, 2)
        k(f"s_and_b32 s{s_t}, s{s_tb}, 3")
        k(f"s_mul_i32 s{s_t}, s{s_t}, {fa}")
        k(f"s_mul_i32 s{s_t2}, s{s_cb}, {fb}")
        k(f"s_add_u32 s{s_t}, s{s_t}, s{s_t2}")
        sdiv(k, s_cx, s_cc, s_t, NCH, s_t2)
    else:
        k(f"s_mov_b32 s{s_cc}, 0")
    k("s_waitcnt lgkmcnt(0)")
    k.srd(sWS, 12, WS_SIZE)
    if name == "k5":
        k.srd(sB, 8, 1280)

    def chunk_loads(c):
        fs = []
        for i in range(4):
            def fx(i=i, c=c):
                if i == 0:
                    k(f"s_mul_i32 s{s_cx}, s{s_cc}, 4096")
                    k(f"s_mul_i32 s{s_cw}, s{s_cc}, 20480")
                    k(f"s_add_u32 s{s_cx}, s{s_cx}, s{s_xoff}")
                    k(f"s_add_u32 s{s_cw}, s{s_cw}, s{s_off}")
                    k(f"s_add_u32 s{s_cc}, s{s_cc}, 1")
                    k(f"s_cmp_eq_u32 s{s_cc}, {NCH}")
                    k(f"s_cselect_b32 s{s_cc}, 0, s{s_cc}")
                k.vmissue(f"buffer_load_dwordx4 {vr(XB+(c%RX)*16+4*i,4)}, v{v_x}, s[{sWS}:{sWS+3}], s{s_cx} offen offset:{i*1024}", f"c{c}")
            fs.append(fx)
        for i in range(5):
            def fw(i=i, c=c):
                k(f"s_add_u32 m0, s{s_l}, {(c%R)*20480 + i*1024}")
                k(f"s_add_u32 s{s_t2}, s{s_cw}, {i*1024}")
                k.vmissue(f"buffer_load_dwordx4 v{v_x}, s[{sWS}:{sWS+3}], s{s_t2} offen lds", f"c{c}")
            fs.append(fw)
        return fs
    for f in chunk_loads(0):
        f()
    for t in range(5):
        if name == "k3":
            k.vmissue(f"buffer_load_dwordx2 {vr(RES+2*t,2)}, v{v_rm}, s[{sWS}:{sWS+3}], s{s_xg} offen offset:{t*512}", "c0")
        else:
            if t < 4:
                k.vmissue(f"buffer_load_dwordx2 {vr(RES+2*t,2)}, v{v_h}, s[{sWS}:{sWS+3}], s{s_hoff} offen offset:{t*1024}", "c0")
            else:
                k.vmissue(f"buffer_load_dwordx2 {vr(RES+2*t,2)}, v{t2}, s[{sWS}:{sWS+3}], s{s_hoff} offen", "c0")
            k.vmissue(f"buffer_load_dwordx2 {vr(BIA+2*t,2)}, v{t1}, s[{sB}:{sB+3}], s{s_rmoff} offen offset:{t*32}", "c0")
    for c in range(1, PD):
        for f in chunk_loads(c):
            f()
    k(f"v_add_u32 v{v_a2}, {3*20480}, v{v_x}")
    k(f"v_lshlrev_b32 v{v_st}, 6, v{t0}")
    k(f"v_mov_b32 v{v_s1}, 0")
    k(f"v_mov_b32 v{v_s2}, 0")
    k(f"v_mov_b32 v7, 0x3f803f80")
    if name == "k5":
        k.srd(sO, 10, 2048 * 1280)
        k(f"s_mul_i32 s{s_t}, s{s_w}, 2560")
        k(f"s_add_u32 s{s_t}, s{s_t}, {R*20480}")
        k(f"v_mul_u32_u24 v{v_ow}, 160, v{v_idx}")
        k(f"v_add_u32 v{v_ow}, v{v_ow}, v{t1}")
        k(f"v_add_u32 v{v_ow}, s{s_t}, v{v_ow}")
        k(f"v_add_u32 v{v_or}, s{s_t}, v{v_x}")
        for i in range(3):
            k(f"v_add_u32 v{v_s1}, {i*64}, v{v_l}")
            k(f"v_mul_u32_u24 v{v_s2}, 6554, v{v_s1}")
            k(f"v_lshrrev_b32 v{v_s2}, 16, v{v_s2}")
            k(f"v_mul_u32_u24 v{v_st}, 10, v{v_s2}")
            k(f"v_sub_u32 v{v_st}, v{v_s1}, v{v_st}")
            k(f"v_add_u32 v{v_s2}, s{s_tok}, v{v_s2}")
            k(f"v_mul_u32_u24 v{v_s2}, 1280, v{v_s2}")
            k(f"v_lshl_add_u32 v{OADR+i}, v{v_st}, 4, v{v_s2}")
        k(f"v_cmp_gt_u32 vcc, 32, v{v_l}")
        k(f"v_mov_b32 v{v_s1}, 0x7ffffff0")
        k.nop(1)
        k(f"v_cndmask_b32 v{OADR+2}, v{v_s1}, v{OADR+2}, vcc")
    spr = Sprinkle()
    k.stamp()

    def read_fn(i, buf):
        c, r = divmod(i, 20)
        slot = c % R
        base, off = (v_x, slot * 20480) if slot < 3 else (v_a2, (slot - 3) * 20480)
        k(f"ds_read_b128 {vr(AF+4*buf,4)}, v{base} offset:{off + r*1024}")

    def mfma_fn(i, buf):
        c, r = divmod(i, 20)
        s, t = divmod(r, 5)
        X = XB + (c % RX) * 16 + 4 * s
        if i == 0:
            for tt in range(5):
                a = ACC + 4 * tt
                k(f"v_lshlrev_b32 v{a}, 16, v{RES+2*tt}")
                k(f"v_and_b32 v{a+1}, 0xffff0000, v{RES+2*tt}")
                k(f"v_lshlrev_b32 v{a+2}, 16, v{RES+2*tt+1}")
                k(f"v_and_b32 v{a+3}, 0xffff0000, v{RES+2*tt+1}")
                if name == "k5":
                    k(f"v_lshlrev_b32 v{RES+2*tt}, 16, v{BIA+2*tt}")
                    k(f"v_and_b32 v{BIA+2*tt}, 0xffff0000, v{BIA+2*tt}")
                    k(f"v_lshlrev_b32 v{RES+2*tt+1}, 16, v{BIA+2*tt+1}")
                    k(f"v_and_b32 v{BIA+2*tt+1}, 0xffff0000, v{BIA+2*tt+1}")
                    k(f"v_add_f32 v{a}, v{a}, v{RES+2*tt}")
                    k(f"v_add_f32 v{a+1}, v{a+1}, v{BIA+2*tt}")
                    k(f"v_add_f32 v{a+2}, v{a+2}, v{RES+2*tt+1}")
                    k(f"v_add_f32 v{a+3}, v{a+3}, v{BIA+2*tt+1}")
            k.nop(2)
        k(f"v_mfma_f32_16x16x32_bf16 {vr(ACC+4*t,4)}, {vr(AF+4*buf,4)}, {vr(X,4)}, {vr(ACC+4*t,4)}")

    def mk_sync(c):
        def f():
            k.vmwait(f"c{c}")
            k("s_barrier")
            if c in (0, 1, NCH - 1):
                k.stamp()
        return f
    sync_at = {20 * c: mk_sync(c) for c in range(NCH)}

    def side(i):
        c, r = divmod(i, 20)
        if r == 0 and c + PD < NCH:
            for f in chunk_loads(c + PD):
                spr.add(f)
        spr.emit(1)
    gemm_pipeline(k, 20 * NCH, D, lambda j: 1, read_fn, mfma_fn, sync_at, side)
    assert not spr.q
    k.stamp()
    k.nop(4)
    T = AF
    for t in range(5):
        a = ACC + 4 * t
        k(f"v_cvt_pk_bf16_f32 v{T+2*t}, v{a}, v{a+1}")
        k(f"v_cvt_pk_bf16_f32 v{T+1+2*t}, v{a+2}, v{a+3}")
        if name == "k3":
            if t < 4:
                k(f"buffer_store_dwordx2 {vr(T+2*t,2)}, v{v_h}, s[{sWS}:{sWS+3}], s{s_hoff} offen offset:{t*1024}")
            else:
                k(f"buffer_store_dwordx2 {vr(T+2*t,2)}, v{t2}, s[{sWS}:{sWS+3}], s{s_hoff} offen")
        else:
            k(f"ds_write_b64 v{v_ow}, {vr(T+2*t,2)} offset:{t*32}")
    if name == "k3":
        for i in range(10):
            k(f"v_dot2_f32_bf16 v{v_s1}, v{T+i}, v7, v{v_s1}")
            k(f"v_dot2_f32_bf16 v{v_s2}, v{T+i}, v{T+i}, v{v_s2}")
        chs = []
        for v, tt in ((v_s1, t0), (v_s2, t1)):
            chs.append([(f"v_mov_b32 v{tt}, v{v}", 3), (f"v_permlane16_swap_b32 v{v}, v{tt}", 2), (f"v_add_f32 v{v}, v{v}, v{tt}", 1),
                        (f"v_mov_b32 v{tt}, v{v}", 0), (f"v_permlane32_swap_b32 v{v}, v{tt}", 2), (f"v_add_f32 v{v}, v{v}, v{tt}", 1)])
        k.nop(3)
        interleave(k, chs)
        k(f"s_lshl_b32 s{s_t}, s{s_cb}, 3")
        k(f"s_add_u32 s{s_t}, s{s_t}, {WS_ST}")
        k(f"buffer_store_dwordx2 {vr(v_s1,2)}, v{v_st}, s[{sWS}:{sWS+3}], s{s_t} offen")
    else:
        k("s_waitcnt lgkmcnt(0)")
        for i in range(3):
            k(f"ds_read_b128 {vr(T+12+4*i,4)}, v{v_or} offset:{i*1024}")
        for i in range(3):
            k(f"s_waitcnt lgkmcnt({2-i})")
            k(f"buffer_store_dwordx4 {vr(T+12+4*i,4)}, v{OADR+i}, s[{sO}:{sO+3}], s{s_rmoff} offen")
    k.stamp_flush(s_w)
    k.label(f"{name}_end")
    k("s_endpgm")
    if helper:
        k.label(f"{name}_helper")
        slab = 256 * Kdim * 2
        k(f"s_and_b32 s{s_l}, s2, 7")
        k(f"s_mul_i32 s{s_l}, s{s_l}, {slab}")
        k("s_waitcnt lgkmcnt(0)")
        k(f"s_add_u32 s14, s12, s{s_l}")
        k("s_addc_u32 s15, s13, 0")
        helper_prefetch(k, 48, 14, WS_O if name == "k3" else WS_H1, slab, v_l, t0, t1, s_t, s_t2)
        k("s_barrier")
        if name == "k3":
            helper_prefetch(k, 52, 12, WS_W1, 1920 * 1024, v_l, t0, t1, s_t, s_t2)
        for c in range(NCH - 1):
            k("s_barrier")
        k("s_endpgm")
    return k.text(NV), name + "_kernel", (256, 256, R * 20480 + (10240 + 1024 if name == "k5" else 0))


def gen_k4():
    k = Kern("k4_kernel")
    CK = 4
    NCH = 40 // CK
    PD = PD32
    R, RX, D = PD + 2, PD + 1, 6
    CB = CK * 3 * 1024
    sWS = 20
    s_tb, s_cb, s_w, s_t, s_t2, s_off, s_xoff, s_l = 32, 33, 34, 35, 36, 37, 38, 39
    v_l, v_q, v_half = 1, 2, 3
    v_x = 4
    v_x2 = 5
    t0, t1, t2, t3 = 12, 13, 14, 15
    BX = 16
    ST = 20
    AF = 28
    E = 56
    BX2 = 68
    ACC = 80
    EXA = 128
    XB = 152
    NV = XB + RX * 16
    helper = False
    k("s_cmp_ge_u32 s2, 256")
    k("s_cbranch_scc1 k4_end")
    k.stamp_init()
    k(f"s_load_dwordx2 s[12:13], s[0:1], {KA['ws']}")
    wave_lane_setup(k, s_w, v_l)
    if helper:
        k(f"s_cmp_eq_u32 s{s_w}, 4")
        k("s_cbranch_scc1 k4_helper")
    if MAP4 == 0:
        k(f"s_and_b32 s{s_t}, s2, 7")
        k(f"s_lshl_b32 s{s_tb}, s{s_t}, 1")
        k(f"s_bfe_u32 s{s_t}, s2, 0x10003")
        k(f"s_add_u32 s{s_tb}, s{s_tb}, s{s_t}")
        k(f"s_lshr_b32 s{s_cb}, s2, 4")
    else:
        b = MAP4
        k(f"s_bfe_u32 s{s_t}, s2, {hex(((3-b) << 16) | b)}")
        k(f"s_lshl_b32 s{s_tb}, s{s_t}, {1+b}")
        k(f"s_bfe_u32 s{s_t}, s2, {hex(((1+b) << 16) | 3)}")
        k(f"s_add_u32 s{s_tb}, s{s_tb}, s{s_t}")
        k(f"s_and_b32 s{s_t}, s2, {(1 << b) - 1}")
        k(f"s_lshl_b32 s{s_cb}, s{s_t}, {4-b}")
        k(f"s_lshr_b32 s{s_t}, s2, {4+b}")
        k(f"s_add_u32 s{s_cb}, s{s_cb}, s{s_t}")
    k(f"v_lshlrev_b32 v{v_x}, 4, v{v_l}")
    k(f"s_lshl_b32 s{s_t}, s{s_tb}, 2")
    k(f"s_add_u32 s{s_t}, s{s_t}, s{s_w}")
    k(f"s_mul_i32 s{s_xoff}, s{s_t}, {640*64}")
    k(f"s_add_u32 s{s_xoff}, s{s_xoff}, {WS_H}")
    k(f"s_mul_i32 s{s_off}, s{s_cb}, {640*192}")
    k(f"s_mul_i32 s{s_l}, s{s_w}, {CB//4}")
    k(f"s_add_u32 s{s_off}, s{s_off}, s{s_l}")
    k(f"s_add_u32 s{s_off}, s{s_off}, {WS_W1}")
    s_cc, s_cx, s_cw = 48, 49, 50
    if ROT:
        k(f"s_and_b32 s{s_t}, s{s_tb}, 1")
        k(f"s_mul_i32 s{s_t}, s{s_t}, 5")
        k(f"s_mul_i32 s{s_t2}, s{s_cb}, 3")
        k(f"s_add_u32 s{s_t}, s{s_t}, s{s_t2}")
        sdiv(k, s_cx, s_cc, s_t, NCH, s_t2)
    else:
        k(f"s_mov_b32 s{s_cc}, 0")
    k("s_waitcnt lgkmcnt(0)")
    k.srd(sWS, 12, WS_SIZE)

    def chunk_loads(c):
        fs = []
        for i in range(CK):
            def fx(i=i, c=c):
                if i == 0:
                    k(f"s_mul_i32 s{s_cx}, s{s_cc}, {CK*1024}")
                    k(f"s_mul_i32 s{s_cw}, s{s_cc}, {CB}")
                    k(f"s_add_u32 s{s_cx}, s{s_cx}, s{s_xoff}")
                    k(f"s_add_u32 s{s_cw}, s{s_cw}, s{s_off}")
                    k(f"s_add_u32 s{s_cc}, s{s_cc}, 1")
                    k(f"s_cmp_eq_u32 s{s_cc}, {NCH}")
                    k(f"s_cselect_b32 s{s_cc}, 0, s{s_cc}")
                k.vmissue(f"buffer_load_dwordx4 {vr(XB+((c%RX)*CK+i)*4,4)}, v{v_x}, s[{sWS}:{sWS+3}], s{s_cx} offen offset:{i*1024}", f"c{c}")
            fs.append(fx)
        for i in range(CB // 4096):
            def fw(i=i, c=c):
                k(f"s_add_u32 m0, s{s_l}, {(c%R)*CB + i*1024}")
                k(f"s_add_u32 s{s_t2}, s{s_cw}, {i*1024}")
                k.vmissue(f"buffer_load_dwordx4 v{v_x}, s[{sWS}:{sWS+3}], s{s_t2} offen lds", f"c{c}")
            fs.append(fw)
        return fs
    for c in range(PD):
        for f in chunk_loads(c):
            f()
    k(f"v_and_b32 v{v_q}, 31, v{v_l}")
    k(f"v_lshrrev_b32 v{v_half}, 5, v{v_l}")
    k(f"v_add_u32 v{v_x2}, {5*CB}, v{v_x}")
    for i in range(48):
        k(f"v_mov_b32 v{ACC+i}, 0")
    k(f"s_lshl_b32 s{s_t}, s{s_tb}, 7")
    k(f"s_lshl_b32 s{s_t2}, s{s_w}, 5")
    k(f"s_add_u32 s{s_t}, s{s_t}, s{s_t2}")
    k(f"v_add_u32 v{t1}, s{s_t}, v{v_q}")
    k(f"v_lshlrev_b32 v{t3}, 6, v{t1}")
    k(f"v_lshl_add_u32 v{t3}, v{v_half}, 5, v{t3}")
    k(f"v_lshrrev_b32 v{t2}, 4, v{t1}")
    k(f"v_mul_u32_u24 v{t2}, {1536*32}, v{t2}")
    k(f"v_and_b32 v{t1}, 15, v{t1}")
    k(f"v_lshl_add_u32 v{t2}, v{t1}, 4, v{t2}")
    k(f"v_lshl_add_u32 v{t2}, v{v_half}, 8, v{t2}")
    s_so, s_ex, s_st = 40, 41, 42
    k(f"s_mul_i32 s{s_so}, s{s_cb}, {12*256}")
    k(f"s_add_u32 s{s_so}, s{s_so}, {WS_H1}")
    k(f"s_mul_i32 s{s_ex}, s{s_cb}, 6144")
    k(f"s_add_u32 s{s_ex}, s{s_ex}, {WS_EX}")
    k(f"s_mov_b32 s{s_st}, {WS_ST}")

    def epi_loads():
        fs = []
        for i in range(2):
            fs.append(lambda i=i: k.vmissue(f"buffer_load_dwordx4 {vr(ST+4*i,4)}, v{t3}, s[{sWS}:{sWS+3}], s{s_st} offen offset:{i*16}", "epi"))
        for t in range(6):
            def fe(t=t):
                k(f"s_add_u32 s{s_t2}, s{s_ex}, {t*1024}")
                k.vmissue(f"buffer_load_dwordx4 {vr(EXA+4*t,4)}, v{v_x}, s[{sWS}:{sWS+3}], s{s_t2} offen", "epi")
            fs.append(fe)
        return fs
    spr = Sprinkle()
    k.stamp()
    UPC = CK * 3
    v_mean, v_rstd, v_sum, v_sq = E, E + 1, E + 2, E + 3

    def stats_code():
        kk = Kern("tmp")
        kk(f"v_add_f32 v{v_sum}, v{ST}, v{ST+2}")
        kk(f"v_add_f32 v{v_sq}, v{ST+1}, v{ST+3}")
        kk(f"v_add_f32 v{ST+4}, v{ST+4}, v{ST+6}")
        kk(f"v_add_f32 v{ST+5}, v{ST+5}, v{ST+7}")
        kk(f"v_add_f32 v{v_sum}, v{v_sum}, v{ST+4}")
        kk(f"v_add_f32 v{v_sq}, v{v_sq}, v{ST+5}")
        xsum_halves(kk, v_sum, t0)
        xsum_halves(kk, v_sq, t0)
        ln_stats(kk, v_sum, v_sq, v_mean, v_rstd, t0, t1)
        kk(f"v_xor_b32 v{t0}, 0x80000000, v{v_mean}")
        kk(f"v_lshrrev_b32 v{BX}, 16, v{t0}")
        kk(f"v_or_b32 v{BX}, v{BX}, v{t0}")
        kk(f"v_cmp_eq_u32 vcc, 0, v{v_half}")
        for r_ in (BX + 1, BX + 2, BX + 3, BX2, BX2 + 1, BX2 + 2):
            kk(f"v_mov_b32 v{r_}, v{BX}")
        kk(f"v_lshrrev_b32 v{t0}, 16, v{t1}")
        kk(f"v_cndmask_b32 v{BX2+3}, v{t0}, v{BX}, vcc")
        kk(f"v_mul_f32 v{v_rstd}, v{v_rstd}, v{v_rstd}")
        kk(f"v_mov_b32 v{v_rstd+1}, v{v_rstd}")
        return [l.strip() for l in kk.L]

    def read_fn(i, buf):
        c, r = divmod(i, UPC)
        slot = c % R
        base, off = (v_x, slot * CB) if slot < 5 else (v_x2, (slot - 5) * CB)
        k(f"ds_read_b128 {vr(AF+4*buf,4)}, v{base} offset:{off + r*1024}")

    def mfma_fn(i, buf):
        c, r = divmod(i, UPC)
        s, t = divmod(r, 3)
        X = XB + ((c % RX) * CK + s) * 4
        k(f"v_mfma_f32_32x32x16_bf16 {vr(ACC+16*t,16)}, {vr(AF+4*buf,4)}, {vr(X,4)}, {vr(ACC+16*t,16)}")

    def mk_sync(c):
        def f():
            k.vmwait(f"c{c}")
            k("s_barrier")
            if c in (0, 1, NCH - 1):
                k.stamp()
        return f
    sync_at = {UPC * c: mk_sync(c) for c in range(NCH)}
    spr2 = Sprinkle()

    def side(i):
        c, r = divmod(i, UPC)
        if r == 0:
            if c + PD < NCH:
                for f in chunk_loads(c + PD):
                    spr.add(f)
            elif c + PD == NCH:
                for f in epi_loads():
                    spr.add(f)
            if c == NCH - 1:
                k.vmwait("epi")
                for l in stats_code():
                    spr2.add(lambda l=l: k(l))
        spr.emit(1)
        spr2.emit(4)
    gemm_pipeline(k, UPC * NCH, D, lambda j: 1, read_fn, mfma_fn, sync_at, side)
    assert not spr.q
    spr2.emit(1000)
    k.stamp()
    k.nop(2)
    for t in range(3):
        k(f"v_mfma_f32_32x32x16_bf16 {vr(ACC+16*t,16)}, {vr(EXA+8*t,4)}, {vr(BX,4)}, {vr(ACC+16*t,16)}")
        k(f"v_mfma_f32_32x32x16_bf16 {vr(ACC+16*t,16)}, {vr(EXA+8*t+4,4)}, {vr(BX2,4)}, {vr(ACC+16*t,16)}")
    k.nop(6)
    R2 = E + 4
    k(f"v_mov_b32 v{R2}, v{v_rstd}")
    k(f"v_mov_b32 v{R2+1}, v{v_rstd}")
    TM = XB
    for t in range(3):
        for qp in range(2):
            O4 = XB + 32 + (t * 2 + qp) * 4
            for qq in range(2):
                z = ACC + 16 * t + 8 * qp + 4 * qq
                m = TM + 4 * qq
                for r in range(4):
                    k(f"v_max_f32 v{m+r}, 0, v{z+r}")
                k(f"v_pk_mul_f32 {vr(z,2)}, {vr(z,2)}, {vr(R2,2)}")
                k(f"v_pk_mul_f32 {vr(z+2,2)}, {vr(z+2,2)}, {vr(R2,2)}")
                k(f"v_pk_mul_f32 {vr(z,2)}, {vr(z,2)}, {vr(m,2)}")
                k(f"v_pk_mul_f32 {vr(z+2,2)}, {vr(z+2,2)}, {vr(m+2,2)}")
                k(f"v_cvt_pk_bf16_f32 v{O4+2*qq}, v{z}, v{z+1}")
                k(f"v_cvt_pk_bf16_f32 v{O4+2*qq+1}, v{z+2}, v{z+3}")
            k.nop(2)
            k(f"v_permlane32_swap_b32 v{O4}, v{O4+2}")
            k(f"v_permlane32_swap_b32 v{O4+1}, v{O4+3}")
            k(f"buffer_store_dwordx4 {vr(O4,4)}, v{t2}, s[{sWS}:{sWS+3}], s{s_so} offen offset:{(4*t+2*qp)*256} {SC4}")
    k.stamp_flush(s_w)
    k.label("k4_end")
    k("s_endpgm")
    if helper:
        k.label("k4_helper")
        slab = 256 * 640 * 2
        k(f"s_and_b32 s{s_l}, s2, 7")
        k(f"s_mul_i32 s{s_l}, s{s_l}, {slab}")
        k("s_waitcnt lgkmcnt(0)")
        k(f"s_add_u32 s14, s12, s{s_l}")
        k("s_addc_u32 s15, s13, 0")
        helper_prefetch(k, 48, 14, WS_H, slab, v_l, t0, t1, s_t, s_t2)
        k("s_barrier")
        k("s_barrier")
        helper_prefetch(k, 52, 12, WS_W2, 1920 * 1024, v_l, t0, t1, s_t, s_t2)
        for c in range(NCH - 2):
            k("s_barrier")
        k("s_endpgm")
    return k.text(NV), "k4_kernel", (256, 320 if helper else 256, R * CB)


def gen_mlp():
    k = Kern("k3_kernel")
    sWS, sB, sO = 20, 28, 44
    s_g, s_i, s_w, s_t, s_t2 = 32, 33, 34, 35, 36
    s_tb, s_cb, s_tok = 37, 38, 39
    s_xa, s_wa, s_l5 = 40, 41, 42
    s_xb, s_wb, s_l3 = 48, 49, 50
    s_xc, s_wc = 51, 52
    s_hoff, s_rmoff, s_xg, s_cnt, s_spin = 53, 54, 55, 56, 57
    s_so, s_ex, s_st = 58, 59, 43
    v_l, v_idx, v_g, v_x = 1, 2, 3, 4
    v_q, v_half = 5, 6
    v_one = 7
    t0, t1, t2, t3 = 8, 9, 10, 11
    v_h, v_h4, v_xg, v_st = 12, 13, 14, 15
    v_s1, v_s2 = 16, 17
    v_hi1, v_hi2 = 18, 19
    HP = 20
    OADR, v_ow, v_or, v_b8 = 30, 33, 34, 35
    v_h1a, v_sta = 36, 37
    E = 38
    BX, BX2 = 48, 52
    AF = 56
    ACC = 116
    EXA = 164
    XB = 188
    NV = 252
    D16 = int(os.environ.get("D16", "8"))
    ROTB = int(os.environ.get("ROTB", "0"))
    ROTC = int(os.environ.get("ROTC", "0"))
    HELP = int(os.environ.get("HELP", "0"))
    W1AT = int(os.environ.get("W1AT", "3"))
    NB0 = int(os.environ.get("NB0", "6"))
    ROTA = int(os.environ.get("ROTA", "0"))
    s_rA, s_rB, s_rC = 24, 25, 26
    s_cw, s_cx, s_u = 27, 14, 15
    D32 = int(os.environ.get("D32", "6"))
    RES, BIA, ST = EXA, EXA + 10, E + 2

    def lds_addr(off):
        if off < 61440:
            return v_x, off
        if off < 122880:
            return v_hi1, off - 61440
        return v_hi2, off - 122880

    k("s_cmp_ge_u32 s2, 256")
    k("s_cbranch_scc1 k3_end")
    k.stamp_init()
    k(f"s_load_dwordx2 s[12:13], s[0:1], {KA['ws']}")
    k(f"s_load_dwordx4 s[8:11], s[0:1], {KA['b2']}")
    wave_lane_setup(k, s_w, v_l)
    k(f"s_and_b32 s{s_t}, s2, 7")
    k(f"s_lshl_b32 s{s_g}, s{s_t}, 1")
    k(f"s_bfe_u32 s{s_t}, s2, 0x10003")
    k(f"s_add_u32 s{s_g}, s{s_g}, s{s_t}")
    k(f"s_lshr_b32 s{s_i}, s2, 4")
    k(f"s_lshl_b32 s{s_tb}, s{s_g}, 1")
    k(f"s_and_b32 s{s_t}, s{s_i}, 1")
    k(f"s_add_u32 s{s_tb}, s{s_tb}, s{s_t}")
    k(f"s_lshr_b32 s{s_cb}, s{s_i}, 1")
    if HELP:
        k(f"s_cmp_eq_u32 s{s_w}, 4")
        k("s_cbranch_scc1 k3_helper")
    k(f"v_lshlrev_b32 v{v_x}, 4, v{v_l}")
    k(f"v_and_b32 v{v_idx}, 15, v{v_l}")
    k(f"v_lshrrev_b32 v{v_g}, 4, v{v_l}")
    k(f"s_lshl_b32 s{s_t}, s{s_tb}, 6")
    k(f"s_lshl_b32 s{s_t2}, s{s_w}, 4")
    k(f"s_add_u32 s{s_tok}, s{s_t}, s{s_t2}")
    k(f"s_mul_i32 s{s_xa}, s{s_tok}, 1280")
    k(f"s_mul_i32 s{s_t}, s{s_cb}, 2560")
    k(f"s_add_u32 s{s_xg}, s{s_xa}, s{s_t}")
    k(f"s_add_u32 s{s_xg}, s{s_xg}, {WS_XG}")
    k(f"s_add_u32 s{s_xa}, s{s_xa}, {WS_O}")
    k(f"s_mul_i32 s{s_l5}, s{s_w}, 5120")
    k(f"s_mul_i32 s{s_wa}, s{s_cb}, {640*160}")
    k(f"s_add_u32 s{s_wa}, s{s_wa}, s{s_l5}")
    k(f"s_add_u32 s{s_wa}, s{s_wa}, {WS_WO}")
    k(f"v_lshrrev_b32 v{t1}, 1, v{v_g}")
    k(f"v_and_b32 v{t2}, 1, v{v_g}")
    k(f"v_lshlrev_b32 v{v_xg}, 4, v{v_idx}")
    k(f"v_lshl_add_u32 v{v_xg}, v{t1}, 8, v{v_xg}")
    k(f"v_lshl_add_u32 v{v_xg}, v{t2}, 3, v{v_xg}")
    if ROTA:
        sdiv(k, s_t, s_rA, s_cb, 5, s_t2)
    else:
        k(f"s_mov_b32 s{s_rA}, 0")
    if ROTB:
        sdiv(k, s_t, s_rB, s_i, 10, s_t2)
    else:
        k(f"s_mov_b32 s{s_rB}, 0")
    if ROTC:
        k(f"s_mul_i32 s{s_rC}, s{s_cb}, 3")
        k(f"s_lshr_b32 s{s_rC}, s{s_rC}, 1")
    else:
        k(f"s_mov_b32 s{s_rC}, 0")
    k("s_waitcnt lgkmcnt(0)")
    k.srd(sWS, 12, WS_SIZE)

    def rot_base(dst, srot, c, N, stride, base):
        k(f"s_sub_u32 s{dst}, s{srot}, {N - c}")
        k(f"s_cselect_b32 s{s_u}, {N}, 0")
        k(f"s_add_u32 s{dst}, s{dst}, s{s_u}")
        k(f"s_mul_i32 s{dst}, s{dst}, {stride}")
        k(f"s_add_u32 s{dst}, s{dst}, s{base}")

    def xload16(c, i, sx, RX, tag, pol):
        if i == 0:
            rot_base(s_cx, s_rA if sx == s_xa else s_rC, c, 5 if sx == s_xa else 12, 4096, sx)
        k.vmissue(f"buffer_load_dwordx4 {vr(XB+(c%RX)*16+4*i,4)}, v{v_x}, s[{sWS}:{sWS+3}], s{s_cx} offen offset:{i*1024} {pol}", tag)

    def wload16(c, i, sw, R, tag):
        if i == 0:
            rot_base(s_cw, s_rA if sw == s_wa else s_rC, c, 5 if sw == s_wa else 12, 20480, sw)
        k(f"s_add_u32 m0, s{s_l5}, {((c + (3 if R == 7 else 0))%R)*20480 + i*1024}")
        k(f"s_add_u32 s{s_t2}, s{s_cw}, {i*1024}")
        k.vmissue(f"buffer_load_dwordx4 v{v_x}, s[{sWS}:{sWS+3}], s{s_t2} offen lds", tag)

    W1LOC = [81920 + c * 12288 for c in range(6)] + [c * 12288 for c in range(4)]

    def w1load(c, i):
        if i == 0:
            rot_base(s_cw, s_rB, c, 10, 12288, s_wb)
        k(f"s_add_u32 m0, s{s_l3}, {W1LOC[c] + i*1024}")
        k(f"s_add_u32 s{s_t2}, s{s_cw}, {i*1024}")
        k.vmissue(f"buffer_load_dwordx4 v{v_x}, s[{sWS}:{sWS+3}], s{s_t2} offen lds", "w1a" if c < 6 else "w1b")

    RA, RXA, PDA = 4, 3, 2
    for i in range(4):
        xload16(0, i, s_xa, RXA, "c0", "")
    for i in range(5):
        wload16(0, i, s_wa, RA, "c0")
    for t in range(5):
        k.vmissue(f"buffer_load_dwordx2 {vr(RES+2*t,2)}, v{v_xg}, s[{sWS}:{sWS+3}], s{s_xg} offen offset:{t*512}", "c0")
    for i in range(4):
        xload16(1, i, s_xa, RXA, "c1", "")
    for i in range(5):
        wload16(1, i, s_wa, RA, "c1")
    k.srd(sB, 8, 1280)
    k.srd(sO, 10, 2048 * 1280)
    k(f"v_and_b32 v{v_q}, 31, v{v_l}")
    k(f"v_lshrrev_b32 v{v_half}, 5, v{v_l}")
    k(f"v_add_u32 v{v_hi1}, 61440, v{v_x}")
    k(f"v_add_u32 v{v_hi2}, 122880, v{v_x}")
    k(f"v_mov_b32 v{v_one}, 0x3f803f80")
    k(f"v_mov_b32 v{v_s1}, 0")
    k(f"v_mov_b32 v{v_s2}, 0")
    k(f"v_add_u32 v{t0}, s{s_tok}, v{v_idx}")
    k(f"v_lshrrev_b32 v{t3}, 5, v{t0}")
    k(f"v_mul_u32_u24 v{v_h}, {640*64}, v{t3}")
    k(f"v_and_b32 v{t3}, 31, v{t0}")
    k(f"v_lshl_add_u32 v{v_h}, v{t3}, 4, v{v_h}")
    k(f"v_lshl_add_u32 v{v_h}, v{t1}, 9, v{v_h}")
    k(f"v_add_u32 v{v_h4}, 4096, v{v_h}")
    k(f"v_lshl_add_u32 v{v_h}, v{t2}, 10, v{v_h}")
    k(f"v_cmp_eq_u32 vcc, 0, v{t2}")
    k(f"v_mov_b32 v{t3}, 0x7ffffff0")
    k(f"v_lshlrev_b32 v{v_st}, 3, v{t0}")
    k(f"v_cndmask_b32 v{v_h4}, v{t3}, v{v_h4}, vcc")
    k(f"v_cmp_eq_u32 vcc, 0, v{v_g}")
    k(f"v_lshlrev_b32 v{v_b8}, 3, v{v_g}")
    k.nop(1)
    k(f"v_cndmask_b32 v{v_st}, v{t3}, v{v_st}, vcc")
    k(f"s_mul_i32 s{s_hoff}, s{s_cb}, 5120")
    k(f"s_add_u32 s{s_hoff}, s{s_hoff}, {WS_H}")
    k(f"s_mul_i32 s{s_rmoff}, s{s_cb}, 160")
    k(f"s_lshl_b32 s{s_cnt}, s{s_g}, 8")
    k(f"s_add_u32 s{s_cnt}, s{s_cnt}, {WS_CNT}")
    k(f"s_lshl_b32 s{s_t}, s{s_g}, 2")
    k(f"s_add_u32 s{s_t}, s{s_t}, s{s_w}")
    k(f"s_mul_i32 s{s_xb}, s{s_t}, {640*64}")
    k(f"s_add_u32 s{s_xb}, s{s_xb}, {WS_H}")
    k(f"s_mul_i32 s{s_l3}, s{s_w}, 3072")
    k(f"s_mul_i32 s{s_wb}, s{s_i}, {640*192}")
    k(f"s_add_u32 s{s_wb}, s{s_wb}, s{s_l3}")
    k(f"s_add_u32 s{s_wb}, s{s_wb}, {WS_W1}")
    k(f"s_mul_i32 s{s_so}, s{s_i}, {12*256}")
    k(f"s_add_u32 s{s_so}, s{s_so}, {WS_H1}")
    k(f"s_mul_i32 s{s_ex}, s{s_i}, 6144")
    k(f"s_add_u32 s{s_ex}, s{s_ex}, {WS_EX}")
    k(f"s_mov_b32 s{s_st}, {WS_ST}")
    k(f"s_lshl_b32 s{s_t}, s{s_t}, 5")
    k(f"v_add_u32 v{t0}, s{s_t}, v{v_q}")
    k(f"v_lshlrev_b32 v{v_sta}, 3, v{t0}")
    k(f"v_lshl_add_u32 v{v_sta}, v{v_half}, 16, v{v_sta}")
    k(f"v_lshrrev_b32 v{t3}, 4, v{t0}")
    k(f"v_mul_u32_u24 v{v_h1a}, {1536*32}, v{t3}")
    k(f"v_and_b32 v{t3}, 15, v{t0}")
    k(f"v_lshl_add_u32 v{v_h1a}, v{t3}, 4, v{v_h1a}")
    k(f"v_lshl_add_u32 v{v_h1a}, v{v_half}, 8, v{v_h1a}")
    k(f"s_mul_i32 s{s_xc}, s{s_tok}, 3072")
    k(f"s_add_u32 s{s_xc}, s{s_xc}, {WS_H1}")
    k(f"s_mul_i32 s{s_wc}, s{s_cb}, {1536*160}")
    k(f"s_add_u32 s{s_wc}, s{s_wc}, s{s_l5}")
    k(f"s_add_u32 s{s_wc}, s{s_wc}, {WS_W2}")
    LDS_OUT = 143360
    k(f"s_mul_i32 s{s_t}, s{s_w}, 2560")
    k(f"s_add_u32 s{s_t}, s{s_t}, {LDS_OUT}")
    k(f"v_mul_u32_u24 v{v_ow}, 160, v{v_idx}")
    k(f"v_add_u32 v{v_ow}, v{v_ow}, v{v_b8}")
    k(f"v_add_u32 v{v_ow}, s{s_t}, v{v_ow}")
    k(f"v_add_u32 v{v_or}, s{s_t}, v{v_x}")
    for i in range(3):
        k(f"v_add_u32 v{t0}, {i*64}, v{v_l}")
        k(f"v_mul_u32_u24 v{t1}, 6554, v{t0}")
        k(f"v_lshrrev_b32 v{t1}, 16, v{t1}")
        k(f"v_mul_u32_u24 v{t2}, 10, v{t1}")
        k(f"v_sub_u32 v{t2}, v{t0}, v{t2}")
        k(f"v_add_u32 v{t1}, s{s_tok}, v{t1}")
        k(f"v_mul_u32_u24 v{t1}, 1280, v{t1}")
        k(f"v_lshl_add_u32 v{OADR+i}, v{t2}, 4, v{t1}")
    k(f"v_cmp_gt_u32 vcc, 32, v{v_l}")
    k(f"v_mov_b32 v{t0}, 0x7ffffff0")
    k.nop(1)
    k(f"v_cndmask_b32 v{OADR+2}, v{t0}, v{OADR+2}, vcc")

    def phase16(NCH, R, RX, side, init, pre=""):
        def read_fn(i, buf):
            c, r = divmod(i, 20)
            b, off = lds_addr(((c + (3 if R == 7 else 0)) % R) * 20480 + r * 1024)
            k(f"ds_read_b128 {vr(AF+4*buf,4)}, v{b} offset:{off}")

        def mfma_fn(i, buf):
            c, r = divmod(i, 20)
            s_, t = divmod(r, 5)
            X = XB + (c % RX) * 16 + 4 * s_
            if i == 0:
                init()
                k.nop(2)
            k(f"v_mfma_f32_16x16x32_bf16 {vr(ACC+4*t,4)}, {vr(AF+4*buf,4)}, {vr(X,4)}, {vr(ACC+4*t,4)}")

        def mk_sync(c):
            def f():
                k.vmwait(f"{pre}c{c}")
                k("s_barrier")
                if False:
                    k.stamp()
            return f
        gemm_pipeline(k, 20 * NCH, D16, lambda j: 1, read_fn, mfma_fn, {20 * c: mk_sync(c) for c in range(NCH)}, side)

    spr = Sprinkle()

    def sideA(i):
        c, r = divmod(i, 20)
        if r == 0:
            if c + PDA < 5:
                for j in range(4):
                    spr.add(lambda j=j, c=c: xload16(c + PDA, j, s_xa, RXA, f"c{c+PDA}", ""))
                for j in range(5):
                    spr.add(lambda j=j, c=c: wload16(c + PDA, j, s_wa, RA, f"c{c+PDA}"))
            if c == W1AT:
                for cc in range(6):
                    for j in range(3):
                        spr.add(lambda j=j, cc=cc: w1load(cc, j))
        spr.emit(1)

    def initA():
        for tt in range(5):
            a = ACC + 4 * tt
            k(f"v_lshlrev_b32 v{a}, 16, v{RES+2*tt}")
            k(f"v_and_b32 v{a+1}, 0xffff0000, v{RES+2*tt}")
            k(f"v_lshlrev_b32 v{a+2}, 16, v{RES+2*tt+1}")
            k(f"v_and_b32 v{a+3}, 0xffff0000, v{RES+2*tt+1}")
    phase16(5, RA, RXA, sideA, initA)
    assert not spr.q
    k.stamp()
    k.nop(4)
    T = AF
    for t in range(5):
        a = ACC + 4 * t
        k(f"v_cvt_pk_bf16_f32 v{HP+2*t}, v{a}, v{a+1}")
        k(f"v_cvt_pk_bf16_f32 v{HP+1+2*t}, v{a+2}, v{a+3}")
    for i in range(10):
        k(f"v_mov_b32 v{T+i}, v{HP+i}")
    k(f"v_mov_b32 v{T+10}, v{HP+8}")
    k(f"v_mov_b32 v{T+11}, v{HP+9}")
    for p in range(3):
        k(f"v_permlane16_swap_b32 v{T+4*p}, v{T+4*p+2}")
        k(f"v_permlane16_swap_b32 v{T+4*p+1}, v{T+4*p+3}")
        if p < 2:
            k.vmissue(f"buffer_store_dwordx4 {vr(T+4*p,4)}, v{v_h}, s[{sWS}:{sWS+3}], s{s_hoff} offen offset:{p*2048} sc1", "st")
        else:
            k.vmissue(f"buffer_store_dwordx4 {vr(T+4*p,4)}, v{v_h4}, s[{sWS}:{sWS+3}], s{s_hoff} offen sc1", "st")
    for i in range(10):
        k(f"v_dot2_f32_bf16 v{v_s1}, v{HP+i}, v{v_one}, v{v_s1}")
        k(f"v_dot2_f32_bf16 v{v_s2}, v{HP+i}, v{HP+i}, v{v_s2}")
    chs = []
    for v, tt in ((v_s1, t0), (v_s2, t1)):
        chs.append([(f"v_mov_b32 v{tt}, v{v}", 3), (f"v_permlane16_swap_b32 v{v}, v{tt}", 2), (f"v_add_f32 v{v}, v{v}, v{tt}", 1),
                    (f"v_mov_b32 v{tt}, v{v}", 0), (f"v_permlane32_swap_b32 v{v}, v{tt}", 2), (f"v_add_f32 v{v}, v{v}, v{tt}", 1)])
    k.nop(3)
    interleave(k, chs)
    k(f"s_lshl_b32 s{s_t}, s{s_cb}, 14")
    k(f"s_add_u32 s{s_t}, s{s_t}, {WS_ST}")
    k.vmissue(f"buffer_store_dwordx2 {vr(v_s1,2)}, v{v_st}, s[{sWS}:{sWS+3}], s{s_t} offen sc1", "st")

    def group_sync(n, pre0, preload, need):
        pre0()
        k.vmwait("st")
        k("s_barrier")
        k.stamp()
        lab = k.newlabel("na")
        k(f"v_mov_b32 v{t0}, 0")
        k(f"v_mov_b32 v{t1}, 1")
        k(f"s_cmp_lg_u32 s{s_w}, 0")
        k(f"s_cbranch_scc1 {lab}")
        k("s_mov_b64 exec, 1")
        k(f"buffer_atomic_add v{t1}, v{t0}, s[{sWS}:{sWS+3}], s{s_cnt} offen offset:{128*n}")
        k("s_mov_b64 exec, -1")
        k.label(lab)
        preload()
        lab2 = k.newlabel("np")
        lp = k.newlabel("poll")
        k(f"s_cmp_lg_u32 s{s_w}, 0")
        k(f"s_cbranch_scc1 {lab2}")
        k(f"s_mov_b32 s{s_spin}, 0x40000")
        k.label(lp)
        k(f"buffer_load_dword v{t1}, v{t0}, s[{sWS}:{sWS+3}], s{s_cnt} offen offset:{128*n} sc1")
        k("s_waitcnt vmcnt(0)")
        k(f"v_readfirstlane_b32 s{s_t}, v{t1}")
        k(f"s_sub_u32 s{s_spin}, s{s_spin}, 1")
        k(f"s_cmp_eq_u32 s{s_spin}, 0")
        k(f"s_cbranch_scc1 {lab2}")
        k(f"s_cmp_lt_u32 s{s_t}, 16")
        k(f"s_cbranch_scc1 {lp}")
        k.label(lab2)
        if need:
            k.vmwait(need)
        k("s_barrier")

    def pre1a():
        for cc in range(6 if W1AT > 4 else 0):
            for j in range(3):
                w1load(cc, j)

    def pre1():
        for cc in range(6, 10):
            for j in range(3):
                w1load(cc, j)
        for t in range(6):
            k(f"s_add_u32 s{s_t2}, s{s_ex}, {t*1024}")
            k.vmissue(f"buffer_load_dwordx4 {vr(EXA+4*t,4)}, v{v_x}, s[{sWS}:{sWS+3}], s{s_t2} offen", "w1b")
    group_sync(0, pre1a, pre1, "w1a")
    k.stamp()
    RC, RXC, PDX = 7, 4, 3

    NXB = 16

    def xb_load(sx):
        if sx % 4 == 0:
            rot_base(s_cx, s_rB, sx // 4, 10, 4096, s_xb)
        k.vmissue(f"buffer_load_dwordx4 {vr(XB+4*(sx%NXB),4)}, v{v_x}, s[{sWS}:{sWS+3}], s{s_cx} offen offset:{(sx%4)*1024} sc1", f"x{sx}")
    for sx in range(4):
        xb_load(sx)
    for j in range(4):
        k(f"s_add_u32 s{s_t2}, s{s_st}, {j*16384}")
        k.vmissue(f"buffer_load_dwordx2 {vr(ST+2*j,2)}, v{v_sta}, s[{sWS}:{sWS+3}], s{s_t2} offen sc1", "stt")
    for sx in range(4, NB0):
        xb_load(sx)
    xnext = [NB0]
    v_mean, v_rstd = E, E + 1

    def stats_code():
        kk = Kern("tmp")
        kk(f"v_add_f32 v{v_s1}, v{ST}, v{ST+2}")
        kk(f"v_add_f32 v{v_s2}, v{ST+1}, v{ST+3}")
        kk(f"v_add_f32 v{ST+4}, v{ST+4}, v{ST+6}")
        kk(f"v_add_f32 v{ST+5}, v{ST+5}, v{ST+7}")
        kk(f"v_add_f32 v{v_s1}, v{v_s1}, v{ST+4}")
        kk(f"v_add_f32 v{v_s2}, v{v_s2}, v{ST+5}")
        xsum_halves(kk, v_s1, t0)
        xsum_halves(kk, v_s2, t0)
        ln_stats(kk, v_s1, v_s2, v_mean, v_rstd, t0, t1)
        kk(f"v_xor_b32 v{t0}, 0x80000000, v{v_mean}")
        kk(f"v_lshrrev_b32 v{BX}, 16, v{t0}")
        kk(f"v_or_b32 v{BX}, v{BX}, v{t0}")
        kk(f"v_cmp_eq_u32 vcc, 0, v{v_half}")
        for r_ in (BX + 1, BX + 2, BX + 3, BX2, BX2 + 1, BX2 + 2):
            kk(f"v_mov_b32 v{r_}, v{BX}")
        kk(f"v_lshrrev_b32 v{t0}, 16, v{t1}")
        kk(f"v_cndmask_b32 v{BX2+3}, v{t0}, v{BX}, vcc")
        kk(f"v_mul_f32 v{v_mean}, v{v_rstd}, v{v_rstd}")
        kk(f"v_mov_b32 v{v_rstd}, v{v_mean}")
        return [l.strip() for l in kk.L]
    spr2 = Sprinkle()

    def b_read(i, buf):
        sx, t = divmod(i, 3)
        c, r = divmod(sx, 4)
        b, off = lds_addr(W1LOC[c] + (r * 3 + t) * 1024)
        k(f"ds_read_b128 {vr(AF+4*buf,4)}, v{b} offset:{off}")

    def b_mfma(i, buf):
        sx, t = divmod(i, 3)
        if t == 0:
            k.vmwait(f"x{sx}")
            if sx in (0, 8, 16, 24, 32):
                k.stamp()
        c0 = "0" if sx == 0 else vr(ACC + 16 * t, 16)
        k(f"v_mfma_f32_32x32x16_bf16 {vr(ACC+16*t,16)}, {vr(AF+4*buf,4)}, {vr(XB+4*(sx%NXB),4)}, {c0}")

    def b_side(i):
        sx, t = divmod(i, 3)
        if xnext[0] < 40 and xnext[0] <= sx + NXB - 1:
            xb_load(xnext[0])
            xnext[0] += 1
        if i == 30:
            for l in stats_code():
                spr2.add(lambda l=l: k(l))
        spr2.emit(2)
        if i == 6:
            for j in range(5):
                spr.add(lambda j=j: wload16(0, j, s_wc, RC, "Cc0"))
        if i == 73:
            k("s_barrier")
            for c in range(1, 4):
                for j in range(5):
                    spr.add(lambda j=j, c=c: wload16(c, j, s_wc, RC, f"Cc{c}"))
        if t != 0:
            spr.emit(1)

    def mid_sync():
        k.vmwait("w1b")
        k("s_barrier")
    gemm_pipeline(k, 120, D32, lambda j: 1, b_read, b_mfma, {72: mid_sync}, b_side)
    assert not spr.q
    assert not spr2.q
    k.stamp()
    for t in range(3):
        k(f"v_mfma_f32_32x32x16_bf16 {vr(ACC+16*t,16)}, {vr(EXA+8*t,4)}, {vr(BX,4)}, {vr(ACC+16*t,16)}")
        k(f"v_mfma_f32_32x32x16_bf16 {vr(ACC+16*t,16)}, {vr(EXA+8*t+4,4)}, {vr(BX2,4)}, {vr(ACC+16*t,16)}")
    k.nop(8)
    TM = XB
    for t in range(3):
        for qp in range(2):
            O4 = XB + 32 + (t * 2 + qp) * 4
            for qq in range(2):
                z = ACC + 16 * t + 8 * qp + 4 * qq
                m = TM + 4 * qq
                for r in range(4):
                    k(f"v_max_f32 v{m+r}, 0, v{z+r}")
                k(f"v_pk_mul_f32 {vr(z,2)}, {vr(z,2)}, {vr(E,2)}")
                k(f"v_pk_mul_f32 {vr(z+2,2)}, {vr(z+2,2)}, {vr(E,2)}")
                k(f"v_pk_mul_f32 {vr(z,2)}, {vr(z,2)}, {vr(m,2)}")
                k(f"v_pk_mul_f32 {vr(z+2,2)}, {vr(z+2,2)}, {vr(m+2,2)}")
                k(f"v_cvt_pk_bf16_f32 v{O4+2*qq}, v{z}, v{z+1}")
                k(f"v_cvt_pk_bf16_f32 v{O4+2*qq+1}, v{z+2}, v{z+3}")
            k.nop(2)
            k(f"v_permlane32_swap_b32 v{O4}, v{O4+2}")
            k(f"v_permlane32_swap_b32 v{O4+1}, v{O4+3}")
            k.vmissue(f"buffer_store_dwordx4 {vr(O4,4)}, v{v_h1a}, s[{sWS}:{sWS+3}], s{s_so} offen offset:{(4*t+2*qp)*256} sc1", "st")

    def pre2():
        for t in range(5):
            k.vmissue(f"buffer_load_dwordx2 {vr(BIA+2*t,2)}, v{v_b8}, s[{sB}:{sB+3}], s{s_rmoff} offen offset:{t*32}", "Cc0")
        for c in range(4, RC):
            for j in range(5):
                wload16(c, j, s_wc, RC, f"Cc{c}")
    group_sync(1, lambda: None, pre2, None)
    k.stamp()

    for c in range(PDX):
        for j in range(4):
            xload16(c, j, s_xc, RXC, f"Cc{c}", "sc1")

    def sideC(i):
        c, r = divmod(i, 20)
        if r == 0:
            if c + PDX < 12:
                for j in range(4):
                    spr.add(lambda j=j, c=c: xload16(c + PDX, j, s_xc, RXC, f"Cc{c+PDX}", "sc1"))
            cw = c - 2 + RC
            if c >= 2 and cw < 12:
                for j in range(5):
                    spr.add(lambda j=j, cw=cw: wload16(cw, j, s_wc, RC, f"Cc{cw}"))
        spr.emit(1)

    def initC():
        for tt in range(5):
            a = ACC + 4 * tt
            k(f"v_lshlrev_b32 v{a}, 16, v{HP+2*tt}")
            k(f"v_and_b32 v{a+1}, 0xffff0000, v{HP+2*tt}")
            k(f"v_lshlrev_b32 v{a+2}, 16, v{HP+2*tt+1}")
            k(f"v_and_b32 v{a+3}, 0xffff0000, v{HP+2*tt+1}")
            k(f"v_lshlrev_b32 v{t0}, 16, v{BIA+2*tt}")
            k(f"v_and_b32 v{t1}, 0xffff0000, v{BIA+2*tt}")
            k(f"v_lshlrev_b32 v{t2}, 16, v{BIA+2*tt+1}")
            k(f"v_and_b32 v{t3}, 0xffff0000, v{BIA+2*tt+1}")
            k(f"v_add_f32 v{a}, v{a}, v{t0}")
            k(f"v_add_f32 v{a+1}, v{a+1}, v{t1}")
            k(f"v_add_f32 v{a+2}, v{a+2}, v{t2}")
            k(f"v_add_f32 v{a+3}, v{a+3}, v{t3}")
    phase16(12, RC, RXC, sideC, initC, pre="C")
    assert not spr.q
    k.stamp()
    k.nop(4)
    for t in range(5):
        a = ACC + 4 * t
        k(f"v_cvt_pk_bf16_f32 v{T+2*t}, v{a}, v{a+1}")
        k(f"v_cvt_pk_bf16_f32 v{T+1+2*t}, v{a+2}, v{a+3}")
        k(f"ds_write_b64 v{v_ow}, {vr(T+2*t,2)} offset:{t*32}")
    k("s_waitcnt lgkmcnt(0)")
    for i in range(3):
        k(f"ds_read_b128 {vr(T+12+4*i,4)}, v{v_or} offset:{i*1024}")
    for i in range(3):
        k(f"s_waitcnt lgkmcnt({2-i})")
        k(f"buffer_store_dwordx4 {vr(T+12+4*i,4)}, v{OADR+i}, s[{sO}:{sO+3}], s{s_rmoff} offen")
    k.stamp_flush(s_w)
    k.label("k3_end")
    k("s_endpgm")
    if HELP:
        k.label("k3_helper")
        HC0 = int(os.environ.get("HC0", "7"))
        k(f"s_mul_i32 s{s_wc}, s{s_cb}, {1536*160}")
        k(f"s_and_b32 s{s_t2}, s{s_tb}, 3")
        k(f"s_mul_i32 s{s_t2}, s{s_t2}, 5120")
        k(f"s_add_u32 s{s_wc}, s{s_wc}, s{s_t2}")
        k(f"s_add_u32 s{s_wc}, s{s_wc}, {WS_W2}")
        k(f"v_lshlrev_b32 v{t0}, 7, v{v_l}")
        k(f"v_cmp_gt_u32 vcc, 40, v{v_l}")
        k(f"v_mov_b32 v{t1}, 0x7fffff00")
        k.nop(1)
        k(f"v_cndmask_b32 v{t0}, v{t1}, v{t0}, vcc")
        if ROTC:
            k(f"s_mul_i32 s{s_rC}, s{s_cb}, 3")
            k(f"s_lshr_b32 s{s_rC}, s{s_rC}, 1")
        else:
            k(f"s_mov_b32 s{s_rC}, 0")
        k("s_waitcnt lgkmcnt(0)")
        k.srd(sWS, 12, WS_SIZE)
        for _ in range(HELP):
            k("s_barrier")
        for c in range(HC0, 12):
            rot_base(s_cw, s_rC, c, 12, 20480, s_wc)
            k(f"buffer_load_dword v{t1}, v{t0}, s[{sWS}:{sWS+3}], s{s_cw} offen")
        for _ in range(9 - HELP):
            k("s_barrier")
        k("s_endpgm")
    return k.text(NV), "k3_kernel", (256, 320 if HELP else 256, 155648)


def gen_kp(order):
    k = Kern("kp_kernel")
    k("s_cmp_ge_u32 s2, 256")
    k("s_cbranch_scc1 kp_end")
    k(f"s_load_dwordx2 s[12:13], s[0:1], {KA['ws']}")
    k("v_and_b32 v1, 63, v0")
    k("s_waitcnt lgkmcnt(0)")
    for ch in order:
        off, nb = {"o": (WS_WO, 800 * 1024), "1": (WS_W1, 1920 * 1024), "2": (WS_W2, 1920 * 1024)}[ch]
        helper_prefetch(k, 48, 12, off, nb, 1, 4, 5, 35, 36)
        k("s_waitcnt vmcnt(0)")
    k.label("kp_end")
    k("s_endpgm")
    return k.text(16), "kp_kernel", (256, 64, 0)


def main(outpath):
    ks = [gen_k1(), gen_k2(), gen_mlp()]
    if os.environ.get("EMPTY"):
        e = Kern("ke_kernel")
        e("s_endpgm")
        for _ in range(int(os.environ["EMPTY"])):
            pass
        ks.append((e.text(8), "ke_kernel", (256, 64, 0)))
    if os.environ.get("KP"):
        ks.insert(2, gen_kp(os.environ["KP"]))
    hdr = open("cdna_kernels/" + NAME + ".s.ref").read().split("\n")
    head = [l for l in hdr if l.startswith(";") and "@launch" not in l and "Override" not in l and "grid=ceil" not in l]
    s = "\n".join(head) + "\n"
    for (_, name, (g, b, lds)) in ks:
        for _rep in range(2 if name[:2] in os.environ.get("DUP", "") else 1):
            s += f"; @launch kernel={name} grid=({g},1,1) block=({b},1,1) lds={lds}\n"
    s += '.amdgcn_target "amdgcn-amd-amdhsa--gfx950"\n.text\n'
    for ((txt, kd), _, _) in ks:
        s += txt
    s += "text_end:\n"
    s += '.section .rodata,"a"\n'
    for ((txt, kd), _, _) in ks:
        s += kd
    open(outpath, "w").write(s)


if __name__ == "__main__":
    main(sys.argv[1] if len(sys.argv) > 1 else "cdna_kernels/" + NAME + ".s")
```
